```python
import torch

def _softmax(x, axis=-1):
    return torch.softmax(x, dim=axis)
def _gelu(x):
    return torch.nn.functional.gelu(x, approximate="tanh")
def _silu(x):
    return torch.nn.functional.silu(x)
def _sigmoid(x):
    return torch.sigmoid(x)
def _layernorm(x, axis=-1, eps=1e-5):
    m = x.mean(dim=axis, keepdim=True)
    v = x.var(dim=axis, keepdim=True, unbiased=False)
    return (x - m) / torch.sqrt(v + eps)
def _scatter_add(tgt, idx, src, axis=0):
    return tgt.clone().index_add_(axis, idx, src)
def _segment_sum(src, seg, n):
    out = torch.zeros((n,) + src.shape[1:], dtype=src.dtype)
    return out.index_add_(0, seg, src)
def _pad(x, pw):
    flat = tuple(v for pair in reversed(pw) for v in pair)
    return torch.nn.functional.pad(x, flat)

kernel_name = 'parallel_sum__ssm_conv_h3__dense_activation_relu__prompt'

def setup_inputs():

    _w = (lambda a: (lambda t: t.to(torch.bfloat16) if t.is_floating_point() else t)(torch.as_tensor(a)))
    def _A_setup():
        B, S, D = 1, 2048, 512
        ks = 4
        return {
            "q": _w((lambda *s: torch.randn(*s, dtype=torch.bfloat16) * 0.05)(B, S, D)),
            "k": _w((lambda *s: torch.randn(*s, dtype=torch.bfloat16) * 0.8)(B, S, D)),
            "v": _w((lambda *s: torch.randn(*s, dtype=torch.bfloat16) * 0.4)(B, S, D)),
            "shift_k": _w((lambda *s: torch.randn(*s, dtype=torch.bfloat16) * 0.8)(D, ks) * 0.5),
            "ssm_k": _w((lambda *s: torch.randn(*s, dtype=torch.bfloat16) * 0.8)(D, S) * (1.0 / S ** 0.5)),
            "ssm_D": _w((lambda *s: torch.randn(*s, dtype=torch.bfloat16) * 0.4)(D)),
        }
    _A_in = _A_setup()

    def _B_setup():
        B, S, D, Dff = 1, 2048, 512, 1792
        return {
            "x": _w((lambda *s: torch.randn(*s, dtype=torch.bfloat16) * 0.05)(B, S, D)),
            "w1": _w((lambda *s: torch.randn(*s, dtype=torch.bfloat16) * 0.05)(D, Dff)),
            "w2": _w((lambda *s: torch.randn(*s, dtype=torch.bfloat16) * 0.05)(Dff, D)),
        }
    _B_in = _B_setup()

    return {
        "A_q": _A_in["q"],
        "A_k": _A_in["k"],
        "A_v": _A_in["v"],
        "A_shift_k": _A_in["shift_k"],
        "A_ssm_k": _A_in["ssm_k"],
        "A_ssm_D": _A_in["ssm_D"],
        "B_x": _B_in["x"],
        "B_w1": _B_in["w1"],
        "B_w2": _B_in["w2"],
    }

def reference(A_q, A_k, A_v, A_shift_k, A_ssm_k, A_ssm_D, B_x, B_w1, B_w2):
    def _A_ref(q, k, v, shift_k, ssm_k, ssm_D):
        B, S, D = q.shape
        ks = shift_k.shape[-1]
        k_pad = _pad(k, ((0, 0), (ks - 1, 0), (0, 0)))
        k_shift = torch.zeros_like(k)
        for t in range(ks):
            k_shift = k_shift + k_pad[:, t:t + S, :] * shift_k[:, ks - 1 - t][None, None, :]
        kv = k_shift * v
        L = 2 * S
        kv_pad = _pad(kv, ((0, 0), (0, S), (0, 0)))
        kf_pad = _pad(ssm_k, ((0, 0), (0, S)))
        kv_f = (lambda x, axes=(-2,-1): torch.fft.rfft2(x.float(), dim=axes))(kv_pad[:, None, :, :], axes=(1, 2))
        kf_f = (lambda x, axes=(-2,-1): torch.fft.rfft2(x.float(), dim=axes))(kf_pad[:, None, :], axes=(1, 2))
        kf_f = (lambda x, *d: x.permute(*d))(kf_f, 1, 2, 0)
        y_f = kv_f * kf_f[None, :, :, :]
        y = (lambda x, s, axes=(-2,-1): torch.fft.irfft2(x, s=s, dim=axes).to(torch.bfloat16))(y_f, (1, L), axes=(1, 2))[:, 0, :S, :]
        y = y + kv * ssm_D[None, None, :]
        return q * y

    def _B_ref(x, w1, w2):
        h = torch.einsum("bsd,df->bsf", x, w1)
        zero = torch.zeros_like(h)
        h = torch.maximum(h, zero)
        return torch.einsum("bsf,fd->bsd", h, w2)

    x = A_q
    xn = _layernorm(x, axis=-1)
    return x + _A_ref(xn, A_k, A_v, A_shift_k, A_ssm_k, A_ssm_D) + _B_ref(xn, B_w1, B_w2)
```

```python
import re

REG_RE = re.compile(r"^(v|a|s)(\d+)$")
RNG_RE = re.compile(r"^(v|a|s)\[(\d+):(\d+)\]$")
TRANS = ("v_exp_", "v_log_", "v_rcp_", "v_rsq_", "v_sqrt_", "v_sin_", "v_cos_")


def regs_of(tok):
    tok = tok.strip()
    if tok.startswith("-"):
        tok = tok[1:]
    if tok.startswith("|"):
        tok = tok.strip("|")
    m = REG_RE.match(tok)
    if m:
        return [(m.group(1), int(m.group(2)))]
    m = RNG_RE.match(tok)
    if m:
        return [(m.group(1), i) for i in range(int(m.group(2)), int(m.group(3)) + 1)]
    if tok == "vcc":
        return [("s", "vcc")]
    if tok == "exec":
        return [("s", "exec")]
    if tok == "m0":
        return [("s", "m0")]
    return []


class Ins:
    __slots__ = ("text", "mn", "cls", "R", "W", "A", "B", "C", "passes", "cnt", "dpp", "wide", "lds")

    def __init__(self, text):
        self.text = text
        t = text.split(";")[0].strip()
        parts = t.split(None, 1)
        mn = self.mn = parts[0]
        rest = parts[1] if len(parts) > 1 else ""
        ops = [o.strip() for o in rest.split(",")] if rest else []
        mods = ""
        if ops:
            j = None
            for i, o in enumerate(ops):
                if " " in o:
                    j = i
                    break
            if j is not None:
                first, tail = ops[j].split(None, 1)
                mods = tail + "," + ",".join(ops[j + 1:])
                ops = ops[:j] + [first]
        self.R, self.W = set(), set()
        self.A = self.B = self.C = None
        self.passes = 0
        self.cnt = 1
        self.dpp = any(k in mods for k in ("quad_perm", "row_", "wave_"))
        self.wide = False
        self.lds = False
        rr = lambda toks: set(r for tk in toks for r in regs_of(tk))
        if mn.startswith("v_mfma"):
            self.cls = "mfma"
            self.passes = 8 if "32x32x16" in mn else 4 if "16x16x32" in mn else 16
            self.W = rr(ops[0:1])
            self.A, self.B, self.C = rr(ops[1:2]), rr(ops[2:3]), rr(ops[3:4])
            self.R = self.A | self.B | self.C
        elif mn.startswith("v_"):
            self.cls = "valu"
            if mn.startswith("v_permlane") or mn.startswith("v_swap"):
                self.W = rr(ops[0:2])
                self.R = rr(ops[0:2])
            elif mn.startswith(("v_add_co", "v_addc_co", "v_sub_co", "v_subb_co")):
                self.W = rr(ops[0:2])
                self.R = rr(ops[2:])
            elif mn == "v_nop":
                pass
            else:
                self.W = rr(ops[0:1])
                self.R = rr(ops[1:])
                if mn.startswith(("v_fmac", "v_dot2c", "v_writelane", "v_pk_fmac")) or self.dpp or "sdwa" in mn:
                    self.R |= self.W
                if mn.startswith("v_cndmask") and len(ops) == 3:
                    self.R.add(("s", "vcc"))
        elif mn.startswith("ds_"):
            self.cls = "ds"
            if mn.startswith("ds_read"):
                self.W = rr(ops[0:1])
                self.R = rr(ops[1:])
            else:
                self.R = rr(ops)
        elif mn.startswith(("buffer_", "global_")):
            self.cls = "vmem"
            self.lds = bool(re.search(r"\blds\b", mods))
            if "load" in mn and not self.lds:
                self.W = rr(ops[0:1])
                self.R = rr(ops[1:])
            else:
                self.R = rr(ops)
                if self.lds:
                    self.R.add(("s", "m0"))
                if "store" in mn and ("x3" in mn or "x4" in mn):
                    self.wide = True
                    self.A = rr(ops[0:1])
        elif mn.startswith("s_load") or mn.startswith("s_memtime") or mn.startswith("s_memrealtime"):
            self.cls = "smem"
            self.W = rr(ops[0:1])
            self.R = rr(ops[1:])
        elif mn == "s_nop":
            self.cls = "nop"
            self.cnt = int(ops[0]) + 1
        elif mn.startswith(("s_waitcnt", "s_barrier", "s_branch", "s_cbranch", "s_endpgm", "s_setprio", "s_sleep")):
            self.cls = "ctl"
        elif mn.startswith("s_cmp") or mn.startswith("s_bitcmp"):
            self.cls = "salu"
            self.R = rr(ops)
        elif mn.startswith("s_"):
            self.cls = "salu"
            self.W = rr(ops[0:1])
            self.R = rr(ops[1:])
            if "saveexec" in mn:
                self.W.add(("s", "exec"))
        else:
            raise ValueError("unknown mnemonic: " + text)


def need_states(p, c):
    n = 0
    vw = set(r for r in p.W if r[0] != "s")
    sw = set(r for r in p.W if r[0] == "s")
    if p.cls == "valu":
        if c.cls == "mfma" and vw & c.R:
            n = max(n, 3 if p.mn.startswith("v_dot") else 2)
        if c.cls == "valu":
            if vw & c.R:
                if c.mn.startswith(("v_readlane", "v_readfirstlane")):
                    n = max(n, 1)
                if c.dpp or c.mn.startswith("v_permlane"):
                    n = max(n, 2)
                if p.mn.startswith(TRANS) and not c.mn.startswith(TRANS):
                    n = max(n, 1)
                if "sdwa" in p.mn or ("op_sel" in p.text and not p.mn.startswith("v_pk")):
                    n = max(n, 1)
            if p.mn.startswith("v_dot") and vw & (c.R | c.W):
                if not (c.mn == p.mn and c.mn.startswith("v_dot2c") and not (vw & (c.R - c.W))):
                    n = max(n, 3)
            if sw & c.R:
                n = max(n, 4 if c.mn.startswith(("v_readlane", "v_writelane")) else 2)
        if c.cls in ("vmem", "ds") and p.mn.startswith("v_dot") and vw & c.R:
            n = max(n, 3)
        if c.cls == "vmem" and sw & c.R:
            n = max(n, 5)
    elif p.cls == "mfma":
        big = {4: 8, 8: 12, 16: 20}[p.passes]
        if c.cls == "mfma":
            if p.W & (c.A | c.B):
                n = max(n, big)
            if p.W & c.C and not (p.W == c.C and p.passes == c.passes):
                n = max(n, big - 2)
            if p.W & c.W and not (p.W & c.C):
                n = max(n, big)
        elif c.cls == "valu":
            if p.W & (c.R | c.W):
                n = max(n, big)
            if p.C & c.W:
                n = max(n, {4: 3, 8: 7, 16: 15}[p.passes])
        elif c.cls in ("vmem", "ds"):
            if p.W & (c.R | c.W):
                n = max(n, big)
            if p.C & c.W:
                n = max(n, {4: 3, 8: 7, 16: 15}[p.passes])
    elif p.cls == "salu":
        if c.cls == "vmem" and c.lds and ("s", "m0") in p.W:
            n = max(n, 1)
    elif p.cls == "vmem" and p.wide:
        if p.A & c.W:
            n = max(n, 2 if c.cls == "valu" else 1)
    return n


class Asm:
    def __init__(self):
        self.out = []
        self.hist = []
        self.vm = []
        self.lg = []
        self.sm = set()
        self.nops = 0
        self.seen = set()

    def raw(self, s):
        self.out.append(s)

    def comment(self, s):
        self.out.append("    ; " + s)

    def label(self, name, reset=False):
        self.out.append(name + ":")
        if reset:
            self.hist = []

    def state(self):
        return (list(self.hist), list(self.vm), list(self.lg), set(self.sm))

    def restore(self, st):
        self.hist, self.vm, self.lg, self.sm = list(st[0]), list(st[1]), list(st[2]), set(st[3])

    def _push(self, ins):
        self.out.append("    " + ins.text)
        self.hist.append(ins)
        if len(self.hist) > 24:
            self.hist.pop(0)

    def _wait(self, vm=None, lg=None):
        parts = []
        if vm is not None:
            assert vm <= 63
            parts.append(f"vmcnt({vm})")
            self.vm = self.vm[len(self.vm) - vm:] if vm else []
        if lg is not None:
            assert lg <= 15
            parts.append(f"lgkmcnt({lg})")
            self.lg = self.lg[len(self.lg) - lg:] if lg else []
            if lg == 0:
                self.sm = set()
        if parts:
            self._push(Ins("s_waitcnt " + " ".join(parts)))

    @staticmethod
    def _need(q, pred, cap):
        idx = -1
        for i, e in enumerate(q):
            if pred(e):
                idx = i
        if idx < 0:
            return None
        return min(len(q) - 1 - idx, cap)

    def wait(self, *tags):
        ts = set(tags)
        assert ts <= self.seen, ts - self.seen
        vm = self._need(self.vm, lambda e: e[0] in ts, 63)
        lg = self._need(self.lg, lambda e: e[0] in ts, 15)
        self._wait(vm, lg)

    def wait_all(self, vm=True, lg=True):
        self._wait(0 if vm else None, 0 if lg else None)

    def __call__(self, text, tag=None):
        for line in text.strip().split("\n"):
            line = line.strip()
            if not line or line.startswith(";"):
                continue
            if line.endswith(":"):
                self.label(line[:-1])
                continue
            self.one(line, tag)

    def one(self, text, tag=None):
        ins = Ins(text)
        self.seen.add(tag)
        touch = ins.R | ins.W
        vm = self._need(self.vm, lambda e: e[1] & touch, 63)
        lg = self._need(self.lg, lambda e: e[1] & touch, 15)
        if ins.cls == "ds" and lg is not None:
            lg = self._need(self.lg, lambda e: e[1] & ins.R, 15)
        if ins.cls == "vmem" and vm is not None:
            vm = self._need(self.vm, lambda e: e[1] & ins.R, 63)
        if self.sm & touch:
            lg = 0
        if vm is not None or lg is not None:
            self._wait(vm, lg)
        dist = 0
        need = 0
        for p in reversed(self.hist):
            n = need_states(p, ins)
            if n > dist:
                need = max(need, n - dist)
            dist += p.cnt
            if dist >= 20:
                break
        while need > 0:
            k = min(need, 16)
            self._push(Ins(f"s_nop {k-1}"))
            self.nops += k
            need -= k
        if ins.mn == "s_waitcnt":
            raise ValueError("use wait()/wait_all()")
        self._push(ins)
        if ins.cls == "vmem":
            self.vm.append((tag, set(ins.W)))
            assert len(self.vm) <= 63, "too many vector memory ops in flight"
        elif ins.cls == "ds":
            self.lg.append((tag, set(ins.W)))
        elif ins.cls == "smem":
            self.sm |= ins.W

    def text(self):
        return "\n".join(self.out) + "\n"
```

```python
import sys, os
sys.path.insert(0, os.path.dirname(os.path.abspath(__file__)))
from emit import Asm

KN = "parallel_sum__ssm_conv_h3__dense_activation_relu__prompt_kernel"

KVT = 0x000000
YWS = 0x200000
HWS = 0x400000
FL_KV = 0xC00000
FL_Y = 0xC20000
FL_H = 0xC40000
STAT = 0xC80000
GEN = 0xC90000
STAMP = 0xD00000
WS_SIZE = 0x1000000

XB = 131072
CX = 147456
KT = 131072 - 17408
VT = KT + 9216
PB = 0
KV = 33280
EX = 90112
RED = 0
LDS_SIZE = 163840

SX, SK, SV, SSH, SHK, SW1, SW2, SO, SWS = [f"s[{4*i}:{4*i+3}]" for i in range(1, 10)]
sTAG = "s[42:43]"
sW, sXCD, sJ = "s44", "s45", "s46"
sST, sDT = "s47", "s48"
sXO = ["s49", "s50", "s51", "s52"]
sW1O, sM0 = "s53", "s54"
sHO = "s55"
sD, sH0, sH1 = "s56", "s58", "s59"
sT0, sT1, sT2, sT3 = "s60", "s61", "s62", "s63"
sW2O = "s64"
sXBW = "s65"
sFH = "s66"
sCNT = "s67"
sHL = "s68"
sFT = "s69"
sEO = "s70"
sSTAMP = 72

def V(i, n=1):
    return f"v{i}" if n == 1 else f"v[{i}:{i+n-1}]"
def A(i, n=1):
    return f"a{i}" if n == 1 else f"a[{i}:{i+n-1}]"

vL, vL16, vXO, vW0, vW1 = 1, 2, 3, 4, 5
vXW0, vXW1 = 6, 7
vXR = [8, 9, 10, 11]
vA = [[12, 13], [14, 15], [16, 17], [18, 19]]
vV0, vV1 = 20, 21
vTAG = 22
vP = 24
vPO = 26
vT = 27
RING = 40
ACC = 64
XR = 128
aSEL, aM, aC = 224, 228, 232
aY = 224


class Gen:
    def __init__(self, **o):
        self.o = dict(diag=False, codepf=True, nt_kv=False, nt_hk=False)
        self.o.update(o)
        self.a = Asm()
        self.slow = []
        self.nst = 0
        self.names = []

    def stamp(self, name):
        if not self.o["diag"]:
            return
        r = sSTAMP + 2 * self.nst
        assert r + 1 < 102
        self.a(f"s_memrealtime s[{r}:{r+1}]")
        self.names.append(name)
        self.nst += 1

    def flag_store(self, soff):
        a = self.a
        a("s_mov_b64 exec, 1")
        a(f"buffer_store_dwordx2 {V(vTAG,2)}, off, {SWS}, {soff} sc1")
        a("s_mov_b64 exec, -1")

    def poll_issue(self, soff, imm=0):
        self.a(f"buffer_load_dwordx2 {V(vP,2)}, {V(vPO)}, {SWS}, {soff} offen offset:{imm} sc1")

    def poll_check(self, name, soff, imm=0):
        a = self.a
        a(f"v_cmp_ne_u64 vcc, {sTAG}, {V(vP,2)}")
        a(f"s_cbranch_vccnz L_slow_{name}")
        a.label(f"L_back_{name}")
        self.slow.append(f"""L_slow_{name}:
    s_mov_b32 {sCNT}, 0
L_spin_{name}:
    buffer_load_dwordx2 {V(vP,2)}, {V(vPO)}, {SWS}, {soff} offen offset:{imm} sc1
    s_add_u32 {sCNT}, {sCNT}, 1
    s_cmp_gt_u32 {sCNT}, 20000
    s_waitcnt vmcnt(0)
    s_cbranch_scc1 L_back_{name}
    v_cmp_ne_u64 vcc, {sTAG}, {V(vP,2)}
    s_cbranch_vccnz L_spin_{name}
    s_branch L_back_{name}
""")

    def prologue(self):
        a = self.a
        a(f"""
        s_cmp_ge_u32 s2, 0x100
        s_cbranch_scc1 L_end
        s_load_dwordx2 s[8:9], s[0:1], 8
        s_load_dwordx2 s[12:13], s[0:1], 16
        s_load_dwordx2 s[16:17], s[0:1], 24
        s_load_dwordx2 s[4:5], s[0:1], 0
        s_load_dwordx2 s[24:25], s[0:1], 56
        s_load_dwordx2 s[36:37], s[0:1], 88
        s_load_dwordx2 s[20:21], s[0:1], 32
        s_load_dwordx2 s[40:41], s[0:1], 40
        s_load_dwordx2 s[28:29], s[0:1], 64
        s_load_dwordx2 s[32:33], s[0:1], 72
        """)
        self.stamp("start")
        a(f"""
        v_lshrrev_b32 v27, 6, v0
        v_and_b32 {V(vL)}, 63, v0
        s_and_b32 {sXCD}, s2, 7
        v_readfirstlane_b32 {sW}, v27
        s_lshr_b32 {sJ}, s2, 3
        """)
        if self.o["codepf"]:
            a(f"""
            s_getpc_b64 s[60:61]
            L_pc:
            v_lshlrev_b32 v28, 7, v0
            v_min_u32 v28, L_codeend-L_pc-4, v28
            v_mov_b32 v29, s61
            v_add_co_u32 v28, vcc, s60, v28
            v_addc_co_u32 v29, vcc, 0, v29, vcc
            global_load_dword v39, v[28:29], off
            """)
        a(f"""
        s_mov_b32 s6, 0x200000
        s_mov_b32 s7, 0x20000
        s_mov_b64 s[10:11], s[6:7]
        s_mov_b64 s[14:15], s[6:7]
        s_mov_b64 s[22:23], s[6:7]
        s_mov_b64 s[34:35], s[6:7]
        s_mov_b32 s18, 0x1000
        s_mov_b32 s19, s7
        s_mov_b32 s30, 0x1c0000
        s_mov_b32 s31, s7
        s_mov_b32 s27, s7
        s_mov_b32 s38, {WS_SIZE}
        s_mov_b32 s39, s7
        s_cmp_lt_u32 {sJ}, 28
        s_cselect_b32 s26, s30, 0
        s_lshr_b32 {sT0}, {sJ}, 3
        s_lshl2_add_u32 {sST}, {sXCD}, {sT0}
        s_and_b32 {sDT}, {sJ}, 7
        v_lshlrev_b32 {V(vL16)}, 4, {V(vL)}
        v_lshrrev_b32 v27, 3, {V(vL)}          ; l>>3
        v_and_b32 v28, 7, {V(vL)}              ; l&7
        v_lshrrev_b32 v29, 4, {V(vL)}          ; l>>4
        v_lshrrev_b32 v30, 5, {V(vL)}          ; l>>5
        v_lshlrev_b32 v31, 10, v27             ; (l>>3)*1024
        v_lshl_or_b32 {V(vXO)}, v28, 4, v31
        v_lshlrev_b32 v32, 5, v30
        v_xor_b32 v32, {V(vXO)}, v32
        v_xor_b32 v33, 64, v32
        v_add_u32 v33, 7168, v33
        s_lshl_b32 {sT0}, {sST}, 16
        s_lshl_b32 {sT1}, {sW}, 14
        s_lshl_b32 {sT2}, {sDT}, 7
        s_add_u32 {sT0}, {sT0}, {sT2}
        s_add_u32 {sEO}, {sT0}, {sT1}
        s_lshl_b32 {sT1}, {sW}, 10
        s_add_u32 {sT0}, {sT0}, {sT1}
        s_sub_u32 {sT0}, {sT0}, 4096
        v_xor_b32 v34, 6, v28
        v_lshlrev_b32 v34, 4, v34
        v_add_u32 v34, {sT0}, v34
        s_lshl_b32 {sT1}, {sW}, 11
        s_add_u32 m0, {sT1}, {KT + 1024}
        s_lshl_b32 {sT2}, {sW}, 7
        s_lshl_b32 {sT3}, {sDT}, 9
        s_add_u32 {sT3}, {sT3}, {sT2}
        v_and_b32 v35, 15, {V(vL)}             ; l&15
        v_lshlrev_b32 v36, 3, v35
        """)
        nt = " nt" if self.o["nt_kv"] else ""
        a(f"buffer_load_dwordx4 v32, {SK}, {sEO} offen{nt} lds", "a1")
        a(f"buffer_load_dwordx4 v33, {SK}, {sEO} offen offset:1024{nt} lds", "a1")
        a(f"s_add_u32 m0, {sT1}, {VT}")
        a(f"buffer_load_dwordx2 {V(RING,2)}, v36, {SSH}, {sT3} offen", "a1")
        a(f"buffer_load_dwordx4 v32, {SV}, {sEO} offen{nt} lds", "a1")
        a(f"buffer_load_dwordx4 v33, {SV}, {sEO} offen offset:1024{nt} lds", "a1")
        a(f"s_add_u32 m0, {sT2}, {KT + 512}")
        a("s_mov_b64 exec, 0xff")
        a(f"buffer_load_dwordx4 v34, {SK}, 0 offen lds", "a1")
        a("s_mov_b64 exec, -1")
        a(f"""
        s_lshr_b32 {sT0}, {sW}, 1
        s_lshl1_add_u32 {sT0}, s2, {sT0}
        s_lshl_b32 {sT0}, {sT0}, 12
        s_lshl_b32 {sT1}, s2, 2
        s_mov_b32 {sT2}, {GEN}
        s_load_dwordx2 s[58:59], s[20:21], {sT0}
        s_load_dword {sD}, s[40:41], {sT1}
        s_load_dwordx2 {sTAG}, s[36:37], {sT2}
        """)
        a(f"""
        s_lshr_b32 {sT0}, {sXCD}, 1
        s_and_b32 {sT1}, {sJ}, 3
        s_lshl2_add_u32 {sT0}, {sT0}, {sT1}         ; rb
        s_lshl2_add_u32 {sT0}, {sT0}, {sW}
        s_and_b32 {sT2}, {sXCD}, 1
        s_mul_i32 {sT2}, {sT2}, 7
        s_lshr_b32 {sT3}, {sJ}, 2
        s_add_u32 {sFT}, {sT2}, {sT3}               ; ft
        s_mul_i32 {sFH}, {sT0}, 14
        s_add_u32 {sFH}, {sFH}, {sFT}
        s_lshl_b32 {sFH}, {sFH}, 8
        s_add_u32 {sFH}, {sFH}, {FL_H}
        s_mul_i32 {sHO}, {sT0}, 112
        s_add_u32 {sHO}, {sHO}, {sFT}
        s_lshl_b32 {sHO}, {sHO}, 10
        s_add_u32 {sHO}, {sHO}, {HWS}
        s_lshl_b32 {sT0}, {sT0}, 15
        s_lshl2_add_u32 {sT1}, {sXCD}, {sT1}
        s_lshl2_add_u32 {sT1}, {sT1}, {sW}
        s_lshl_b32 {sT1}, {sT1}, 14
        s_cmp_lt_u32 {sJ}, 28
        s_cselect_b32 {sXO[0]}, {sT0}, {sT1}
        s_cselect_b32 {sT2}, 0, 0x400000
        s_add_u32 {sXO[1]}, {sXO[0]}, 8192
        s_add_u32 {sXO[2]}, {sXO[1]}, 8192
        s_add_u32 {sXO[2]}, {sXO[2]}, {sT2}
        s_add_u32 {sXO[3]}, {sXO[2]}, 8192
        s_mul_i32 {sW1O}, {sW}, {16*3584}
        s_lshl_b32 {sT0}, {sFT}, 8
        s_add_u32 {sW1O}, {sW1O}, {sT0}
        s_lshl_b32 {sM0}, {sW}, 11
        v_and_b32 v37, 1, v29
        v_lshlrev_b32 v37, 6, v37
        v_xor_b32 {V(vV0)}, {V(vXO)}, v37
        v_add_u32 {V(vV1)}, 8192, {V(vV0)}
        v_mul_u32_u24 v38, 2560, v27
        v_add_u32 {V(vW0)}, {V(vV0)}, v38
        v_add_u32 {V(vW1)}, {8*3584-1024}, {V(vW0)}
        """)

    def ld_x(self, c, i):
        self.a(f"buffer_load_dwordx4 {V(XR+16*c+4*i,4)}, {V(vXO)}, {SX}, {sXO[i]} offen offset:{128*c}", f"x{c}")

    def ld_w1(self, n):
        a = self.a
        a(f"s_mov_b32 m0, {sM0}")
        a(f"s_add_u32 {sM0}, {sM0}, 8192")
        a(f"buffer_load_dwordx4 {V(vW0)}, {SW1}, {sW1O} offen lds", f"w{n}")
        a(f"buffer_load_dwordx4 {V(vW1)}, {SW1}, {sW1O} offen offset:1024 lds", f"w{n}")
        if n == 7:
            a(f"s_sub_u32 {sW1O}, {sW1O}, {7*64*3584 - 128}")
        elif n < 15:
            a(f"s_add_u32 {sW1O}, {sW1O}, {64*3584}")

    def b1_load_list(self):
        L = []
        for c in range(8):
            for i in range(4):
                L.append(lambda c=c, i=i: self.ld_x(c, i))
            L.append(lambda c=c: self.ld_w1(c))
        for c in range(8):
            L.append(lambda c=c: self.ld_w1(8 + c))
        return L

    def addr_b1(self):
        a = self.a
        a(f"""
        s_lshl_b32 {sXBW}, {sW}, 12
        s_add_u32 {sXBW}, {sXBW}, {XB}
        v_lshrrev_b32 v27, 3, {V(vL)}
        v_and_b32 v28, 7, {V(vL)}
        v_lshrrev_b32 v29, 4, {V(vL)}
        v_lshrrev_b32 v30, 5, {V(vL)}
        v_xor_b32 v31, v28, v29
        v_lshlrev_b32 v31, 4, v31
        v_lshl_add_u32 v31, v27, 7, v31
        v_add_u32 {V(vXW0)}, {sXBW}, v31
        v_xor_b32 {V(vXW1)}, 64, {V(vXW0)}
        v_bfe_u32 v31, {V(vL)}, 1, 3
        v_xor_b32 v31, v31, v30
        v_lshlrev_b32 v31, 4, v31
        v_and_b32 v32, 31, {V(vL)}
        v_lshl_add_u32 v31, v32, 7, v31
        v_add_u32 v31, {sXBW}, v31
        v_bfe_u32 v32, {V(vL)}, 2, 2          ; r
        v_and_b32 v33, 3, {V(vL)}             ; c
        v_lshl_add_u32 v34, v30, 3, v32       ; 8*half + r
        v_lshlrev_b32 v34, 7, v34
        v_bfe_u32 v35, {V(vL)}, 3, 1          ; (r>>1)&1
        v_lshl_add_u32 v34, v35, 6, v34
        v_and_b32 v35, 1, v29
        v_lshl_add_u32 v34, v35, 5, v34
        v_lshl_add_u32 v34, v33, 3, v34
        """)
        for tt in range(4):
            a(f"""
            s_add_u32 {sT0}, {sW}, {tt}
            s_and_b32 {sT0}, {sT0}, 3
            s_lshl_b32 {sT1}, {sT0}, 5
            s_lshl_b32 {sT0}, {sT0}, 11
            v_xor_b32 {V(vXR[tt])}, {sT1}, v31
            v_add_u32 {V(vA[tt][0])}, {sT0}, v34
            v_xor_b32 {V(vA[tt][1])}, 64, {V(vA[tt][0])}
            """)
        a(f"""
        v_lshrrev_b32 v31, 2, {V(vL)}
        v_xor_b32 v31, v31, v29
        v_and_b32 v31, 1, v31
        v_add_u32 v31, -1, v31
        v_and_b32 v31, 0x3f803f80, v31
        v_accvgpr_write_b32 {A(aSEL)}, v31
        v_accvgpr_write_b32 {A(aSEL+1)}, v31
        v_accvgpr_write_b32 {A(aSEL+2)}, v31
        v_accvgpr_write_b32 {A(aSEL+3)}, v31
        """)

    def a1(self, fill):
        a = self.a
        a(f"""
        v_lshrrev_b32 v27, 4, {V(vL)}         ; G
        v_bfe_u32 v28, {V(vL)}, 2, 2          ; r
        v_and_b32 v29, 3, {V(vL)}             ; c
        v_lshrrev_b32 v30, 2, {V(vL)}         ; 4G + r
        v_lshlrev_b32 v30, 9, v30
        v_lshl_add_u32 v30, v29, 3, v30
        v_xor_b32 v31, {sW}, v28
        v_lshl_add_u32 v31, v31, 5, v30
        v_add_u32 v31, {KT + 1024}, v31
        v_add_u32 v32, 3, v28
        v_and_b32 v32, 3, v32
        v_xor_b32 v32, {sW}, v32
        v_lshl_add_u32 v32, v32, 5, v30
        v_add_u32 v32, {KT + 512}, v32
        v_bfe_u32 v33, {V(vL)}, 1, 3          ; i>>1
        v_mul_u32_u24 v33, 272, v33
        v_lshl_add_u32 v33, v27, 4, v33
        v_add_u32 v33, {sXBW}, v33
        v_and_b32 v34, 1, {V(vL)}
        v_lshlrev_b32 v34, 1, v34
        s_and_b32 {sT0}, {sST}, 3
        v_xor_b32 v34, {sT0}, v34
        v_xor_b32 v35, 1, v34
        v_lshl_add_u32 v34, v34, 6, v33
        v_lshl_add_u32 v35, v35, 6, v33
        v_and_b32 v36, 15, {V(vL)}
        v_lshlrev_b32 v36, 4, v36
        v_mul_u32_u24 v37, 272, v27
        v_add3_u32 v37, v37, v36, {sXBW}
        v_lshl_add_u32 v36, v27, 13, v36
        """)
        a.wait("a1")
        a("s_barrier")
        self.stamp("a1data")
        KR, VR, KF, VF, WF, U = 64, 78, 86, 114, 44, 48
        for s in range(-3, 4):
            base, imm = ("v31", s * 128) if s >= 0 else ("v32", (s + 4) * 128)
            a(f"ds_read_b64_tr_b16 {V(KR+2*(s+3),2)}, {base} offset:{imm}")
        for r in range(4):
            a(f"ds_read_b64_tr_b16 {V(VR+2*r,2)}, v31 offset:{VT-KT-1024+r*128}")
        ops = []
        ops += [f"v_lshlrev_b32 {V(WF)}, 16, {V(RING)}", f"v_and_b32 {V(WF+1)}, 0xffff0000, {V(RING)}",
                f"v_lshlrev_b32 {V(WF+2)}, 16, {V(RING+1)}", f"v_and_b32 {V(WF+3)}, 0xffff0000, {V(RING+1)}"]
        def unpack(dst, src):
            return [f"v_lshlrev_b32 {V(dst)}, 16, {V(src)}", f"v_and_b32 {V(dst+1)}, 0xffff0000, {V(src)}",
                    f"v_lshlrev_b32 {V(dst+2)}, 16, {V(src+1)}", f"v_and_b32 {V(dst+3)}, 0xffff0000, {V(src+1)}"]
        done = set()
        for rho in range(4):
            acc = 122
            for j in range(3, -1, -1):
                s = rho - j
                if s not in done:
                    ops += unpack(KF + 4 * (s + 3), KR + 2 * (s + 3))
                    done.add(s)
            vf = VF + 4 * (rho & 1)
            ops += unpack(vf, VR + 2 * rho)
            for j in range(3, -1, -1):
                s = rho - j
                wp = V(WF + (j & 2), 2)
                lo = j & 1
                for h in range(2):
                    k = V(KF + 4 * (s + 3) + 2 * h, 2)
                    d = V(acc + 2 * h, 2)
                    if j == 3:
                        ops.append(f"v_pk_mul_f32 {d}, {k}, {wp} op_sel:[0,{lo}] op_sel_hi:[1,{lo}]")
                    else:
                        ops.append(f"v_pk_fma_f32 {d}, {k}, {wp}, {d} op_sel:[0,{lo},0] op_sel_hi:[1,{lo},1]")
            for h in range(2):
                ops.append(f"v_pk_mul_f32 {V(acc+2*h,2)}, {V(acc+2*h,2)}, {V(vf+2*h,2)}")
            for h in range(2):
                ops.append(f"v_cvt_pk_bf16_f32 {V(U+2*rho+h)}, {V(acc+2*h)}, {V(acc+2*h+1)}")
            if rho & 1:
                ops.append(f"ds_write_b128 {'v34' if rho == 1 else 'v35'}, {V(U+4*(rho>>1),4)}")
        step = max(1, len(ops) // (len(fill) + 1))
        for n, op in enumerate(ops):
            a(op)
            if n % step == step - 1 and fill:
                fill.pop(0)()
        for f in fill:
            f()
        a(f"ds_read_b128 {V(U,4)}, v37")
        a(f"ds_read_b128 {V(U+4,4)}, v37 offset:1088")
        a(f"""
        s_lshl2_add_u32 {sT0}, {sDT}, {sW}
        s_lshl_b32 {sT1}, {sT0}, 16
        s_lshl_b32 {sT2}, {sST}, 8
        s_add_u32 {sT1}, {sT1}, {sT2}
        s_add_u32 {sT2}, {sT1}, {4*8192}
        s_add_u32 s42, s42, 0x7f4a7c15
        s_addc_u32 s43, s43, 0x9e3779b9
        v_mov_b32 {V(vTAG)}, s42
        v_mov_b32 {V(vTAG+1)}, s43
        """)
        a(f"buffer_store_dwordx4 {V(U,4)}, v36, {SWS}, {sT1} offen sc1", "kvst")
        a(f"buffer_store_dwordx4 {V(U+4,4)}, v36, {SWS}, {sT2} offen sc1", "kvst")

    def kv_flag(self):
        a = self.a
        a(f"""
        s_lshl2_add_u32 {sT0}, {sDT}, {sW}
        s_lshl_b32 {sT1}, {sST}, 5
        s_add_u32 {sT0}, {sT0}, {sT1}
        s_lshl_b32 {sT0}, {sT0}, 7
        s_add_u32 {sT0}, {sT0}, {FL_KV}
        """)
        a.wait("kvst")
        self.flag_store(sT0)

    def x_write(self, c):
        for i in range(4):
            self.a(f"ds_write_b128 {V(vXW1 if i & 1 else vXW0)}, {V(XR+16*c+4*i,4)} offset:{i*1024}")

    def x_read(self, c):
        for tt in range(4):
            self.a(f"ds_read_b128 {V(XR+16*c+4*tt,4)}, {V(vXR[tt])}")

    def w_frag(self, c, tt, fb, slot):
        r = RING + 8 * slot + 4 * fb
        for jj in range(2):
            self.a(f"ds_read_b64_tr_b16 {V(r+2*jj,2)}, {V(vA[tt][fb])} offset:{c*8192+jj*512}")

    def b1_pass(self, hf, fill):
        a = self.a
        for c in range(8):
            for tt in range(4):
                step = 32 * hf + 4 * c + tt
                slot = step % 3
                nxt = step + 1
                x = V(XR + 16 * c + 4 * tt, 4)
                for fb in range(2):
                    acc = V(ACC + 32 * hf + 16 * fb, 16)
                    fr = V(RING + 8 * slot + 4 * fb, 4)
                    first = (c == 0 and tt == 0)
                    pos = 2 * tt + fb
                    if pos == 6 and nxt < 64:
                        a.wait(f"w{nxt//4}")
                        a("s_barrier")
                        if nxt == 32:
                            for t2 in range(4):
                                for f2 in range(2):
                                    a(f"v_add_u32 {V(vA[t2][f2])}, 0x10000, {V(vA[t2][f2])}")
                    a(f"v_mfma_f32_32x32x16_bf16 {acc}, {fr}, {x}, {'0' if first else acc}")
                    if nxt < 64:
                        self.w_frag((nxt // 4) % 8, nxt % 4, fb, nxt % 3)
                    if tt == 0:
                        cc = A(aC + 8 * hf + 4 * fb, 4)
                        a(f"v_mfma_f32_16x16x32_bf16 {cc}, {A(aSEL,4)}, {fr}, {'0' if c == 0 else cc}")
                    if hf == 0 and fb == 1:
                        mm = A(aM, 4)
                        a(f"v_mfma_f32_16x16x32_bf16 {mm}, {A(aSEL,4)}, {x}, {'0' if first else mm}")
                    if hf == 0 and c < 7:
                        if pos == 2:
                            self.x_write(c + 1)
                        if pos == 3:
                            self.x_read(c + 1)
                    for f in fill.get((c, pos), []):
                        f()

    def c_publish(self, hf):
        a = self.a
        a(f"""
        v_accvgpr_read_b32 v27, {A(aC+8*hf)}
        v_accvgpr_read_b32 v28, {A(aC+8*hf+4)}
        v_cmp_gt_u32 vcc, 32, {V(vL)}
        s_lshl_b32 {sT0}, {sW}, 3
        s_add_u32 {sT0}, {sT0}, {CX + 2048*hf}
        v_cndmask_b32 v27, v28, v27, vcc
        v_and_b32 v28, 0xffff0000, v27
        v_sub_f32 v27, v27, v28
        v_and_b32 v29, 0xffff0000, v27
        v_sub_f32 v27, v27, v29
        v_lshrrev_b32 v28, 16, v28
        v_or_b32 v28, v28, v29
        v_lshrrev_b32 v29, 16, v27
        v_lshlrev_b32 v30, 5, {V(vL)}
        v_add_u32 v30, {sT0}, v30
        """)
        a("ds_write_b64 v30, v[28:29]", "cx")

    def m_finish(self):
        a = self.a
        a(f"""
        v_accvgpr_read_b32 v27, {A(aM)}
        v_mul_f32 v27, 0xbb000000, v27
        v_cvt_pk_bf16_f32 v27, v27, v27
        v_accvgpr_write_b32 {A(aM)}, v27
        v_accvgpr_write_b32 {A(aM+1)}, v27
        v_accvgpr_write_b32 {A(aM+2)}, v27
        v_accvgpr_write_b32 {A(aM+3)}, v27
        """)

    def c_read(self, hf):
        a = self.a
        a(f"""
        v_and_b32 v27, 31, {V(vL)}
        v_lshrrev_b32 v28, 5, {V(vL)}
        v_lshlrev_b32 v27, 5, v27
        v_lshl_add_u32 v27, v28, 4, v27
        v_add_u32 v27, {CX + 2048*hf}, v27
        ds_read_b128 v[28:31], v27
        ds_read_b128 v[32:35], v27 offset:1024
        """)

    def c_apply(self, hf, fb):
        acc = V(ACC + 32 * hf + 16 * fb, 16)
        self.a(f"v_mfma_f32_32x32x16_bf16 {acc}, {V(28+4*fb,4)}, {A(aM,4)}, {acc}")

    def h_store(self, hf, fb, q01):
        a = self.a
        r = ACC + 32 * hf + 16 * fb + 8 * q01
        for i in range(4):
            a(f"v_cvt_pk_bf16_f32 {V(r+i)}, {V(r+2*i)}, {V(r+2*i+1)}")
        a(f"s_add_u32 {sT0}, {sHO}, {(hf*56 + (2*fb+q01)*14)*1024}")
        for i in range(4):
            a(f"v_pk_max_i16 {V(r+i)}, {V(r+i)}, 0")
        a(f"buffer_store_dwordx4 {V(r,4)}, {V(vL16)}, {SWS}, {sT0} offen sc1", f"hst{hf}")

    def h_flag(self, hf):
        a = self.a
        a(f"s_add_u32 {sT0}, {sFH}, {128*hf}")
        a.wait(f"hst{hf}")
        self.flag_store(sT0)

    def w2_init(self):
        self.a(f"""
        s_lshl_b32 {sW2O}, {sW}, 14
        s_lshl_b32 {sT0}, {sDT}, 7
        s_add_u32 {sW2O}, {sW2O}, {sT0}
        """)

    def ld_w2(self, idx):
        a = self.a
        a(f"buffer_load_dwordx4 {A(8*idx,4)}, {V(vV0)}, {SW2}, {sW2O} offen")
        a(f"buffer_load_dwordx4 {A(8*idx+4,4)}, {V(vV1)}, {SW2}, {sW2O} offen")
        if idx == 13:
            a(f"s_sub_u32 {sW2O}, {sW2O}, {13*131072 - 65536}")
        elif idx < 27:
            a(f"s_add_u32 {sW2O}, {sW2O}, 131072")

    HK = 64
    def ld_hk(self):
        a = self.a
        a(f"""
        s_lshr_b32 {sT0}, {sW}, 1
        s_lshl1_add_u32 {sT0}, s2, {sT0}
        s_lshl_b32 {sT0}, {sT0}, 12
        s_and_b32 {sT1}, {sW}, 1
        s_lshl_b32 {sT1}, {sT1}, 2
        s_sub_u32 {sT0}, {sT0}, {sT1}
        s_add_u32 {sT0}, {sT0}, 8
        """)
        nt = " nt" if self.o["nt_hk"] else ""
        for i in range(4):
            a(f"buffer_load_dwordx4 {V(self.HK+4*i,4)}, {V(vL16)}, {SHK}, {sT0} offen offset:{1024*i}{nt}")

    def p_head(self):
        a = self.a
        a(f"""
        s_lshr_b32 {sT0}, {sW}, 1
        s_lshl_b32 {sT0}, {sT0}, 4
        s_lshr_b32 {sT0}, {sD}, {sT0}
        s_lshl_b32 {sT0}, {sT0}, 16
        s_lshl_b32 {sT1}, {sH0}, 16
        v_mov_b32 v80, {sT0}
        v_add_f32 v80, {sT1}, v80
        v_cvt_pk_bf16_f32 v80, v80, v80
        s_mul_i32 {sT2}, {sW}, 8256
        v_mov_b32 v84, 0
        v_readfirstlane_b32 {sT0}, v80
        v_mov_b32 v85, 0
        v_mov_b32 v86, 0
        v_mov_b32 v87, 0
        s_and_b32 {sT0}, {sT0}, 0xffff
        s_and_b32 {sT1}, {sH0}, 0xffff0000
        s_or_b32 {sT0}, {sT0}, {sT1}            ; (h0 + D, h1)
        s_bitcmp1_b32 {sW}, 0
        s_cselect_b32 s57, {sT0}, {sH1}
        s_cselect_b32 {sT0}, 0, {sT0}
        s_lshl_b32 {sT1}, {sT0}, 16
        s_lshl_b32 {sT3}, s57, 16
        v_writelane_b32 v86, {sT0}, 1
        s_lshr_b32 {sT0}, {sT0}, 16
        v_writelane_b32 v87, s57, 1
        s_or_b32 {sT3}, {sT3}, {sT0}
        v_writelane_b32 v86, {sT1}, 3
        v_writelane_b32 v87, {sT3}, 3
        v_and_b32 v80, 1, {V(vL)}
        v_lshrrev_b32 v81, 1, {V(vL)}
        v_mul_u32_u24 v81, 4128, v81
        v_lshl_add_u32 v80, v80, 4, v81
        v_add_u32 v80, {sT2}, v80
        v_add_u32 v27, {sT2}, {V(vL16)}
        v_lshlrev_b32 v81, 2, v0
        s_mov_b64 exec, 15
        ds_write_b128 v80, v[84:87] offset:{PB}
        s_mov_b64 exec, -1
        """)
        a(f"ds_write_b32 v81, v84 offset:{KV}", "pw")

    def p_body(self, i):
        a = self.a
        r = self.HK + 4 * i
        a(f"""
        v_mov_b32 v80, s57
        ds_write_b128 v27, {V(r,4)} offset:{PB + 32 + 1024*i}
        v_readlane_b32 s57, {V(r+3)}, 63
        v_mov_b32_dpp v80, {V(r+3)} wave_shr:1 row_mask:0xf bank_mask:0xf
        v_alignbyte_b32 v85, {V(r+1)}, {V(r)}, 2
        v_alignbyte_b32 v86, {V(r+2)}, {V(r+1)}, 2
        v_alignbyte_b32 v87, {V(r+3)}, {V(r+2)}, 2
        v_alignbyte_b32 v84, {V(r)}, v80, 2
        """)
        a(f"ds_write_b128 v27, v[84:87] offset:{PB + 4128 + 32 + 1024*i}", "pw")

    def kv_poll_issue(self):
        a = self.a
        a(f"""
        v_and_b32 {V(vPO)}, 7, {V(vL)}
        v_lshlrev_b32 {V(vPO)}, 12, {V(vPO)}
        s_lshl_b32 s40, {sW}, 15
        s_lshr_b32 {sT0}, s2, 3
        s_lshl_b32 {sT0}, {sT0}, 7
        s_add_u32 s40, s40, {sT0}
        s_add_u32 s40, s40, {FL_KV}
        """)
        self.poll_issue("s40")

    def kv_fetch(self, name):
        a = self.a
        self.poll_check(name, "s40")
        a(f"""
        s_lshl_b32 {sT0}, s2, 13
        s_lshl_b32 {sT1}, {sW}, 11
        s_add_u32 m0, {sT1}, {KV + 1024}
        s_add_u32 {sT0}, {sT0}, {sT1}
        """)
        a(f"buffer_load_dwordx4 {V(vL16)}, {SWS}, {sT0} offen sc1 lds", "kv")
        a(f"buffer_load_dwordx4 {V(vL16)}, {SWS}, {sT0} offen offset:1024 sc1 lds", "kv")

    def conv_addr(self):
        a = self.a
        a(f"""
        v_lshrrev_b32 v27, 4, {V(vL)}          ; G
        v_bfe_u32 v28, {V(vL)}, 2, 2           ; r
        v_and_b32 v29, 3, {V(vL)}              ; c
        v_lshl_add_u32 v29, v27, 2, v29
        v_sub_u32 v29, v29, v28
        s_mul_i32 {sT0}, {sW}, 8256
        s_add_u32 {sT0}, {sT0}, {PB + 24}
        v_lshlrev_b32 v29, 3, v29
        v_add_u32 v12, {sT0}, v29
        v_and_b32 v28, 15, {V(vL)}
        v_sub_u32 v28, v28, v27                ; a - G
        """)
        for e in range(4):
            a(f"""
            v_add_u32 v29, {16 - 4*e}, v28
            v_lshrrev_b32 v30, 2, v29
            v_and_b32 v31, 3, v30
            v_xor_b32 v31, {sW}, v31
            v_lshlrev_b32 v30, 8, v30
            v_lshl_add_u32 v30, v31, 6, v30
            v_and_b32 v29, 3, v29
            v_lshl_add_u32 v30, v29, 4, v30
            v_add_u32 {V(13+e)}, {KV}, v30
            """)

    def conv_reads(self, e):
        base = XR + 64 * (e & 1)
        L = []
        order = []
        for n in range(8):
            order.append(("B", n))
            order.append(("A", n))
        for kind, n in order:
            if kind == "A":
                for ph in range(2):
                    L.append(f"ds_read_b64_tr_b16 {V(base+4*n+2*ph,2)}, v12 offset:{ph*4128 + 128*(4*n+e)}")
            else:
                L.append(f"ds_read_b128 {V(base+32+4*n,4)}, {V(13+e)} offset:{1024*n}")
        return L

    def conv(self, fill):
        a = self.a
        for op in self.conv_reads(0):
            a(op)
        k = 0
        for e in range(4):
            base = XR + 64 * (e & 1)
            nxt = self.conv_reads(e + 1) if e < 3 else []
            prs = sorted([(n, d) for n in range(8) for d in range(8) if n + d < 8], key=lambda p: (max(p), p[0] + p[1]))
            seen = set()
            for i, (n, d) in enumerate(prs):
                acc = A(aY + 4 * (n + d), 4)
                first = (e == 0 and (n + d) not in seen)
                seen.add(n + d)
                a(f"v_mfma_f32_16x16x32_bf16 {acc}, {V(base+4*n,4)}, {V(base+32+4*d,4)}, {'0' if first else acc}")
                if nxt and i >= 8:
                    a(nxt.pop(0))
                for f in fill.get(k, []):
                    f()
                k += 1
            for op in nxt:
                a(op)

    def y_out(self):
        a = self.a
        a(f"""
        v_lshrrev_b32 v27, 4, {V(vL)}
        v_and_b32 v28, 15, {V(vL)}
        v_mul_u32_u24 v27, 20, v27
        v_add_lshl_u32 v27, v27, v28, 4
        s_mul_i32 {sT0}, {sW}, 10240
        s_add_u32 {sT0}, {sT0}, {EX}
        v_add_u32 v27, {sT0}, v27
        v_and_b32 v28, 3, {V(vL)}
        v_lshrrev_b32 v29, 2, {V(vL)}
        v_mul_u32_u24 v28, 20, v28
        v_add_lshl_u32 v28, v28, v29, 4
        s_mul_i32 {sT0}, {sW}, 2560
        s_add_u32 {sT0}, {sT0}, {EX}
        v_add_u32 v28, {sT0}, v28
        """)
        for t in range(8):
            a(f"ds_write_b128 v27, {A(aY+4*t,4)} offset:{1280*t}", "ex")
        a.wait("ex")
        a("s_barrier")
        R = 64
        for t in range(2):
            for src in range(4):
                a(f"ds_read_b128 {V(R+16*t+4*src,4)}, v28 offset:{10240*src + 1280*t}")
        a(f"""
        s_lshl_b32 {sT0}, s2, 13
        s_lshl_b32 {sT1}, {sW}, 11
        s_add_u32 {sT0}, {sT0}, {sT1}
        s_add_u32 {sT0}, {sT0}, {YWS}
        """)
        for t in range(2):
            b = R + 16 * t
            for h in range(2):
                a(f"v_pk_add_f32 {V(b+2*h,2)}, {V(b+2*h,2)}, {V(b+4+2*h,2)}")
                a(f"v_pk_add_f32 {V(b+8+2*h,2)}, {V(b+8+2*h,2)}, {V(b+12+2*h,2)}")
            for i in range(4):
                a(f"v_cvt_pk_bf16_f32 {V(b+4+i)}, {V(b+i)}, {V(b+8+i)}")
            a(f"buffer_store_dwordx4 {V(b+4,4)}, {V(vL16)}, {SWS}, {sT0} offen offset:{1024*t} sc1", "yst")

    def y_flag(self):
        a = self.a
        a(f"""
        s_lshl2_add_u32 {sT0}, s2, {sW}
        s_lshl_b32 {sT0}, {sT0}, 7
        s_add_u32 {sT0}, {sT0}, {FL_Y}
        """)
        a.wait("yst")
        self.flag_store(sT0)

    def h_poll_addr(self):
        a = self.a
        a(f"""
        v_and_b32 v27, 1, {V(vL)}
        v_lshrrev_b32 v28, 1, {V(vL)}
        v_min_u32 v28, 13, v28
        v_mul_u32_u24 v27, 14, v27
        v_add_lshl_u32 {V(vPO)}, v27, v28, 8
        s_mul_i32 s40, {sST}, {28*256}
        s_add_u32 s40, s40, {FL_H}
        s_mul_i32 {sHL}, {sST}, 224
        s_mul_i32 {sT0}, {sW}, 14
        s_add_u32 {sHL}, {sHL}, {sT0}
        s_lshl_b32 {sHL}, {sHL}, 10
        s_add_u32 {sHL}, {sHL}, {HWS}
        v_add_u32 v17, {112*1024}, {V(vL16)}
        """)

    def hslot(self, k, sb):
        return XR + 4 * ((2 * k + sb) % 32)

    def ld_h(self, k):
        a = self.a
        hf, T = divmod(k, 14)
        if T % 4 == 0:
            a(f"s_add_u32 s41, {sHL}, {(hf*56 + T)*1024}")
        for sb in range(2):
            a(f"buffer_load_dwordx4 {V(self.hslot(k,sb),4)}, {V(17 if sb else vL16)}, {SWS}, s41 offen offset:{1024*(T%4)} sc1")

    def b2_addr(self):
        a = self.a
        a(f"""
        v_add_u32 v12, {sXBW}, {V(vL16)}
        v_lshrrev_b32 v27, 5, {V(vL)}
        v_bfe_u32 v28, {V(vL)}, 2, 2
        v_lshl_add_u32 v27, v27, 2, v28
        v_lshlrev_b32 v27, 7, v27
        v_bfe_u32 v28, {V(vL)}, 3, 1
        v_lshl_add_u32 v27, v28, 6, v27
        v_bfe_u32 v28, {V(vL)}, 4, 1
        v_lshl_add_u32 v27, v28, 5, v27
        v_and_b32 v28, 3, {V(vL)}
        v_lshl_add_u32 v27, v28, 3, v27
        v_add_u32 v13, {sXBW}, v27
        v_xor_b32 v14, 64, v13
        """)

    def w2_frag(self, k):
        a = self.a
        r = RING + 8 * (k % 3)
        a(f"ds_write_b128 v12, {A(8*k,4)}")
        a(f"ds_write_b128 v12, {A(8*k+4,4)} offset:1024")
        for nb in range(2):
            for jj in range(2):
                a(f"ds_read_b64_tr_b16 {V(r+4*nb+2*jj,2)}, {V(13+nb)} offset:{1024*jj}")

    def b2(self, fill):
        a = self.a
        self.w2_frag(0)
        for k in range(28):
            r = RING + 8 * (k % 3)
            for q in range(4):
                sb, nb = q >> 1, q & 1
                acc = V(ACC + 16 * q, 16)
                a(f"v_mfma_f32_32x32x16_bf16 {acc}, {V(r+4*nb,4)}, {V(self.hslot(k,sb),4)}, {'0' if k == 0 else acc}")
                if q == 0 and k < 27:
                    self.w2_frag(k + 1)
                for f in fill.get((k, q), []):
                    f()

    EXR, EYR, ESR = 224, 232, 240
    def y_poll_issue(self):
        a = self.a
        a(f"""
        v_and_b32 {V(vPO)}, 31, {V(vL)}
        v_lshlrev_b32 {V(vPO)}, 9, {V(vPO)}
        s_lshl_b32 s40, {sDT}, 14
        s_lshr_b32 {sT0}, {sST}, 3
        s_lshl_b32 {sT0}, {sT0}, 7
        s_add_u32 s40, s40, {sT0}
        s_add_u32 s40, s40, {FL_Y}
        """)
        self.poll_issue("s40")

    def ep_loads(self):
        a = self.a
        a(f"""
        v_lshrrev_b32 v27, 3, {V(vL)}
        v_lshlrev_b32 v18, 4, v27
        s_lshl_b32 {sT0}, {sST}, 10
        s_lshl_b32 {sT1}, {sW}, 8
        s_add_u32 {sT0}, {sT0}, {sT1}
        s_add_u32 s57, {sT0}, {STAT}
        s_add_u32 {sT1}, {sEO}, 8192
        """)
        a(f"buffer_load_dwordx4 {V(self.ESR,4)}, v18, {SWS}, s57 offen sc1")
        a(f"buffer_load_dwordx4 {V(self.ESR+4,4)}, v18, {SWS}, s57 offen offset:128 sc1")
        a(f"buffer_load_dwordx4 {V(self.EXR,4)}, {V(vXO)}, {SX}, {sEO} offen")
        a(f"buffer_load_dwordx4 {V(self.EXR+4,4)}, {V(vXO)}, {SX}, {sT1} offen")

    def y_fetch(self):
        a = self.a
        a(f"""
        v_lshrrev_b32 v27, 3, {V(vL)}
        v_and_b32 v28, 7, {V(vL)}
        v_lshrrev_b32 v29, 4, {V(vL)}
        v_xor_b32 v29, v28, v29                ; idx
        v_lshrrev_b32 v30, 2, v29
        v_lshl_add_u32 v30, v27, 1, v30
        v_and_b32 v29, 3, v29
        v_lshlrev_b32 v29, 4, v29
        v_lshl_add_u32 v30, v30, 13, v29
        v_xor_b32 v31, 0x2000, v30
        v_add_u32 v31, {16*8192 - 1024}, v31
        s_lshl_b32 {sT0}, {sDT}, 18
        s_lshl_b32 {sT1}, {sST}, 8
        s_lshl_b32 {sT2}, {sW}, 6
        s_add_u32 {sT0}, {sT0}, {sT1}
        s_add_u32 {sT0}, {sT0}, {sT2}
        s_add_u32 {sT0}, {sT0}, {YWS}
        s_add_u32 m0, {sXBW}, 2048
        """)
        self.poll_check("y", "s40")
        a(f"buffer_load_dwordx4 v30, {SWS}, {sT0} offen sc1 lds", "y")
        a(f"buffer_load_dwordx4 v31, {SWS}, {sT0} offen offset:1024 sc1 lds", "y")

    def y_read(self):
        a = self.a
        a(f"""
        v_lshrrev_b32 v27, 5, {V(vL)}
        v_and_b32 v28, 7, {V(vL)}
        v_xor_b32 v27, v27, v28
        v_lshlrev_b32 v27, 4, v27
        v_lshl_add_u32 v27, v28, 8, v27
        v_bfe_u32 v28, {V(vL)}, 3, 2
        v_lshl_add_u32 v27, v28, 2, v27
        v_add_u32 v27, {sXBW}, v27
        v_xor_b32 v28, 64, v27
        v_xor_b32 v29, 32, v27
        v_xor_b32 v30, 0x60, v27
        """)
        a.wait("y")
        for st in range(2):
            for e in range(4):
                a(f"ds_read_b32 {V(self.EYR+4*st+e)}, {V(27 + 2*st + (e & 1))} offset:{2048 + 128*(e >> 1)}")

    def stat_check(self):
        a = self.a
        S = self.ESR
        a(f"v_cmp_ne_u64 vcc, {sTAG}, {V(S+2,2)}")
        a(f"v_cmp_ne_u64 s[60:61], {sTAG}, {V(S+6,2)}")
        a("s_or_b64 vcc, vcc, s[60:61]")
        a("s_cbranch_vccnz L_slow_st")
        a.label("L_back_st")
        self.slow.append(f"""L_slow_st:
    s_mov_b32 {sCNT}, 0
L_spin_st:
    buffer_load_dwordx4 {V(S,4)}, v18, {SWS}, s57 offen sc1
    buffer_load_dwordx4 {V(S+4,4)}, v18, {SWS}, s57 offen offset:128 sc1
    s_add_u32 {sCNT}, {sCNT}, 1
    s_cmp_gt_u32 {sCNT}, 20000
    s_waitcnt vmcnt(0)
    s_cbranch_scc1 L_back_st
    v_cmp_ne_u64 vcc, {sTAG}, {V(S+2,2)}
    v_cmp_ne_u64 s[60:61], {sTAG}, {V(S+6,2)}
    s_or_b64 vcc, vcc, s[60:61]
    s_cbranch_vccnz L_spin_st
    s_branch L_back_st
""")

    XF, TF = 128, 144
    def ep_pre(self, st, e):
        a = self.a
        x, y = self.EXR + 4 * st + e, self.EYR + 4 * st + e
        xf, tf = self.XF + 8 * st + 2 * e, self.TF + 8 * st + 2 * e
        m = V(self.ESR + 4 * st, 2)
        a(f"""
        v_lshlrev_b32 {V(xf)}, 16, {V(x)}
        v_and_b32 {V(xf+1)}, 0xffff0000, {V(x)}
        v_lshlrev_b32 v32, 16, {V(y)}
        v_and_b32 v33, 0xffff0000, {V(y)}
        v_pk_add_f32 {V(tf,2)}, {V(xf,2)}, {m} op_sel:[0,0] op_sel_hi:[1,0] neg_lo:[0,1] neg_hi:[0,1]
        v_pk_mul_f32 {V(tf,2)}, {V(tf,2)}, v[32:33]
        """)

    def ep_addr(self):
        a = self.a
        a(f"""
        v_and_b32 v27, 31, {V(vL)}
        v_mul_u32_u24 v27, 272, v27
        v_lshrrev_b32 v28, 5, {V(vL)}
        v_lshl_add_u32 v27, v28, 4, v27
        s_mul_i32 {sT0}, {sW}, 17408
        v_add_u32 v15, {sT0}, v27
        v_lshrrev_b32 v27, 3, {V(vL)}
        v_mul_u32_u24 v27, 272, v27
        v_and_b32 v28, 7, {V(vL)}
        v_lshl_add_u32 v27, v28, 5, v27
        s_mul_i32 {sT0}, {sW}, {16*272}
        v_add_u32 v16, {sT0}, v27
        """)

    def epilogue(self):
        a = self.a
        for q in range(4):
            sb, nb = q >> 1, q & 1
            for g in range(4):
                a(f"ds_write_b128 v15, {V(ACC+16*q+4*g,4)} offset:{RED + sb*8704 + nb*128 + g*32}", "red")
        a.wait("red")
        a("s_barrier")
        self.stamp("redbar")
        R = 160
        for st in range(2):
            for src in range(4):
                for hh in range(2):
                    a(f"ds_read_b128 {V(R+32*st+8*src+4*hh,4)}, v16 offset:{RED + src*17408 + st*2176 + hh*16}")
        a(f"s_add_u32 {sT1}, {sEO}, 8192")
        for st in range(2):
            tf, xf = self.TF + 8 * st, self.XF + 8 * st
            for src in range(4):
                for p in range(4):
                    a(f"v_pk_add_f32 {V(tf+2*p,2)}, {V(tf+2*p,2)}, {V(R+32*st+8*src+2*p,2)}")
            rr = V(self.ESR + 4 * st, 2)
            for p in range(4):
                a(f"v_pk_fma_f32 {V(tf+2*p,2)}, {V(tf+2*p,2)}, {rr}, {V(xf+2*p,2)} op_sel:[0,1,0] op_sel_hi:[1,1,1]")
            for p in range(4):
                a(f"v_cvt_pk_bf16_f32 {V(xf+p)}, {V(tf+2*p)}, {V(tf+2*p+1)}")
            a(f"buffer_store_dwordx4 {V(xf,4)}, {V(vXO)}, {SO}, {sT1 if st else sEO} offen")

    def stats(self):
        a = self.a
        a("v_mov_b32 v27, 0x3f803f80")
        def red8(r):
            a(f"v_add_f32_dpp {V(r)}, {V(r)}, {V(r)} quad_perm:[1,0,3,2] row_mask:0xf bank_mask:0xf")
            a(f"v_add_f32_dpp {V(r)}, {V(r)}, {V(r)} quad_perm:[2,3,0,1] row_mask:0xf bank_mask:0xf")
            a(f"v_add_f32_dpp {V(r)}, {V(r)}, {V(r)} row_half_mirror row_mask:0xf bank_mask:0xf")
        for i in range(2):
            a(f"v_mov_b32 {V(64+8*i)}, 0")
            a(f"v_mov_b32 {V(65+8*i)}, 0")
        for c in range(8):
            for j in range(4):
                for i in range(2):
                    a(f"v_dot2c_f32_bf16 {V(64+8*i+(j&1))}, {V(XR+16*c+4*i+j)}, v27")
        for i in range(2):
            a(f"v_add_f32 {V(64+8*i)}, {V(64+8*i)}, {V(65+8*i)}")
        for i in range(2):
            red8(64 + 8 * i)
        for i in range(2):
            a(f"v_mul_f32 {V(64+8*i)}, 0x3b000000, {V(64+8*i)}")
            a(f"v_mov_b32 {V(66+8*i)}, 0")
            a(f"v_mov_b32 {V(67+8*i)}, 0")
        for c in range(8):
            for j in range(4):
                for i in range(2):
                    x = V(XR + 16 * c + 4 * i + j)
                    t = 68 + 8 * i
                    a(f"v_lshlrev_b32 {V(t)}, 16, {x}")
                    a(f"v_and_b32 {V(t+1)}, 0xffff0000, {x}")
                    a(f"v_pk_add_f32 {V(t,2)}, {V(t,2)}, {V(64+8*i,2)} op_sel:[0,0] op_sel_hi:[1,0] neg_lo:[0,1] neg_hi:[0,1]")
                    a(f"v_pk_fma_f32 {V(66+8*i,2)}, {V(t,2)}, {V(t,2)}, {V(66+8*i,2)}")
        for i in range(2):
            a(f"v_add_f32 {V(66+8*i)}, {V(66+8*i)}, {V(67+8*i)}")
        for i in range(2):
            red8(66 + 8 * i)
        a(f"""
        v_lshrrev_b32 v28, 3, {V(vL)}
        v_lshlrev_b32 v28, 4, v28
        s_lshr_b32 {sT0}, {sXO[0]}, 6
        s_add_u32 {sT0}, {sT0}, {STAT}
        """)
        for i in range(2):
            m, v = 64 + 8 * i, 66 + 8 * i
            a(f"""
            v_mul_f32 {V(v)}, 0x3b000000, {V(v)}
            v_cvt_pk_bf16_f32 {V(v)}, {V(v)}, {V(m)}
            v_and_b32 {V(m)}, 0xffff0000, {V(v)}
            v_lshlrev_b32 {V(v)}, 16, {V(v)}
            v_add_f32 {V(v)}, 0x3727c5ac, {V(v)}
            v_cvt_pk_bf16_f32 {V(v)}, {V(v)}, {V(v)}
            v_lshlrev_b32 {V(v)}, 16, {V(v)}
            v_sqrt_f32 {V(v)}, {V(v)}
            v_cvt_pk_bf16_f32 {V(v)}, {V(v)}, {V(v)}
            v_lshlrev_b32 {V(v)}, 16, {V(v)}
            v_rcp_f32 {V(m+1)}, {V(v)}
            v_mov_b32 {V(m+2)}, {V(vTAG)}
            v_mov_b32 {V(m+3)}, {V(vTAG+1)}
            """)
        a("s_mov_b32 exec_lo, 0x01010101")
        a("s_mov_b32 exec_hi, 0x01010101")
        for i in range(2):
            a(f"buffer_store_dwordx4 {V(64+8*i,4)}, v28, {SWS}, {sT0} offen offset:{128*i} sc1")
        a("s_mov_b64 exec, -1")

    def gen_update(self):
        a = self.a
        a(f"s_cmp_lg_u32 s2, {28*8}")
        a("s_cbranch_scc1 L_nogen")
        a.wait_all()
        a.raw(f"""    v_lshlrev_b32 v28, 7, v0
    s_mov_b32 {sT1}, {FL_KV}
L_gen_next:
    s_mov_b32 {sCNT}, 0
L_gen_spin:
    buffer_load_dwordx2 v[30:31], v28, {SWS}, {sT1} offen sc1
    s_add_u32 {sCNT}, {sCNT}, 1
    s_cmp_gt_u32 {sCNT}, 20000
    s_waitcnt vmcnt(0)
    s_cbranch_scc1 L_gen_got
    v_cmp_ne_u64 vcc, {sTAG}, v[30:31]
    s_cbranch_vccnz L_gen_spin
L_gen_got:
    s_add_u32 {sT1}, {sT1}, 0x8000
    s_cmp_lt_u32 {sT1}, {FL_KV + 0x20000}
    s_cbranch_scc1 L_gen_next
    s_barrier
    s_cmp_lg_u32 {sW}, 0
    s_cbranch_scc1 L_nogen
    s_mov_b32 {sT1}, {GEN}
    s_mov_b64 exec, 1
    buffer_store_dwordx2 {V(vTAG,2)}, off, {SWS}, {sT1} sc1
    s_mov_b64 exec, -1
    s_waitcnt vmcnt(0)
L_nogen:""")

    def build(self):
        a = self.a
        self.prologue()
        L = self.b1_load_list()
        NPRE, NA1 = 15, 10
        for _ in range(NPRE):
            L.pop(0)()
        self.addr_b1()
        self.a1([L.pop(0) for _ in range(NA1)])
        self.stamp("a1done")
        a(f"s_cmp_ge_u32 {sJ}, 28")
        a("s_cbranch_scc1 L_spare")
        st_spare = a.state()
        nL = len(L)
        self.x_write(0)
        self.x_read(0)
        a.wait("w0")
        a("s_barrier")
        for fb in range(2):
            self.w_frag(0, 0, fb, 0)
        fill = {}
        def put(d, key, f):
            d.setdefault(key, []).append(f)
        slots = [(c, p) for c in range(8) for p in (0, 1, 4, 5, 7)]
        for i, f in enumerate(L):
            put(fill, slots[i], f)
        put(fill, (5, 0), self.kv_flag)
        self.b1_pass(0, fill)
        self.stamp("pass1")
        fill = {}
        put(fill, (0, 1), lambda: self.c_publish(0))
        put(fill, (0, 2), self.m_finish)
        put(fill, (0, 3), self.w2_init)
        put(fill, (0, 5), lambda: a.wait("cx"))
        put(fill, (0, 7), lambda: self.c_read(0))
        put(fill, (1, 0), lambda: self.c_apply(0, 0))
        put(fill, (1, 1), lambda: self.c_apply(0, 1))
        for q in range(4):
            put(fill, (1, 3 + q), lambda q=q: self.h_store(0, q >> 1, q & 1))
        put(fill, (2, 0), self.ld_hk)
        put(fill, (2, 1), self.kv_poll_issue)
        put(fill, (2, 2), self.p_head)
        w2 = list(range(28))
        for c in range(2, 8):
            for p in (3, 5):
                put(fill, (c, p), lambda k=w2.pop(0): self.ld_w2(k))
        put(fill, (4, 0), lambda: self.h_flag(0))
        for i in range(4):
            put(fill, (4, 1 + i), lambda i=i: self.p_body(i))
        put(fill, (5, 0), lambda: self.kv_fetch("kv"))
        self.b1_pass(1, fill)
        self.stamp("pass2")
        self.c_publish(1)
        self.conv_addr()
        a.wait("cx", "kv", "pw")
        a("s_barrier")
        self.c_read(1)
        self.c_apply(1, 0)
        self.c_apply(1, 1)
        for q in range(4):
            self.h_store(1, q >> 1, q & 1)
        w2_left = list(w2)
        a("s_branch L_conv")
        st_join = a.state()
        a.restore(st_spare)
        a.label("L_spare")
        for f in self.b1_load_list()[-nL:]:
            pass
        issued = NPRE + NA1
        for n in range(issued, 40):
            c, i = divmod(n, 5)
            if i < 2:
                self.ld_x(c, i)
        self.ld_hk()
        self.kv_flag()
        a("s_barrier")
        self.w2_init()
        self.p_head()
        for i in range(4):
            self.p_body(i)
        for k in range(28 - len(w2_left)):
            self.ld_w2(k)
        self.stats()
        self.kv_poll_issue()
        self.kv_fetch("kv2")
        self.conv_addr()
        self.gen_update()
        a.wait_all()
        a("s_barrier")
        a.restore(st_join)
        a.label("L_conv")
        self.stamp("convstart")
        fill = {}
        for i, k in enumerate(w2_left):
            put(fill, 4 + 8 * i, lambda k=k: self.ld_w2(k))
        put(fill, 60, self.h_flag1)
        put(fill, 100, self.h_poll_addr)
        put(fill, 101, lambda: self.poll_issue("s40", 0))
        self.conv(fill)
        self.stamp("convend")
        self.y_out()
        self.b2_addr()
        self.poll_check("h0", "s40", 0)
        self.stamp("h0")
        for k in range(14):
            self.ld_h(k)
        self.poll_issue("s40", 128)
        self.y_flag()
        fill = {}
        put(fill, (2, 1), lambda: self.poll_check("h1", "s40", 128))
        put(fill, (2, 2), lambda: self.ld_h(14))
        put(fill, (2, 3), lambda: self.ld_h(15))
        for k in range(16, 28):
            put(fill, (3, k - 16) if k < 19 else (k - 15, 1), lambda k=k: self.ld_h(k))
        put(fill, (14, 1), self.y_poll_issue)
        put(fill, (15, 2), self.ep_addr)
        put(fill, (16, 1), self.ep_loads)
        put(fill, (18, 1), self.y_fetch)
        put(fill, (22, 1), self.y_read)
        put(fill, (23, 1), self.stat_check)
        n = 0
        for st in range(2):
            for e in range(4):
                put(fill, (24 + n // 2, 1 + 2 * (n & 1)), lambda st=st, e=e: self.ep_pre(st, e))
                n += 1
        self.b2(fill)
        self.stamp("b2end")
        self.epilogue()
        if self.o["diag"]:
            a.wait_all()
            self.stamp("end")
            a.wait_all()
            a(f"""
            s_lshl2_add_u32 {sT0}, s2, {sW}
            s_lshl_b32 {sT0}, {sT0}, 6
            s_add_u32 {sT0}, {sT0}, {STAMP}
            s_mov_b64 exec, 1
            """)
            for i in range(self.nst):
                a(f"v_mov_b32 v27, s{sSTAMP+2*i}")
                a(f"buffer_store_dword v27, off, {SWS}, {sT0} offset:{4*i}")
        a.label("L_end")
        a("s_endpgm")
        for s in self.slow:
            a.raw(s)
        a.label("L_codeend")
        return self.wrap(a.text())

    def h_flag1(self):
        a = self.a
        a(f"s_add_u32 {sT0}, {sFH}, 128")
        a(f"s_cmp_lt_u32 {sJ}, 28")
        a(f"s_cselect_b32 {sT0}, {sT0}, {WS_SIZE}")
        a.wait("hst1")
        self.flag_store(sT0)

    def wrap(self, body):
        return f"""; Fused kernel: out = x + LN(x) * (longconv(shiftconv(k) * v) + D * kv) + relu(LN(x) @ w1) @ w2
; @launch grid=(256,1,1) block=(256,1,1) lds={LDS_SIZE}
.amdgcn_target "amdgcn-amd-amdhsa--gfx950"
.text
.globl {KN}
.p2align 8
.type {KN},@function
{KN}:
{body}
.section .rodata,"a"
.p2align 6
.amdhsa_kernel {KN}
  .amdhsa_next_free_vgpr 512
  .amdhsa_next_free_sgpr 102
  .amdhsa_accum_offset 256
  .amdhsa_group_segment_fixed_size 0
  .amdhsa_kernarg_size 96
  .amdhsa_user_sgpr_count 2
  .amdhsa_user_sgpr_kernarg_segment_ptr 1
  .amdhsa_system_sgpr_workgroup_id_x 1
  .amdhsa_float_denorm_mode_32 3
.end_amdhsa_kernel
"""


if __name__ == "__main__":
    opts = {}
    out = None
    for arg in sys.argv[1:]:
        if "=" in arg:
            k, v = arg.split("=")
            opts[k] = eval(v)
        else:
            out = arg
    g = Gen(**opts)
    txt = g.build()
    if out:
        open(out, "w").write(txt)
        if g.names:
            open(out + ".names", "w").write(" ".join(g.names))
    print("nops inserted:", g.a.nops, "lines:", txt.count("\n"), file=sys.stderr)
```

```python
import sys, os
sys.path.insert(0, os.path.dirname(os.path.abspath(__file__)))
from emit import Asm

KN = "parallel_sum__ssm_conv_h3__dense_activation_relu__prompt_kernel"

KVT = 0x000000
YWS = 0x200000
HWS = 0x400000
FL_KV = 0xC00000
FL_Y = 0xC20000
FL_H = 0xC40000
STAT = 0xC80000
GEN = 0xC90000
STAMP = 0xD00000
WS_SIZE = 0x1000000

XB = 131072
CX = 147456
KT = 131072 - 17408
VT = KT + 9216
PB = 0
KV = 33280
EX = 90112
RED = 0
LDS_SIZE = 163840

SX, SK, SV, SSH, SHK, SW1, SW2, SO, SWS = [f"s[{4*i}:{4*i+3}]" for i in range(1, 10)]
sTAG = "s[42:43]"
sW, sXCD, sJ = "s44", "s45", "s46"
sST, sDT = "s47", "s48"
sXO = ["s49", "s50", "s51", "s52"]
sW1O, sM0 = "s53", "s54"
sHO = "s55"
sD, sH0, sH1 = "s56", "s58", "s59"
sT0, sT1, sT2, sT3 = "s60", "s61", "s62", "s63"
sW2O = "s64"
sXBW = "s65"
sFH = "s66"
sCNT = "s67"
sHL = "s68"
sFT = "s69"
sEO = "s70"
sSTAMP = 72

def V(i, n=1):
    return f"v{i}" if n == 1 else f"v[{i}:{i+n-1}]"
def A(i, n=1):
    return f"a{i}" if n == 1 else f"a[{i}:{i+n-1}]"

vL, vL16, vXO, vW0, vW1 = 1, 2, 3, 4, 5
vXW0, vXW1 = 6, 7
vXR = [8, 9, 10, 11]
vA = [[12, 13], [14, 15], [16, 17], [18, 19]]
vV0, vV1 = 20, 21
vTAG = 22
vP = 24
vPO = 26
vT = 27
RING = 40
ACC = 64
XR = 128
aSEL, aM, aC = 224, 228, 232
aY = 224


class Gen:
    def __init__(self, **o):
        self.o = dict(diag=False, codepf=True, nt_kv=False, nt_hk=False)
        self.o.update(o)
        self.a = Asm()
        self.slow = []
        self.nst = 0
        self.names = []

    def stamp(self, name):
        if not self.o["diag"]:
            return
        grp = name.split(".")[0] if "." in name else "main"
        if name != "start" and grp not in self.o["diag"]:
            return
        r = sSTAMP + 2 * self.nst
        assert r + 1 < 102
        self.a(f"s_memrealtime s[{r}:{r+1}]")
        self.names.append(name)
        self.nst += 1

    def flag_store(self, soff):
        a = self.a
        a("s_mov_b64 exec, 1")
        a(f"buffer_store_dwordx2 {V(vTAG,2)}, off, {SWS}, {soff} sc1")
        a("s_mov_b64 exec, -1")

    def poll_issue(self, soff, imm=0):
        self.a(f"buffer_load_dwordx2 {V(vP,2)}, {V(vPO)}, {SWS}, {soff} offen offset:{imm} sc1")

    def poll_check(self, name, soff, imm=0):
        a = self.a
        a(f"v_cmp_ne_u64 vcc, {sTAG}, {V(vP,2)}")
        a(f"s_cbranch_vccnz L_slow_{name}")
        a.label(f"L_back_{name}")
        self.slow.append(f"""L_slow_{name}:
    s_mov_b32 {sCNT}, 0
L_spin_{name}:
    buffer_load_dwordx2 {V(vP,2)}, {V(vPO)}, {SWS}, {soff} offen offset:{imm} sc1
    s_add_u32 {sCNT}, {sCNT}, 1
    s_cmp_gt_u32 {sCNT}, 20000
    s_waitcnt vmcnt(0)
    s_cbranch_scc1 L_back_{name}
    v_cmp_ne_u64 vcc, {sTAG}, {V(vP,2)}
    s_cbranch_vccnz L_spin_{name}
    s_branch L_back_{name}
""")

    def prologue(self):
        a = self.a
        a(f"""
        s_cmp_ge_u32 s2, 0x100
        s_cbranch_scc1 L_end
        s_load_dwordx2 s[8:9], s[0:1], 8
        s_load_dwordx2 s[12:13], s[0:1], 16
        s_load_dwordx2 s[16:17], s[0:1], 24
        s_load_dwordx2 s[4:5], s[0:1], 0
        s_load_dwordx2 s[24:25], s[0:1], 56
        s_load_dwordx2 s[36:37], s[0:1], 88
        s_load_dwordx2 s[20:21], s[0:1], 32
        s_load_dwordx2 s[40:41], s[0:1], 40
        s_load_dwordx2 s[28:29], s[0:1], 64
        s_load_dwordx2 s[32:33], s[0:1], 72
        """)
        self.stamp("start")
        a(f"""
        v_lshrrev_b32 v27, 6, v0
        v_and_b32 {V(vL)}, 63, v0
        s_and_b32 {sXCD}, s2, 7
        v_readfirstlane_b32 {sW}, v27
        s_lshr_b32 {sJ}, s2, 3
        """)
        if self.o["codepf"]:
            a(f"""
            s_getpc_b64 s[60:61]
            L_pc:
            v_lshlrev_b32 v28, 7, v0
            v_min_u32 v28, L_codeend-L_pc-4, v28
            v_mov_b32 v29, s61
            v_add_co_u32 v28, vcc, s60, v28
            v_addc_co_u32 v29, vcc, 0, v29, vcc
            global_load_dword v39, v[28:29], off
            """)
        a(f"""
        s_mov_b32 s6, 0x200000
        s_mov_b32 s7, 0x20000
        s_mov_b64 s[10:11], s[6:7]
        s_mov_b64 s[14:15], s[6:7]
        s_mov_b64 s[22:23], s[6:7]
        s_mov_b64 s[34:35], s[6:7]
        s_mov_b32 s18, 0x1000
        s_mov_b32 s19, s7
        s_mov_b32 s30, 0x1c0000
        s_mov_b32 s31, s7
        s_mov_b32 s27, s7
        s_mov_b32 s38, {WS_SIZE}
        s_mov_b32 s39, s7
        s_cmp_lt_u32 {sJ}, 28
        s_cselect_b32 s26, s30, 0
        s_lshr_b32 {sT0}, {sJ}, 3
        s_lshl2_add_u32 {sST}, {sXCD}, {sT0}
        s_and_b32 {sDT}, {sJ}, 7
        v_lshlrev_b32 {V(vL16)}, 4, {V(vL)}
        v_lshrrev_b32 v27, 3, {V(vL)}          ; l>>3
        v_and_b32 v28, 7, {V(vL)}              ; l&7
        v_lshrrev_b32 v29, 4, {V(vL)}          ; l>>4
        v_lshrrev_b32 v30, 5, {V(vL)}          ; l>>5
        v_lshlrev_b32 v31, 10, v27             ; (l>>3)*1024
        v_lshl_or_b32 {V(vXO)}, v28, 4, v31
        v_lshlrev_b32 v32, 5, v30
        v_xor_b32 v32, {V(vXO)}, v32
        v_xor_b32 v33, 64, v32
        v_add_u32 v33, 7168, v33
        s_lshl_b32 {sT0}, {sST}, 16
        s_lshl_b32 {sT1}, {sW}, 14
        s_lshl_b32 {sT2}, {sDT}, 7
        s_add_u32 {sT0}, {sT0}, {sT2}
        s_add_u32 {sEO}, {sT0}, {sT1}
        s_lshl_b32 {sT1}, {sW}, 10
        s_add_u32 {sT0}, {sT0}, {sT1}
        s_sub_u32 {sT0}, {sT0}, 4096
        v_xor_b32 v34, 6, v28
        v_lshlrev_b32 v34, 4, v34
        v_add_u32 v34, {sT0}, v34
        s_lshl_b32 {sT1}, {sW}, 11
        s_add_u32 m0, {sT1}, {KT + 1024}
        s_lshl_b32 {sT2}, {sW}, 7
        s_lshl_b32 {sT3}, {sDT}, 9
        s_add_u32 {sT3}, {sT3}, {sT2}
        v_and_b32 v35, 15, {V(vL)}             ; l&15
        v_lshlrev_b32 v36, 3, v35
        """)
        nt = " nt" if self.o["nt_kv"] else ""
        a(f"buffer_load_dwordx4 v32, {SK}, {sEO} offen{nt} lds", "a1")
        a(f"buffer_load_dwordx4 v33, {SK}, {sEO} offen offset:1024{nt} lds", "a1")
        a(f"s_add_u32 m0, {sT1}, {VT}")
        a(f"buffer_load_dwordx2 {V(RING,2)}, v36, {SSH}, {sT3} offen", "a1")
        a(f"buffer_load_dwordx4 v32, {SV}, {sEO} offen{nt} lds", "a1")
        a(f"buffer_load_dwordx4 v33, {SV}, {sEO} offen offset:1024{nt} lds", "a1")
        a(f"s_add_u32 m0, {sT2}, {KT + 512}")
        a("s_mov_b64 exec, 0xff")
        a(f"buffer_load_dwordx4 v34, {SK}, 0 offen lds", "a1")
        a("s_mov_b64 exec, -1")
        a(f"""
        s_lshr_b32 {sT0}, {sW}, 1
        s_lshl1_add_u32 {sT0}, s2, {sT0}
        s_lshl_b32 {sT0}, {sT0}, 12
        s_lshl_b32 {sT1}, s2, 2
        s_mov_b32 {sT2}, {GEN}
        s_load_dwordx2 s[58:59], s[20:21], {sT0}
        s_load_dword {sD}, s[40:41], {sT1}
        s_load_dwordx2 {sTAG}, s[36:37], {sT2}
        """)
        a(f"""
        s_lshr_b32 {sT0}, {sXCD}, 1
        s_and_b32 {sT1}, {sJ}, 3
        s_lshl2_add_u32 {sT0}, {sT0}, {sT1}         ; rb
        s_lshl2_add_u32 {sT0}, {sT0}, {sW}
        s_and_b32 {sT2}, {sXCD}, 1
        s_mul_i32 {sT2}, {sT2}, 7
        s_lshr_b32 {sT3}, {sJ}, 2
        s_add_u32 {sFT}, {sT2}, {sT3}               ; ft
        s_mul_i32 {sFH}, {sT0}, 14
        s_add_u32 {sFH}, {sFH}, {sFT}
        s_lshl_b32 {sFH}, {sFH}, 8
        s_add_u32 {sFH}, {sFH}, {FL_H}
        s_mul_i32 {sHO}, {sT0}, 112
        s_add_u32 {sHO}, {sHO}, {sFT}
        s_lshl_b32 {sHO}, {sHO}, 10
        s_add_u32 {sHO}, {sHO}, {HWS}
        s_lshl_b32 {sT0}, {sT0}, 15
        s_lshl2_add_u32 {sT1}, {sXCD}, {sT1}
        s_lshl2_add_u32 {sT1}, {sT1}, {sW}
        s_lshl_b32 {sT1}, {sT1}, 14
        s_cmp_lt_u32 {sJ}, 28
        s_cselect_b32 {sXO[0]}, {sT0}, {sT1}
        s_cselect_b32 {sT2}, 0, 0x400000
        s_add_u32 {sXO[1]}, {sXO[0]}, 8192
        s_add_u32 {sXO[2]}, {sXO[1]}, 8192
        s_add_u32 {sXO[2]}, {sXO[2]}, {sT2}
        s_add_u32 {sXO[3]}, {sXO[2]}, 8192
        s_mul_i32 {sW1O}, {sW}, {16*3584}
        s_lshl_b32 {sT0}, {sFT}, 8
        s_add_u32 {sW1O}, {sW1O}, {sT0}
        s_lshl_b32 {sM0}, {sW}, 11
        v_and_b32 v37, 1, v29
        v_lshlrev_b32 v37, 6, v37
        v_xor_b32 {V(vV0)}, {V(vXO)}, v37
        v_add_u32 {V(vV1)}, 8192, {V(vV0)}
        v_mul_u32_u24 v38, 2560, v27
        v_add_u32 {V(vW0)}, {V(vV0)}, v38
        v_add_u32 {V(vW1)}, {8*3584-1024}, {V(vW0)}
        """)

    def ld_x(self, c, i):
        self.a(f"buffer_load_dwordx4 {V(XR+16*c+4*i,4)}, {V(vXO)}, {SX}, {sXO[i]} offen offset:{128*c}", f"x{c}")

    def ld_w1(self, n):
        a = self.a
        a(f"s_mov_b32 m0, {sM0}")
        a(f"s_add_u32 {sM0}, {sM0}, 8192")
        a(f"buffer_load_dwordx4 {V(vW0)}, {SW1}, {sW1O} offen lds", f"w{n}")
        a(f"buffer_load_dwordx4 {V(vW1)}, {SW1}, {sW1O} offen offset:1024 lds", f"w{n}")
        if n == 7:
            a(f"s_sub_u32 {sW1O}, {sW1O}, {7*64*3584 - 128}")
        elif n < 15:
            a(f"s_add_u32 {sW1O}, {sW1O}, {64*3584}")

    def b1_load_list(self):
        L = []
        for c in range(8):
            for i in range(4):
                L.append(lambda c=c, i=i: self.ld_x(c, i))
            L.append(lambda c=c: self.ld_w1(c))
        for c in range(8):
            L.append(lambda c=c: self.ld_w1(8 + c))
        return L

    def addr_b1(self):
        a = self.a
        a(f"""
        s_lshl_b32 {sXBW}, {sW}, 12
        s_add_u32 {sXBW}, {sXBW}, {XB}
        v_lshrrev_b32 v27, 3, {V(vL)}
        v_and_b32 v28, 7, {V(vL)}
        v_lshrrev_b32 v29, 4, {V(vL)}
        v_lshrrev_b32 v30, 5, {V(vL)}
        v_xor_b32 v31, v28, v29
        v_lshlrev_b32 v31, 4, v31
        v_lshl_add_u32 v31, v27, 7, v31
        v_add_u32 {V(vXW0)}, {sXBW}, v31
        v_xor_b32 {V(vXW1)}, 64, {V(vXW0)}
        v_bfe_u32 v31, {V(vL)}, 1, 3
        v_xor_b32 v31, v31, v30
        v_lshlrev_b32 v31, 4, v31
        v_and_b32 v32, 31, {V(vL)}
        v_lshl_add_u32 v31, v32, 7, v31
        v_add_u32 v31, {sXBW}, v31
        v_bfe_u32 v32, {V(vL)}, 2, 2          ; r
        v_and_b32 v33, 3, {V(vL)}             ; c
        v_lshl_add_u32 v34, v30, 3, v32       ; 8*half + r
        v_lshlrev_b32 v34, 7, v34
        v_bfe_u32 v35, {V(vL)}, 3, 1          ; (r>>1)&1
        v_lshl_add_u32 v34, v35, 6, v34
        v_and_b32 v35, 1, v29
        v_lshl_add_u32 v34, v35, 5, v34
        v_lshl_add_u32 v34, v33, 3, v34
        """)
        for tt in range(4):
            a(f"""
            s_add_u32 {sT0}, {sW}, {tt}
            s_and_b32 {sT0}, {sT0}, 3
            s_lshl_b32 {sT1}, {sT0}, 5
            s_lshl_b32 {sT0}, {sT0}, 11
            v_xor_b32 {V(vXR[tt])}, {sT1}, v31
            v_add_u32 {V(vA[tt][0])}, {sT0}, v34
            v_xor_b32 {V(vA[tt][1])}, 64, {V(vA[tt][0])}
            """)
        a(f"""
        v_lshrrev_b32 v31, 2, {V(vL)}
        v_xor_b32 v31, v31, v29
        v_and_b32 v31, 1, v31
        v_add_u32 v31, -1, v31
        v_and_b32 v31, 0x3f803f80, v31
        v_accvgpr_write_b32 {A(aSEL)}, v31
        v_accvgpr_write_b32 {A(aSEL+1)}, v31
        v_accvgpr_write_b32 {A(aSEL+2)}, v31
        v_accvgpr_write_b32 {A(aSEL+3)}, v31
        """)

    def a1(self, fill):
        a = self.a
        a(f"""
        v_lshrrev_b32 v27, 4, {V(vL)}         ; G
        v_bfe_u32 v28, {V(vL)}, 2, 2          ; r
        v_and_b32 v29, 3, {V(vL)}             ; c
        v_lshrrev_b32 v30, 2, {V(vL)}         ; 4G + r
        v_lshlrev_b32 v30, 9, v30
        v_lshl_add_u32 v30, v29, 3, v30
        v_xor_b32 v31, {sW}, v28
        v_lshl_add_u32 v31, v31, 5, v30
        v_add_u32 v31, {KT + 1024}, v31
        v_add_u32 v32, 3, v28
        v_and_b32 v32, 3, v32
        v_xor_b32 v32, {sW}, v32
        v_lshl_add_u32 v32, v32, 5, v30
        v_add_u32 v32, {KT + 512}, v32
        v_bfe_u32 v33, {V(vL)}, 1, 3          ; i>>1
        v_mul_u32_u24 v33, 272, v33
        v_lshl_add_u32 v33, v27, 4, v33
        v_add_u32 v33, {sXBW}, v33
        v_and_b32 v34, 1, {V(vL)}
        v_lshlrev_b32 v34, 1, v34
        s_and_b32 {sT0}, {sST}, 3
        v_xor_b32 v34, {sT0}, v34
        v_xor_b32 v35, 1, v34
        v_lshl_add_u32 v34, v34, 6, v33
        v_lshl_add_u32 v35, v35, 6, v33
        v_and_b32 v36, 15, {V(vL)}
        v_lshlrev_b32 v36, 4, v36
        v_mul_u32_u24 v37, 272, v27
        v_add3_u32 v37, v37, v36, {sXBW}
        v_lshl_add_u32 v36, v27, 13, v36
        """)
        a.wait("a1")
        a("s_barrier")
        self.stamp("a1data")
        KR, VR, KF, VF, WF, U = 64, 78, 86, 114, 44, 48
        for s in range(-3, 4):
            base, imm = ("v31", s * 128) if s >= 0 else ("v32", (s + 4) * 128)
            a(f"ds_read_b64_tr_b16 {V(KR+2*(s+3),2)}, {base} offset:{imm}")
        for r in range(4):
            a(f"ds_read_b64_tr_b16 {V(VR+2*r,2)}, v31 offset:{VT-KT-1024+r*128}")
        ops = []
        ops += [f"v_lshlrev_b32 {V(WF)}, 16, {V(RING)}", f"v_and_b32 {V(WF+1)}, 0xffff0000, {V(RING)}",
                f"v_lshlrev_b32 {V(WF+2)}, 16, {V(RING+1)}", f"v_and_b32 {V(WF+3)}, 0xffff0000, {V(RING+1)}"]
        def unpack(dst, src):
            return [f"v_lshlrev_b32 {V(dst)}, 16, {V(src)}", f"v_and_b32 {V(dst+1)}, 0xffff0000, {V(src)}",
                    f"v_lshlrev_b32 {V(dst+2)}, 16, {V(src+1)}", f"v_and_b32 {V(dst+3)}, 0xffff0000, {V(src+1)}"]
        done = set()
        for rho in range(4):
            acc = 122
            for j in range(3, -1, -1):
                s = rho - j
                if s not in done:
                    ops += unpack(KF + 4 * (s + 3), KR + 2 * (s + 3))
                    done.add(s)
            vf = VF + 4 * (rho & 1)
            ops += unpack(vf, VR + 2 * rho)
            for j in range(3, -1, -1):
                s = rho - j
                wp = V(WF + (j & 2), 2)
                lo = j & 1
                for h in range(2):
                    k = V(KF + 4 * (s + 3) + 2 * h, 2)
                    d = V(acc + 2 * h, 2)
                    if j == 3:
                        ops.append(f"v_pk_mul_f32 {d}, {k}, {wp} op_sel:[0,{lo}] op_sel_hi:[1,{lo}]")
                    else:
                        ops.append(f"v_pk_fma_f32 {d}, {k}, {wp}, {d} op_sel:[0,{lo},0] op_sel_hi:[1,{lo},1]")
            for h in range(2):
                ops.append(f"v_pk_mul_f32 {V(acc+2*h,2)}, {V(acc+2*h,2)}, {V(vf+2*h,2)}")
            for h in range(2):
                ops.append(f"v_cvt_pk_bf16_f32 {V(U+2*rho+h)}, {V(acc+2*h)}, {V(acc+2*h+1)}")
            if rho & 1:
                ops.append(f"ds_write_b128 {'v34' if rho == 1 else 'v35'}, {V(U+4*(rho>>1),4)}")
        step = max(1, len(ops) // (len(fill) + 1))
        for n, op in enumerate(ops):
            a(op)
            if n % step == step - 1 and fill:
                fill.pop(0)()
        for f in fill:
            f()
        a(f"ds_read_b128 {V(U,4)}, v37")
        a(f"ds_read_b128 {V(U+4,4)}, v37 offset:1088")
        a(f"""
        s_lshl2_add_u32 {sT0}, {sDT}, {sW}
        s_lshl_b32 {sT1}, {sT0}, 16
        s_lshl_b32 {sT2}, {sST}, 8
        s_add_u32 {sT1}, {sT1}, {sT2}
        s_add_u32 {sT2}, {sT1}, {4*8192}
        s_add_u32 s42, s42, 0x7f4a7c15
        s_addc_u32 s43, s43, 0x9e3779b9
        v_mov_b32 {V(vTAG)}, s42
        v_mov_b32 {V(vTAG+1)}, s43
        """)
        a(f"buffer_store_dwordx4 {V(U,4)}, v36, {SWS}, {sT1} offen sc1", "kvst")
        a(f"buffer_store_dwordx4 {V(U+4,4)}, v36, {SWS}, {sT2} offen sc1", "kvst")

    def kv_flag(self):
        a = self.a
        a(f"""
        s_lshl2_add_u32 {sT0}, {sDT}, {sW}
        s_lshl_b32 {sT1}, {sST}, 5
        s_add_u32 {sT0}, {sT0}, {sT1}
        s_lshl_b32 {sT0}, {sT0}, 7
        s_add_u32 {sT0}, {sT0}, {FL_KV}
        """)
        a.wait("kvst")
        self.flag_store(sT0)

    def x_write(self, c):
        for i in range(4):
            self.a(f"ds_write_b128 {V(vXW1 if i & 1 else vXW0)}, {V(XR+16*c+4*i,4)} offset:{i*1024}")

    def x_read(self, c):
        for tt in range(4):
            self.a(f"ds_read_b128 {V(XR+16*c+4*tt,4)}, {V(vXR[tt])}")

    def w_frag(self, c, tt, fb, slot):
        r = RING + 8 * slot + 4 * fb
        for jj in range(2):
            self.a(f"ds_read_b64_tr_b16 {V(r+2*jj,2)}, {V(vA[tt][fb])} offset:{c*8192+jj*512}")

    def b1_pass(self, hf, fill):
        a = self.a
        for c in range(8):
            for tt in range(4):
                step = 32 * hf + 4 * c + tt
                slot = step % 3
                nxt = step + 1
                x = V(XR + 16 * c + 4 * tt, 4)
                for fb in range(2):
                    acc = V(ACC + 32 * hf + 16 * fb, 16)
                    fr = V(RING + 8 * slot + 4 * fb, 4)
                    first = (c == 0 and tt == 0)
                    pos = 2 * tt + fb
                    if pos == 6 and nxt < 64:
                        a.wait(f"w{nxt//4}")
                        a("s_barrier")
                        if nxt == 32:
                            for t2 in range(4):
                                for f2 in range(2):
                                    a(f"v_add_u32 {V(vA[t2][f2])}, 0x10000, {V(vA[t2][f2])}")
                    a(f"v_mfma_f32_32x32x16_bf16 {acc}, {fr}, {x}, {'0' if first else acc}")
                    if nxt < 64:
                        self.w_frag((nxt // 4) % 8, nxt % 4, fb, nxt % 3)
                    if tt == 0:
                        cc = A(aC + 8 * hf + 4 * fb, 4)
                        a(f"v_mfma_f32_16x16x32_bf16 {cc}, {A(aSEL,4)}, {fr}, {'0' if c == 0 else cc}")
                    if hf == 0 and fb == 1:
                        mm = A(aM, 4)
                        a(f"v_mfma_f32_16x16x32_bf16 {mm}, {A(aSEL,4)}, {x}, {'0' if first else mm}")
                    if hf == 0 and c < 7:
                        if pos == 2:
                            self.x_write(c + 1)
                        if pos == 3:
                            self.x_read(c + 1)
                    for f in fill.get((c, pos), []):
                        f()
            self.stamp(f"p{hf+1}.c{c}")

    def c_publish(self, hf):
        a = self.a
        a(f"""
        v_accvgpr_read_b32 v27, {A(aC+8*hf)}
        v_accvgpr_read_b32 v28, {A(aC+8*hf+4)}
        v_cmp_gt_u32 vcc, 32, {V(vL)}
        s_lshl_b32 {sT0}, {sW}, 3
        s_add_u32 {sT0}, {sT0}, {CX + 2048*hf}
        v_cndmask_b32 v27, v28, v27, vcc
        v_and_b32 v28, 0xffff0000, v27
        v_sub_f32 v27, v27, v28
        v_and_b32 v29, 0xffff0000, v27
        v_sub_f32 v27, v27, v29
        v_lshrrev_b32 v28, 16, v28
        v_or_b32 v28, v28, v29
        v_lshrrev_b32 v29, 16, v27
        v_lshlrev_b32 v30, 5, {V(vL)}
        v_add_u32 v30, {sT0}, v30
        """)
        a("ds_write_b64 v30, v[28:29]", "cx")

    def m_finish(self):
        a = self.a
        a(f"""
        v_accvgpr_read_b32 v27, {A(aM)}
        v_mul_f32 v27, 0xbb000000, v27
        v_cvt_pk_bf16_f32 v27, v27, v27
        v_accvgpr_write_b32 {A(aM)}, v27
        v_accvgpr_write_b32 {A(aM+1)}, v27
        v_accvgpr_write_b32 {A(aM+2)}, v27
        v_accvgpr_write_b32 {A(aM+3)}, v27
        """)

    def c_read(self, hf):
        a = self.a
        a(f"""
        v_and_b32 v27, 31, {V(vL)}
        v_lshrrev_b32 v28, 5, {V(vL)}
        v_lshlrev_b32 v27, 5, v27
        v_lshl_add_u32 v27, v28, 4, v27
        v_add_u32 v27, {CX + 2048*hf}, v27
        ds_read_b128 v[28:31], v27
        ds_read_b128 v[32:35], v27 offset:1024
        """)

    def c_apply(self, hf, fb):
        acc = V(ACC + 32 * hf + 16 * fb, 16)
        self.a(f"v_mfma_f32_32x32x16_bf16 {acc}, {V(28+4*fb,4)}, {A(aM,4)}, {acc}")

    def h_store(self, hf, fb, q01):
        a = self.a
        r = ACC + 32 * hf + 16 * fb + 8 * q01
        for i in range(4):
            a(f"v_cvt_pk_bf16_f32 {V(r+i)}, {V(r+2*i)}, {V(r+2*i+1)}")
        a(f"s_add_u32 {sT0}, {sHO}, {(hf*56 + (2*fb+q01)*14)*1024}")
        for i in range(4):
            a(f"v_pk_max_i16 {V(r+i)}, {V(r+i)}, 0")
        a(f"buffer_store_dwordx4 {V(r,4)}, {V(vL16)}, {SWS}, {sT0} offen sc1", f"hst{hf}")

    def h_flag(self, hf):
        a = self.a
        a(f"s_add_u32 {sT0}, {sFH}, {128*hf}")
        a.wait(f"hst{hf}")
        self.flag_store(sT0)

    def w2_init(self):
        self.a(f"""
        s_lshl_b32 {sW2O}, {sW}, 14
        s_lshl_b32 {sT0}, {sDT}, 7
        s_add_u32 {sW2O}, {sW2O}, {sT0}
        """)

    def ld_w2(self, idx):
        a = self.a
        a(f"buffer_load_dwordx4 {A(8*idx,4)}, {V(vV0)}, {SW2}, {sW2O} offen")
        a(f"buffer_load_dwordx4 {A(8*idx+4,4)}, {V(vV1)}, {SW2}, {sW2O} offen")
        if idx == 13:
            a(f"s_sub_u32 {sW2O}, {sW2O}, {13*131072 - 65536}")
        elif idx < 27:
            a(f"s_add_u32 {sW2O}, {sW2O}, 131072")

    HK = 64
    def ld_hk(self):
        a = self.a
        a(f"""
        s_lshr_b32 {sT0}, {sW}, 1
        s_lshl1_add_u32 {sT0}, s2, {sT0}
        s_lshl_b32 {sT0}, {sT0}, 12
        s_and_b32 {sT1}, {sW}, 1
        s_lshl_b32 {sT1}, {sT1}, 2
        s_sub_u32 {sT0}, {sT0}, {sT1}
        s_add_u32 {sT0}, {sT0}, 8
        """)
        nt = " nt" if self.o["nt_hk"] else ""
        for i in range(4):
            a(f"buffer_load_dwordx4 {V(self.HK+4*i,4)}, {V(vL16)}, {SHK}, {sT0} offen offset:{1024*i}{nt}")

    def p_head(self):
        a = self.a
        a(f"""
        s_lshr_b32 {sT0}, {sW}, 1
        s_lshl_b32 {sT0}, {sT0}, 4
        s_lshr_b32 {sT0}, {sD}, {sT0}
        s_lshl_b32 {sT0}, {sT0}, 16
        s_lshl_b32 {sT1}, {sH0}, 16
        v_mov_b32 v80, {sT0}
        v_add_f32 v80, {sT1}, v80
        v_cvt_pk_bf16_f32 v80, v80, v80
        s_mul_i32 {sT2}, {sW}, 8256
        v_mov_b32 v84, 0
        v_readfirstlane_b32 {sT0}, v80
        v_mov_b32 v85, 0
        v_mov_b32 v86, 0
        v_mov_b32 v87, 0
        s_and_b32 {sT0}, {sT0}, 0xffff
        s_and_b32 {sT1}, {sH0}, 0xffff0000
        s_or_b32 {sT0}, {sT0}, {sT1}            ; (h0 + D, h1)
        s_bitcmp1_b32 {sW}, 0
        s_cselect_b32 s57, {sT0}, {sH1}
        s_cselect_b32 {sT0}, 0, {sT0}
        s_lshl_b32 {sT1}, {sT0}, 16
        s_lshl_b32 {sT3}, s57, 16
        v_writelane_b32 v86, {sT0}, 1
        s_lshr_b32 {sT0}, {sT0}, 16
        v_writelane_b32 v87, s57, 1
        s_or_b32 {sT3}, {sT3}, {sT0}
        v_writelane_b32 v86, {sT1}, 3
        v_writelane_b32 v87, {sT3}, 3
        v_and_b32 v80, 1, {V(vL)}
        v_lshrrev_b32 v81, 1, {V(vL)}
        v_mul_u32_u24 v81, 4128, v81
        v_lshl_add_u32 v80, v80, 4, v81
        v_add_u32 v80, {sT2}, v80
        v_add_u32 v27, {sT2}, {V(vL16)}
        v_lshlrev_b32 v81, 2, v0
        s_mov_b64 exec, 15
        ds_write_b128 v80, v[84:87] offset:{PB}
        s_mov_b64 exec, -1
        """)
        a(f"ds_write_b32 v81, v84 offset:{KV}", "pw")

    def p_body(self, i):
        a = self.a
        r = self.HK + 4 * i
        a(f"""
        v_mov_b32 v80, s57
        ds_write_b128 v27, {V(r,4)} offset:{PB + 32 + 1024*i}
        v_readlane_b32 s57, {V(r+3)}, 63
        v_mov_b32_dpp v80, {V(r+3)} wave_shr:1 row_mask:0xf bank_mask:0xf
        v_alignbyte_b32 v85, {V(r+1)}, {V(r)}, 2
        v_alignbyte_b32 v86, {V(r+2)}, {V(r+1)}, 2
        v_alignbyte_b32 v87, {V(r+3)}, {V(r+2)}, 2
        v_alignbyte_b32 v84, {V(r)}, v80, 2
        """)
        a(f"ds_write_b128 v27, v[84:87] offset:{PB + 4128 + 32 + 1024*i}", "pw")

    def kv_poll_issue(self):
        a = self.a
        a(f"""
        v_and_b32 {V(vPO)}, 7, {V(vL)}
        v_lshlrev_b32 {V(vPO)}, 12, {V(vPO)}
        s_lshl_b32 s40, {sW}, 15
        s_lshr_b32 {sT0}, s2, 3
        s_lshl_b32 {sT0}, {sT0}, 7
        s_add_u32 s40, s40, {sT0}
        s_add_u32 s40, s40, {FL_KV}
        """)
        self.poll_issue("s40")

    def kv_fetch(self, name):
        a = self.a
        self.poll_check(name, "s40")
        a(f"""
        s_lshl_b32 {sT0}, s2, 13
        s_lshl_b32 {sT1}, {sW}, 11
        s_add_u32 m0, {sT1}, {KV + 1024}
        s_add_u32 {sT0}, {sT0}, {sT1}
        """)
        a(f"buffer_load_dwordx4 {V(vL16)}, {SWS}, {sT0} offen sc1 lds", "kv")
        a(f"buffer_load_dwordx4 {V(vL16)}, {SWS}, {sT0} offen offset:1024 sc1 lds", "kv")

    def conv_addr(self):
        a = self.a
        a(f"""
        v_lshrrev_b32 v27, 4, {V(vL)}          ; G
        v_bfe_u32 v28, {V(vL)}, 2, 2           ; r
        v_and_b32 v29, 3, {V(vL)}              ; c
        v_lshl_add_u32 v29, v27, 2, v29
        v_sub_u32 v29, v29, v28
        s_mul_i32 {sT0}, {sW}, 8256
        s_add_u32 {sT0}, {sT0}, {PB + 24}
        v_lshlrev_b32 v29, 3, v29
        v_add_u32 v12, {sT0}, v29
        v_and_b32 v28, 15, {V(vL)}
        v_sub_u32 v28, v28, v27                ; a - G
        """)
        for e in range(4):
            a(f"""
            v_add_u32 v29, {16 - 4*e}, v28
            v_lshrrev_b32 v30, 2, v29
            v_and_b32 v31, 3, v30
            v_xor_b32 v31, {sW}, v31
            v_lshlrev_b32 v30, 8, v30
            v_lshl_add_u32 v30, v31, 6, v30
            v_and_b32 v29, 3, v29
            v_lshl_add_u32 v30, v29, 4, v30
            v_add_u32 {V(13+e)}, {KV}, v30
            """)

    def conv_reads(self, e):
        base = XR + 64 * (e & 1)
        L = []
        order = []
        for n in range(8):
            order.append(("B", n))
            order.append(("A", n))
        for kind, n in order:
            if kind == "A":
                for ph in range(2):
                    L.append(f"ds_read_b64_tr_b16 {V(base+4*n+2*ph,2)}, v12 offset:{ph*4128 + 128*(4*n+e)}")
            else:
                L.append(f"ds_read_b128 {V(base+32+4*n,4)}, {V(13+e)} offset:{1024*n}")
        return L

    def conv(self, fill):
        a = self.a
        for op in self.conv_reads(0):
            a(op)
        k = 0
        for e in range(4):
            base = XR + 64 * (e & 1)
            nxt = self.conv_reads(e + 1) if e < 3 else []
            prs = sorted([(n, d) for n in range(8) for d in range(8) if n + d < 8], key=lambda p: (max(p), p[0] + p[1]))
            seen = set()
            for i, (n, d) in enumerate(prs):
                acc = A(aY + 4 * (n + d), 4)
                first = (e == 0 and (n + d) not in seen)
                seen.add(n + d)
                a(f"v_mfma_f32_16x16x32_bf16 {acc}, {V(base+4*n,4)}, {V(base+32+4*d,4)}, {'0' if first else acc}")
                if nxt and i >= 8:
                    a(nxt.pop(0))
                for f in fill.get(k, []):
                    f()
                k += 1
            for op in nxt:
                a(op)
            self.stamp(f"cv.e{e}")

    def y_out(self):
        a = self.a
        a(f"""
        v_lshrrev_b32 v27, 4, {V(vL)}
        v_and_b32 v28, 15, {V(vL)}
        v_mul_u32_u24 v27, 20, v27
        v_add_lshl_u32 v27, v27, v28, 4
        s_mul_i32 {sT0}, {sW}, 10240
        s_add_u32 {sT0}, {sT0}, {EX}
        v_add_u32 v27, {sT0}, v27
        v_and_b32 v28, 3, {V(vL)}
        v_lshrrev_b32 v29, 2, {V(vL)}
        v_mul_u32_u24 v28, 20, v28
        v_add_lshl_u32 v28, v28, v29, 4
        s_mul_i32 {sT0}, {sW}, 2560
        s_add_u32 {sT0}, {sT0}, {EX}
        v_add_u32 v28, {sT0}, v28
        """)
        for t in range(8):
            a(f"ds_write_b128 v27, {A(aY+4*t,4)} offset:{1280*t}", "ex")
        a.wait("ex")
        a("s_barrier")
        R = 64
        for t in range(2):
            for src in range(4):
                a(f"ds_read_b128 {V(R+16*t+4*src,4)}, v28 offset:{10240*src + 1280*t}")
        a(f"""
        s_lshl_b32 {sT0}, s2, 13
        s_lshl_b32 {sT1}, {sW}, 11
        s_add_u32 {sT0}, {sT0}, {sT1}
        s_add_u32 {sT0}, {sT0}, {YWS}
        """)
        for t in range(2):
            b = R + 16 * t
            for h in range(2):
                a(f"v_pk_add_f32 {V(b+2*h,2)}, {V(b+2*h,2)}, {V(b+4+2*h,2)}")
                a(f"v_pk_add_f32 {V(b+8+2*h,2)}, {V(b+8+2*h,2)}, {V(b+12+2*h,2)}")
            for i in range(4):
                a(f"v_cvt_pk_bf16_f32 {V(b+4+i)}, {V(b+i)}, {V(b+8+i)}")
            a(f"buffer_store_dwordx4 {V(b+4,4)}, {V(vL16)}, {SWS}, {sT0} offen offset:{1024*t} sc1", "yst")

    def y_flag(self):
        a = self.a
        a(f"""
        s_lshl2_add_u32 {sT0}, s2, {sW}
        s_lshl_b32 {sT0}, {sT0}, 7
        s_add_u32 {sT0}, {sT0}, {FL_Y}
        """)
        a.wait("yst")
        self.flag_store(sT0)

    def h_poll_addr(self):
        a = self.a
        a(f"""
        v_and_b32 v27, 1, {V(vL)}
        v_lshrrev_b32 v28, 1, {V(vL)}
        v_min_u32 v28, 13, v28
        v_mul_u32_u24 v27, 14, v27
        v_add_lshl_u32 {V(vPO)}, v27, v28, 8
        s_mul_i32 s40, {sST}, {28*256}
        s_add_u32 s40, s40, {FL_H}
        s_mul_i32 {sHL}, {sST}, 224
        s_mul_i32 {sT0}, {sW}, 14
        s_add_u32 {sHL}, {sHL}, {sT0}
        s_lshl_b32 {sHL}, {sHL}, 10
        s_add_u32 {sHL}, {sHL}, {HWS}
        v_add_u32 v17, {112*1024}, {V(vL16)}
        """)

    def hslot(self, k, sb):
        return XR + 4 * ((2 * k + sb) % 32)

    def ld_h(self, k):
        a = self.a
        hf, T = divmod(k, 14)
        if T % 4 == 0:
            a(f"s_add_u32 s41, {sHL}, {(hf*56 + T)*1024}")
        for sb in range(2):
            a(f"buffer_load_dwordx4 {V(self.hslot(k,sb),4)}, {V(17 if sb else vL16)}, {SWS}, s41 offen offset:{1024*(T%4)} sc1")

    def b2_addr(self):
        a = self.a
        a(f"""
        v_add_u32 v12, {sXBW}, {V(vL16)}
        v_lshrrev_b32 v27, 5, {V(vL)}
        v_bfe_u32 v28, {V(vL)}, 2, 2
        v_lshl_add_u32 v27, v27, 2, v28
        v_lshlrev_b32 v27, 7, v27
        v_bfe_u32 v28, {V(vL)}, 3, 1
        v_lshl_add_u32 v27, v28, 6, v27
        v_bfe_u32 v28, {V(vL)}, 4, 1
        v_lshl_add_u32 v27, v28, 5, v27
        v_and_b32 v28, 3, {V(vL)}
        v_lshl_add_u32 v27, v28, 3, v27
        v_add_u32 v13, {sXBW}, v27
        v_xor_b32 v14, 64, v13
        """)

    def w2_frag(self, k):
        a = self.a
        r = RING + 8 * (k % 3)
        a(f"ds_write_b128 v12, {A(8*k,4)}")
        a(f"ds_write_b128 v12, {A(8*k+4,4)} offset:1024")
        for nb in range(2):
            for jj in range(2):
                a(f"ds_read_b64_tr_b16 {V(r+4*nb+2*jj,2)}, {V(13+nb)} offset:{1024*jj}")

    def b2(self, fill):
        a = self.a
        self.w2_frag(0)
        for k in range(28):
            r = RING + 8 * (k % 3)
            for q in range(4):
                sb, nb = q >> 1, q & 1
                acc = V(ACC + 16 * q, 16)
                a(f"v_mfma_f32_32x32x16_bf16 {acc}, {V(r+4*nb,4)}, {V(self.hslot(k,sb),4)}, {'0' if k == 0 else acc}")
                if q == 0 and k < 27:
                    self.w2_frag(k + 1)
                for f in fill.get((k, q), []):
                    f()
            if k % 2 == 1:
                self.stamp(f"b2.k{k}")

    EXR, EYR, ESR = 224, 232, 240
    def y_poll_issue(self):
        a = self.a
        a(f"""
        v_and_b32 {V(vPO)}, 31, {V(vL)}
        v_lshlrev_b32 {V(vPO)}, 9, {V(vPO)}
        s_lshl_b32 s40, {sDT}, 14
        s_lshr_b32 {sT0}, {sST}, 3
        s_lshl_b32 {sT0}, {sT0}, 7
        s_add_u32 s40, s40, {sT0}
        s_add_u32 s40, s40, {FL_Y}
        """)
        self.poll_issue("s40")

    def ep_loads(self):
        a = self.a
        a(f"""
        v_lshrrev_b32 v27, 3, {V(vL)}
        v_lshlrev_b32 v18, 4, v27
        s_lshl_b32 {sT0}, {sST}, 10
        s_lshl_b32 {sT1}, {sW}, 8
        s_add_u32 {sT0}, {sT0}, {sT1}
        s_add_u32 s57, {sT0}, {STAT}
        s_add_u32 {sT1}, {sEO}, 8192
        """)
        a(f"buffer_load_dwordx4 {V(self.ESR,4)}, v18, {SWS}, s57 offen sc1")
        a(f"buffer_load_dwordx4 {V(self.ESR+4,4)}, v18, {SWS}, s57 offen offset:128 sc1")
        a(f"buffer_load_dwordx4 {V(self.EXR,4)}, {V(vXO)}, {SX}, {sEO} offen")
        a(f"buffer_load_dwordx4 {V(self.EXR+4,4)}, {V(vXO)}, {SX}, {sT1} offen")

    def y_fetch(self):
        a = self.a
        a(f"""
        v_lshrrev_b32 v27, 3, {V(vL)}
        v_and_b32 v28, 7, {V(vL)}
        v_lshrrev_b32 v29, 4, {V(vL)}
        v_xor_b32 v29, v28, v29                ; idx
        v_lshrrev_b32 v30, 2, v29
        v_lshl_add_u32 v30, v27, 1, v30
        v_and_b32 v29, 3, v29
        v_lshlrev_b32 v29, 4, v29
        v_lshl_add_u32 v30, v30, 13, v29
        v_xor_b32 v31, 0x2000, v30
        v_add_u32 v31, {16*8192 - 1024}, v31
        s_lshl_b32 {sT0}, {sDT}, 18
        s_lshl_b32 {sT1}, {sST}, 8
        s_lshl_b32 {sT2}, {sW}, 6
        s_add_u32 {sT0}, {sT0}, {sT1}
        s_add_u32 {sT0}, {sT0}, {sT2}
        s_add_u32 {sT0}, {sT0}, {YWS}
        s_add_u32 m0, {sXBW}, 2048
        """)
        self.poll_check("y", "s40")
        a(f"buffer_load_dwordx4 v30, {SWS}, {sT0} offen sc1 lds", "y")
        a(f"buffer_load_dwordx4 v31, {SWS}, {sT0} offen offset:1024 sc1 lds", "y")

    def y_read(self):
        a = self.a
        a(f"""
        v_lshrrev_b32 v27, 5, {V(vL)}
        v_and_b32 v28, 7, {V(vL)}
        v_xor_b32 v27, v27, v28
        v_lshlrev_b32 v27, 4, v27
        v_lshl_add_u32 v27, v28, 8, v27
        v_bfe_u32 v28, {V(vL)}, 3, 2
        v_lshl_add_u32 v27, v28, 2, v27
        v_add_u32 v27, {sXBW}, v27
        v_xor_b32 v28, 64, v27
        v_xor_b32 v29, 32, v27
        v_xor_b32 v30, 0x60, v27
        """)
        a.wait("y")
        for st in range(2):
            for e in range(4):
                a(f"ds_read_b32 {V(self.EYR+4*st+e)}, {V(27 + 2*st + (e & 1))} offset:{2048 + 128*(e >> 1)}")

    def stat_check(self):
        a = self.a
        S = self.ESR
        a(f"v_cmp_ne_u64 vcc, {sTAG}, {V(S+2,2)}")
        a(f"v_cmp_ne_u64 s[60:61], {sTAG}, {V(S+6,2)}")
        a("s_or_b64 vcc, vcc, s[60:61]")
        a("s_cbranch_vccnz L_slow_st")
        a.label("L_back_st")
        self.slow.append(f"""L_slow_st:
    s_mov_b32 {sCNT}, 0
L_spin_st:
    buffer_load_dwordx4 {V(S,4)}, v18, {SWS}, s57 offen sc1
    buffer_load_dwordx4 {V(S+4,4)}, v18, {SWS}, s57 offen offset:128 sc1
    s_add_u32 {sCNT}, {sCNT}, 1
    s_cmp_gt_u32 {sCNT}, 20000
    s_waitcnt vmcnt(0)
    s_cbranch_scc1 L_back_st
    v_cmp_ne_u64 vcc, {sTAG}, {V(S+2,2)}
    v_cmp_ne_u64 s[60:61], {sTAG}, {V(S+6,2)}
    s_or_b64 vcc, vcc, s[60:61]
    s_cbranch_vccnz L_spin_st
    s_branch L_back_st
""")

    XF, TF = 128, 144
    def ep_pre(self, st, e):
        a = self.a
        x, y = self.EXR + 4 * st + e, self.EYR + 4 * st + e
        xf, tf = self.XF + 8 * st + 2 * e, self.TF + 8 * st + 2 * e
        m = V(self.ESR + 4 * st, 2)
        a(f"""
        v_lshlrev_b32 {V(xf)}, 16, {V(x)}
        v_and_b32 {V(xf+1)}, 0xffff0000, {V(x)}
        v_lshlrev_b32 v32, 16, {V(y)}
        v_and_b32 v33, 0xffff0000, {V(y)}
        v_pk_add_f32 {V(tf,2)}, {V(xf,2)}, {m} op_sel:[0,0] op_sel_hi:[1,0] neg_lo:[0,1] neg_hi:[0,1]
        v_pk_mul_f32 {V(tf,2)}, {V(tf,2)}, v[32:33]
        """)

    def ep_addr(self):
        a = self.a
        a(f"""
        v_and_b32 v27, 31, {V(vL)}
        v_mul_u32_u24 v27, 272, v27
        v_lshrrev_b32 v28, 5, {V(vL)}
        v_lshl_add_u32 v27, v28, 4, v27
        s_mul_i32 {sT0}, {sW}, 17408
        v_add_u32 v15, {sT0}, v27
        v_lshrrev_b32 v27, 3, {V(vL)}
        v_mul_u32_u24 v27, 272, v27
        v_and_b32 v28, 7, {V(vL)}
        v_lshl_add_u32 v27, v28, 5, v27
        s_mul_i32 {sT0}, {sW}, {16*272}
        v_add_u32 v16, {sT0}, v27
        """)

    def epilogue(self):
        a = self.a
        for q in range(4):
            sb, nb = q >> 1, q & 1
            for g in range(4):
                a(f"ds_write_b128 v15, {V(ACC+16*q+4*g,4)} offset:{RED + sb*8704 + nb*128 + g*32}", "red")
        a.wait("red")
        a("s_barrier")
        self.stamp("redbar")
        R = 160
        for st in range(2):
            for src in range(4):
                for hh in range(2):
                    a(f"ds_read_b128 {V(R+32*st+8*src+4*hh,4)}, v16 offset:{RED + src*17408 + st*2176 + hh*16}")
        a(f"s_add_u32 {sT1}, {sEO}, 8192")
        for st in range(2):
            tf, xf = self.TF + 8 * st, self.XF + 8 * st
            for src in range(4):
                for p in range(4):
                    a(f"v_pk_add_f32 {V(tf+2*p,2)}, {V(tf+2*p,2)}, {V(R+32*st+8*src+2*p,2)}")
            rr = V(self.ESR + 4 * st, 2)
            for p in range(4):
                a(f"v_pk_fma_f32 {V(tf+2*p,2)}, {V(tf+2*p,2)}, {rr}, {V(xf+2*p,2)} op_sel:[0,1,0] op_sel_hi:[1,1,1]")
            for p in range(4):
                a(f"v_cvt_pk_bf16_f32 {V(xf+p)}, {V(tf+2*p)}, {V(tf+2*p+1)}")
            a(f"buffer_store_dwordx4 {V(xf,4)}, {V(vXO)}, {SO}, {sT1 if st else sEO} offen")

    def stats(self):
        a = self.a
        a("v_mov_b32 v27, 0x3f803f80")
        def red8(r):
            a(f"v_add_f32_dpp {V(r)}, {V(r)}, {V(r)} quad_perm:[1,0,3,2] row_mask:0xf bank_mask:0xf")
            a(f"v_add_f32_dpp {V(r)}, {V(r)}, {V(r)} quad_perm:[2,3,0,1] row_mask:0xf bank_mask:0xf")
            a(f"v_add_f32_dpp {V(r)}, {V(r)}, {V(r)} row_half_mirror row_mask:0xf bank_mask:0xf")
        for i in range(2):
            a(f"v_mov_b32 {V(64+8*i)}, 0")
            a(f"v_mov_b32 {V(65+8*i)}, 0")
        for c in range(8):
            for j in range(4):
                for i in range(2):
                    a(f"v_dot2c_f32_bf16 {V(64+8*i+(j&1))}, {V(XR+16*c+4*i+j)}, v27")
        for i in range(2):
            a(f"v_add_f32 {V(64+8*i)}, {V(64+8*i)}, {V(65+8*i)}")
        for i in range(2):
            red8(64 + 8 * i)
        for i in range(2):
            a(f"v_mul_f32 {V(64+8*i)}, 0x3b000000, {V(64+8*i)}")
            a(f"v_mov_b32 {V(66+8*i)}, 0")
            a(f"v_mov_b32 {V(67+8*i)}, 0")
        for c in range(8):
            for j in range(4):
                for i in range(2):
                    x = V(XR + 16 * c + 4 * i + j)
                    t = 68 + 8 * i
                    a(f"v_lshlrev_b32 {V(t)}, 16, {x}")
                    a(f"v_and_b32 {V(t+1)}, 0xffff0000, {x}")
                    a(f"v_pk_add_f32 {V(t,2)}, {V(t,2)}, {V(64+8*i,2)} op_sel:[0,0] op_sel_hi:[1,0] neg_lo:[0,1] neg_hi:[0,1]")
                    a(f"v_pk_fma_f32 {V(66+8*i,2)}, {V(t,2)}, {V(t,2)}, {V(66+8*i,2)}")
        for i in range(2):
            a(f"v_add_f32 {V(66+8*i)}, {V(66+8*i)}, {V(67+8*i)}")
        for i in range(2):
            red8(66 + 8 * i)
        a(f"""
        v_lshrrev_b32 v28, 3, {V(vL)}
        v_lshlrev_b32 v28, 4, v28
        s_lshr_b32 {sT0}, {sXO[0]}, 6
        s_add_u32 {sT0}, {sT0}, {STAT}
        """)
        for i in range(2):
            m, v = 64 + 8 * i, 66 + 8 * i
            a(f"""
            v_mul_f32 {V(v)}, 0x3b000000, {V(v)}
            v_cvt_pk_bf16_f32 {V(v)}, {V(v)}, {V(m)}
            v_and_b32 {V(m)}, 0xffff0000, {V(v)}
            v_lshlrev_b32 {V(v)}, 16, {V(v)}
            v_add_f32 {V(v)}, 0x3727c5ac, {V(v)}
            v_cvt_pk_bf16_f32 {V(v)}, {V(v)}, {V(v)}
            v_lshlrev_b32 {V(v)}, 16, {V(v)}
            v_sqrt_f32 {V(v)}, {V(v)}
            v_cvt_pk_bf16_f32 {V(v)}, {V(v)}, {V(v)}
            v_lshlrev_b32 {V(v)}, 16, {V(v)}
            v_rcp_f32 {V(m+1)}, {V(v)}
            v_mov_b32 {V(m+2)}, {V(vTAG)}
            v_mov_b32 {V(m+3)}, {V(vTAG+1)}
            """)
        a("s_mov_b32 exec_lo, 0x01010101")
        a("s_mov_b32 exec_hi, 0x01010101")
        for i in range(2):
            a(f"buffer_store_dwordx4 {V(64+8*i,4)}, v28, {SWS}, {sT0} offen offset:{128*i} sc1")
        a("s_mov_b64 exec, -1")

    def gen_update(self):
        a = self.a
        a(f"s_cmp_lg_u32 s2, {28*8}")
        a("s_cbranch_scc1 L_nogen")
        a.wait_all()
        a.raw(f"""    v_lshlrev_b32 v28, 7, v0
    s_mov_b32 {sT1}, {FL_KV}
L_gen_next:
    s_mov_b32 {sCNT}, 0
L_gen_spin:
    buffer_load_dwordx2 v[30:31], v28, {SWS}, {sT1} offen sc1
    s_add_u32 {sCNT}, {sCNT}, 1
    s_cmp_gt_u32 {sCNT}, 20000
    s_waitcnt vmcnt(0)
    s_cbranch_scc1 L_gen_got
    v_cmp_ne_u64 vcc, {sTAG}, v[30:31]
    s_cbranch_vccnz L_gen_spin
L_gen_got:
    s_add_u32 {sT1}, {sT1}, 0x8000
    s_cmp_lt_u32 {sT1}, {FL_KV + 0x20000}
    s_cbranch_scc1 L_gen_next
    s_barrier
    s_cmp_lg_u32 {sW}, 0
    s_cbranch_scc1 L_nogen
    s_mov_b32 {sT1}, {GEN}
    s_mov_b64 exec, 1
    buffer_store_dwordx2 {V(vTAG,2)}, off, {SWS}, {sT1} sc1
    s_mov_b64 exec, -1
    s_waitcnt vmcnt(0)
L_nogen:""")

    def build(self):
        a = self.a
        self.prologue()
        L = self.b1_load_list()
        NPRE, NA1 = 15, 10
        for _ in range(NPRE):
            L.pop(0)()
        self.addr_b1()
        self.a1([L.pop(0) for _ in range(NA1)])
        self.stamp("a1done")
        a(f"s_cmp_ge_u32 {sJ}, 28")
        a("s_cbranch_scc1 L_spare")
        st_spare = a.state()
        nL = len(L)
        self.stamp("p1.a1done")
        self.x_write(0)
        self.x_read(0)
        a.wait("w0")
        a("s_barrier")
        self.stamp("p1.w0")
        for fb in range(2):
            self.w_frag(0, 0, fb, 0)
        fill = {}
        def put(d, key, f):
            d.setdefault(key, []).append(f)
        slots = [(c, p) for c in range(8) for p in (0, 1, 4, 5, 7)]
        for i, f in enumerate(L):
            put(fill, slots[i], f)
        put(fill, (5, 0), self.kv_flag)
        self.b1_pass(0, fill)
        self.stamp("pass1")
        fill = {}
        put(fill, (0, 1), lambda: self.c_publish(0))
        put(fill, (0, 2), self.m_finish)
        put(fill, (0, 3), self.w2_init)
        put(fill, (0, 5), lambda: a.wait("cx"))
        put(fill, (0, 7), lambda: self.c_read(0))
        put(fill, (1, 0), lambda: self.c_apply(0, 0))
        put(fill, (1, 1), lambda: self.c_apply(0, 1))
        for q in range(4):
            put(fill, (1, 3 + q), lambda q=q: self.h_store(0, q >> 1, q & 1))
        put(fill, (2, 0), self.ld_hk)
        put(fill, (2, 1), self.kv_poll_issue)
        put(fill, (2, 2), self.p_head)
        w2 = list(range(28))
        for c in range(2, 8):
            for p in (3, 5):
                put(fill, (c, p), lambda k=w2.pop(0): self.ld_w2(k))
        put(fill, (4, 0), lambda: self.h_flag(0))
        for i in range(4):
            put(fill, (4, 1 + i), lambda i=i: self.p_body(i))
        put(fill, (5, 0), lambda: self.kv_fetch("kv"))
        self.b1_pass(1, fill)
        self.stamp("pass2")
        self.c_publish(1)
        self.conv_addr()
        a.wait("cx", "kv", "pw")
        a("s_barrier")
        self.stamp("cv.bar")
        self.c_read(1)
        self.c_apply(1, 0)
        self.c_apply(1, 1)
        for q in range(4):
            self.h_store(1, q >> 1, q & 1)
        w2_left = list(w2)
        a("s_branch L_conv")
        st_join = a.state()
        a.restore(st_spare)
        a.label("L_spare")
        for f in self.b1_load_list()[-nL:]:
            pass
        issued = NPRE + NA1
        for n in range(issued, 40):
            c, i = divmod(n, 5)
            if i < 2:
                self.ld_x(c, i)
        self.ld_hk()
        self.kv_flag()
        a("s_barrier")
        self.w2_init()
        self.p_head()
        for i in range(4):
            self.p_body(i)
        for k in range(28 - len(w2_left)):
            self.ld_w2(k)
        self.stats()
        self.kv_poll_issue()
        self.kv_fetch("kv2")
        self.conv_addr()
        self.gen_update()
        a.wait_all()
        a("s_barrier")
        a.restore(st_join)
        a.label("L_conv")
        self.stamp("convstart")
        self.stamp("cv.start")
        fill = {}
        for i, k in enumerate(w2_left):
            put(fill, 4 + 8 * i, lambda k=k: self.ld_w2(k))
        put(fill, 60, self.h_flag1)
        put(fill, 100, self.h_poll_addr)
        put(fill, 101, lambda: self.poll_issue("s40", 0))
        self.conv(fill)
        self.stamp("convend")
        self.y_out()
        self.stamp("cv.yout")
        self.b2_addr()
        self.poll_check("h0", "s40", 0)
        self.stamp("h0")
        self.stamp("cv.h0")
        for k in range(14):
            self.ld_h(k)
        self.poll_issue("s40", 128)
        self.stamp("cv.hissued")
        self.y_flag()
        self.stamp("cv.yflag")
        fill = {}
        put(fill, (2, 1), lambda: self.poll_check("h1", "s40", 128))
        put(fill, (2, 2), lambda: self.ld_h(14))
        put(fill, (2, 3), lambda: self.ld_h(15))
        for k in range(16, 28):
            put(fill, (3, k - 16) if k < 19 else (k - 15, 1), lambda k=k: self.ld_h(k))
        put(fill, (14, 1), self.y_poll_issue)
        put(fill, (15, 2), self.ep_addr)
        put(fill, (16, 1), self.ep_loads)
        put(fill, (18, 1), self.y_fetch)
        put(fill, (22, 1), self.y_read)
        put(fill, (23, 1), self.stat_check)
        n = 0
        for st in range(2):
            for e in range(4):
                put(fill, (24 + n // 2, 1 + 2 * (n & 1)), lambda st=st, e=e: self.ep_pre(st, e))
                n += 1
        self.b2(fill)
        self.stamp("b2end")
        self.epilogue()
        if self.o["diag"]:
            a.wait_all()
            self.stamp("end")
            a.wait_all()
            a(f"""
            s_lshl2_add_u32 {sT0}, s2, {sW}
            s_lshl_b32 {sT0}, {sT0}, 6
            s_add_u32 {sT0}, {sT0}, {STAMP}
            s_mov_b64 exec, 1
            """)
            for i in range(self.nst):
                a(f"v_mov_b32 v27, s{sSTAMP+2*i}")
                a(f"buffer_store_dword v27, off, {SWS}, {sT0} offset:{4*i}")
        a.label("L_end")
        a("s_endpgm")
        for s in self.slow:
            a.raw(s)
        a.label("L_codeend")
        return self.wrap(a.text())

    def h_flag1(self):
        a = self.a
        a(f"s_add_u32 {sT0}, {sFH}, 128")
        a(f"s_cmp_lt_u32 {sJ}, 28")
        a(f"s_cselect_b32 {sT0}, {sT0}, {WS_SIZE}")
        a.wait("hst1")
        self.flag_store(sT0)

    def wrap(self, body):
        return f"""; Fused kernel: out = x + LN(x) * (longconv(shiftconv(k) * v) + D * kv) + relu(LN(x) @ w1) @ w2
; @launch grid=(256,1,1) block=(256,1,1) lds={LDS_SIZE}
.amdgcn_target "amdgcn-amd-amdhsa--gfx950"
.text
.globl {KN}
.p2align 8
.type {KN},@function
{KN}:
{body}
.section .rodata,"a"
.p2align 6
.amdhsa_kernel {KN}
  .amdhsa_next_free_vgpr 512
  .amdhsa_next_free_sgpr 102
  .amdhsa_accum_offset 256
  .amdhsa_group_segment_fixed_size 0
  .amdhsa_kernarg_size 96
  .amdhsa_user_sgpr_count 2
  .amdhsa_user_sgpr_kernarg_segment_ptr 1
  .amdhsa_system_sgpr_workgroup_id_x 1
  .amdhsa_float_denorm_mode_32 3
.end_amdhsa_kernel
"""


if __name__ == "__main__":
    opts = {}
    out = None
    for arg in sys.argv[1:]:
        if "=" in arg:
            k, v = arg.split("=")
            opts[k] = eval(v)
        else:
            out = arg
    g = Gen(**opts)
    txt = g.build()
    if out:
        open(out, "w").write(txt)
        if g.names:
            open(out + ".names", "w").write(" ".join(g.names))
    print("nops inserted:", g.a.nops, "lines:", txt.count("\n"), file=sys.stderr)
```

```python
import sys, os
sys.path.insert(0, os.path.dirname(os.path.abspath(__file__)))
from emit import Asm

KN = "parallel_sum__ssm_conv_h3__dense_activation_relu__prompt_kernel"

KVT = 0x000000
YWS = 0x200000
HWS = 0x400000
FL_KV = 0xC00000
FL_Y = 0xC20000
FL_H = 0xC40000
STAT = 0xC80000
GEN = 0xC90000
STAMP = 0xD00000
WS_SIZE = 0x1000000

XB = 131072
CX = 147456
KT = 131072 - 17408
VT = KT + 9216
PB = 0
KV = 33280
EX = 90112
RED = 0
LDS_SIZE = 163840

SX, SK, SV, SSH, SHK, SW1, SW2, SO, SWS = [f"s[{4*i}:{4*i+3}]" for i in range(1, 10)]
sTAG = "s[42:43]"
sW, sXCD, sJ = "s44", "s45", "s46"
sST, sDT = "s47", "s48"
sXO = ["s49", "s50", "s51", "s52"]
sW1O, sM0 = "s53", "s54"
sHO = "s55"
sD, sH0, sH1 = "s56", "s58", "s59"
sT0, sT1, sT2, sT3 = "s60", "s61", "s62", "s63"
sW2O = "s64"
sXBW = "s65"
sFH = "s66"
sCNT = "s67"
sHL = "s68"
sFT = "s69"
sEO = "s70"
sSTAMP = 72

def V(i, n=1):
    return f"v{i}" if n == 1 else f"v[{i}:{i+n-1}]"
def A(i, n=1):
    return f"a{i}" if n == 1 else f"a[{i}:{i+n-1}]"

vL, vL16, vXO, vW0, vW1 = 1, 2, 3, 4, 5
vXW0, vXW1 = 6, 7
vXR = [8, 9, 10, 11]
vA = [[12, 13], [14, 15], [16, 17], [18, 19]]
vV0, vV1 = 20, 21
vTAG = 22
vP = 24
vPO = 26
vT = 27
RING = 40
ACC = 64
XR = 128
aSEL, aM, aC = 224, 228, 232
aY = 224


class Gen:
    def __init__(self, **o):
        self.o = dict(diag=False, codepf=True, nt_kv=False, nt_hk=False)
        self.o.update(o)
        self.a = Asm()
        self.slow = []
        self.nst = 0
        self.names = []

    def stamp(self, name):
        if not self.o["diag"]:
            return
        grp = name.split(".")[0] if "." in name else "main"
        if name != "start" and grp not in self.o["diag"]:
            return
        r = sSTAMP + 2 * self.nst
        assert r + 1 < 102
        self.a(f"s_memrealtime s[{r}:{r+1}]")
        self.names.append(name)
        self.nst += 1

    def flag_store(self, soff):
        a = self.a
        a("s_mov_b64 exec, 1")
        a(f"buffer_store_dwordx2 {V(vTAG,2)}, off, {SWS}, {soff} sc1")
        a("s_mov_b64 exec, -1")

    def poll_issue(self, soff, imm=0):
        self.a(f"buffer_load_dwordx2 {V(vP,2)}, {V(vPO)}, {SWS}, {soff} offen offset:{imm} sc1")

    def poll_check(self, name, soff, imm=0):
        a = self.a
        a(f"v_cmp_ne_u64 vcc, {sTAG}, {V(vP,2)}")
        a(f"s_cbranch_vccnz L_slow_{name}")
        a.label(f"L_back_{name}")
        self.slow.append(f"""L_slow_{name}:
    s_mov_b32 {sCNT}, 0
L_spin_{name}:
    buffer_load_dwordx2 {V(vP,2)}, {V(vPO)}, {SWS}, {soff} offen offset:{imm} sc1
    s_add_u32 {sCNT}, {sCNT}, 1
    s_cmp_gt_u32 {sCNT}, 20000
    s_waitcnt vmcnt(0)
    s_cbranch_scc1 L_back_{name}
    v_cmp_ne_u64 vcc, {sTAG}, {V(vP,2)}
    s_cbranch_vccnz L_spin_{name}
    s_branch L_back_{name}
""")

    def prologue(self):
        a = self.a
        a(f"""
        s_cmp_ge_u32 s2, 0x100
        s_cbranch_scc1 L_end
        s_load_dwordx2 s[8:9], s[0:1], 8
        s_load_dwordx2 s[12:13], s[0:1], 16
        s_load_dwordx2 s[16:17], s[0:1], 24
        s_load_dwordx2 s[4:5], s[0:1], 0
        s_load_dwordx2 s[24:25], s[0:1], 56
        s_load_dwordx2 s[36:37], s[0:1], 88
        s_load_dwordx2 s[20:21], s[0:1], 32
        s_load_dwordx2 s[40:41], s[0:1], 40
        s_load_dwordx2 s[28:29], s[0:1], 64
        s_load_dwordx2 s[32:33], s[0:1], 72
        """)
        self.stamp("start")
        a(f"""
        v_lshrrev_b32 v27, 6, v0
        v_and_b32 {V(vL)}, 63, v0
        s_and_b32 {sXCD}, s2, 7
        v_readfirstlane_b32 {sW}, v27
        s_lshr_b32 {sJ}, s2, 3
        """)
        if self.o["codepf"]:
            a(f"""
            s_getpc_b64 s[60:61]
            L_pc:
            v_lshlrev_b32 v28, 7, v0
            v_min_u32 v28, L_codeend-L_pc-4, v28
            v_mov_b32 v29, s61
            v_add_co_u32 v28, vcc, s60, v28
            v_addc_co_u32 v29, vcc, 0, v29, vcc
            global_load_dword v39, v[28:29], off
            """)
        a(f"""
        s_mov_b32 s6, 0x200000
        s_mov_b32 s7, 0x20000
        s_mov_b64 s[10:11], s[6:7]
        s_mov_b64 s[14:15], s[6:7]
        s_mov_b64 s[22:23], s[6:7]
        s_mov_b64 s[34:35], s[6:7]
        s_mov_b32 s18, 0x1000
        s_mov_b32 s19, s7
        s_mov_b32 s30, 0x1c0000
        s_mov_b32 s31, s7
        s_mov_b32 s27, s7
        s_mov_b32 s38, {WS_SIZE}
        s_mov_b32 s39, s7
        s_cmp_lt_u32 {sJ}, 28
        s_cselect_b32 s26, s30, 0
        s_lshr_b32 {sT0}, {sJ}, 3
        s_lshl2_add_u32 {sST}, {sXCD}, {sT0}
        s_and_b32 {sDT}, {sJ}, 7
        v_lshlrev_b32 {V(vL16)}, 4, {V(vL)}
        v_lshrrev_b32 v27, 3, {V(vL)}          ; l>>3
        v_and_b32 v28, 7, {V(vL)}              ; l&7
        v_lshrrev_b32 v29, 4, {V(vL)}          ; l>>4
        v_lshrrev_b32 v30, 5, {V(vL)}          ; l>>5
        v_lshlrev_b32 v31, 10, v27             ; (l>>3)*1024
        v_lshl_or_b32 {V(vXO)}, v28, 4, v31
        v_lshlrev_b32 v32, 5, v30
        v_xor_b32 v32, {V(vXO)}, v32
        v_xor_b32 v33, 64, v32
        v_add_u32 v33, 7168, v33
        s_lshl_b32 {sT0}, {sST}, 16
        s_lshl_b32 {sT1}, {sW}, 14
        s_lshl_b32 {sT2}, {sDT}, 7
        s_add_u32 {sT0}, {sT0}, {sT2}
        s_add_u32 {sEO}, {sT0}, {sT1}
        s_lshl_b32 {sT1}, {sW}, 10
        s_add_u32 {sT0}, {sT0}, {sT1}
        s_sub_u32 {sT0}, {sT0}, 4096
        v_xor_b32 v34, 6, v28
        v_lshlrev_b32 v34, 4, v34
        v_add_u32 v34, {sT0}, v34
        s_lshl_b32 {sT1}, {sW}, 11
        s_add_u32 m0, {sT1}, {KT + 1024}
        s_lshl_b32 {sT2}, {sW}, 7
        s_lshl_b32 {sT3}, {sDT}, 9
        s_add_u32 {sT3}, {sT3}, {sT2}
        v_and_b32 v35, 15, {V(vL)}             ; l&15
        v_lshlrev_b32 v36, 3, v35
        """)
        nt = " nt" if self.o["nt_kv"] else ""
        a(f"buffer_load_dwordx4 v32, {SK}, {sEO} offen{nt} lds", "a1")
        a(f"buffer_load_dwordx4 v33, {SK}, {sEO} offen offset:1024{nt} lds", "a1")
        a(f"s_add_u32 m0, {sT1}, {VT}")
        a(f"buffer_load_dwordx2 {V(RING,2)}, v36, {SSH}, {sT3} offen", "a1")
        a(f"buffer_load_dwordx4 v32, {SV}, {sEO} offen{nt} lds", "a1")
        a(f"buffer_load_dwordx4 v33, {SV}, {sEO} offen offset:1024{nt} lds", "a1")
        a(f"s_add_u32 m0, {sT2}, {KT + 512}")
        a("s_mov_b64 exec, 0xff")
        a(f"buffer_load_dwordx4 v34, {SK}, 0 offen lds", "a1")
        a("s_mov_b64 exec, -1")
        a(f"""
        s_lshr_b32 {sT0}, {sW}, 1
        s_lshl1_add_u32 {sT0}, s2, {sT0}
        s_lshl_b32 {sT0}, {sT0}, 12
        s_lshl_b32 {sT1}, s2, 2
        s_mov_b32 {sT2}, {GEN}
        s_load_dwordx2 s[58:59], s[20:21], {sT0}
        s_load_dword {sD}, s[40:41], {sT1}
        s_load_dwordx2 {sTAG}, s[36:37], {sT2}
        """)
        a(f"""
        s_lshr_b32 {sT0}, {sXCD}, 1
        s_and_b32 {sT1}, {sJ}, 3
        s_lshl2_add_u32 {sT0}, {sT0}, {sT1}         ; rb
        s_lshl2_add_u32 {sT0}, {sT0}, {sW}
        s_and_b32 {sT2}, {sXCD}, 1
        s_mul_i32 {sT2}, {sT2}, 7
        s_lshr_b32 {sT3}, {sJ}, 2
        s_add_u32 {sFT}, {sT2}, {sT3}               ; ft
        s_mul_i32 {sFH}, {sT0}, 14
        s_add_u32 {sFH}, {sFH}, {sFT}
        s_lshl_b32 {sFH}, {sFH}, 8
        s_add_u32 {sFH}, {sFH}, {FL_H}
        s_mul_i32 {sHO}, {sT0}, 112
        s_add_u32 {sHO}, {sHO}, {sFT}
        s_lshl_b32 {sHO}, {sHO}, 10
        s_add_u32 {sHO}, {sHO}, {HWS}
        s_lshl_b32 {sT0}, {sT0}, 15
        s_lshl2_add_u32 {sT1}, {sXCD}, {sT1}
        s_lshl2_add_u32 {sT1}, {sT1}, {sW}
        s_lshl_b32 {sT1}, {sT1}, 14
        s_cmp_lt_u32 {sJ}, 28
        s_cselect_b32 {sXO[0]}, {sT0}, {sT1}
        s_cselect_b32 {sT2}, 0, 0x400000
        s_add_u32 {sXO[1]}, {sXO[0]}, 8192
        s_add_u32 {sXO[2]}, {sXO[1]}, 8192
        s_add_u32 {sXO[2]}, {sXO[2]}, {sT2}
        s_add_u32 {sXO[3]}, {sXO[2]}, 8192
        s_mul_i32 {sW1O}, {sW}, {16*3584}
        s_lshl_b32 {sT0}, {sFT}, 8
        s_add_u32 {sW1O}, {sW1O}, {sT0}
        s_lshl_b32 {sM0}, {sW}, 11
        v_and_b32 v37, 1, v29
        v_lshlrev_b32 v37, 6, v37
        v_xor_b32 {V(vV0)}, {V(vXO)}, v37
        v_add_u32 {V(vV1)}, 8192, {V(vV0)}
        v_mul_u32_u24 v38, 2560, v27
        v_add_u32 {V(vW0)}, {V(vV0)}, v38
        v_add_u32 {V(vW1)}, {8*3584-1024}, {V(vW0)}
        """)

    def ld_x(self, c, i):
        self.a(f"buffer_load_dwordx4 {V(XR+16*c+4*i,4)}, {V(vXO)}, {SX}, {sXO[i]} offen offset:{128*c}", f"x{c}")

    def ld_w1(self, n):
        a = self.a
        a(f"s_mov_b32 m0, {sM0}")
        a(f"s_add_u32 {sM0}, {sM0}, 8192")
        a(f"buffer_load_dwordx4 {V(vW0)}, {SW1}, {sW1O} offen lds", f"w{n}")
        a(f"buffer_load_dwordx4 {V(vW1)}, {SW1}, {sW1O} offen offset:1024 lds", f"w{n}")
        if n == 7:
            a(f"s_sub_u32 {sW1O}, {sW1O}, {7*64*3584 - 128}")
        elif n < 15:
            a(f"s_add_u32 {sW1O}, {sW1O}, {64*3584}")

    def b1_load_list(self):
        L = []
        for c in range(8):
            for i in range(4):
                L.append(lambda c=c, i=i: self.ld_x(c, i))
            L.append(lambda c=c: self.ld_w1(c))
        for c in range(8):
            L.append(lambda c=c: self.ld_w1(8 + c))
        return L

    def addr_b1(self):
        a = self.a
        a(f"""
        s_lshl_b32 {sXBW}, {sW}, 12
        s_add_u32 {sXBW}, {sXBW}, {XB}
        v_lshrrev_b32 v27, 3, {V(vL)}
        v_and_b32 v28, 7, {V(vL)}
        v_lshrrev_b32 v29, 4, {V(vL)}
        v_lshrrev_b32 v30, 5, {V(vL)}
        v_xor_b32 v31, v28, v29
        v_lshlrev_b32 v31, 4, v31
        v_lshl_add_u32 v31, v27, 7, v31
        v_add_u32 {V(vXW0)}, {sXBW}, v31
        v_xor_b32 {V(vXW1)}, 64, {V(vXW0)}
        v_bfe_u32 v31, {V(vL)}, 1, 3
        v_xor_b32 v31, v31, v30
        v_lshlrev_b32 v31, 4, v31
        v_and_b32 v32, 31, {V(vL)}
        v_lshl_add_u32 v31, v32, 7, v31
        v_add_u32 v31, {sXBW}, v31
        v_bfe_u32 v32, {V(vL)}, 2, 2          ; r
        v_and_b32 v33, 3, {V(vL)}             ; c
        v_lshl_add_u32 v34, v30, 3, v32       ; 8*half + r
        v_lshlrev_b32 v34, 7, v34
        v_bfe_u32 v35, {V(vL)}, 3, 1          ; (r>>1)&1
        v_lshl_add_u32 v34, v35, 6, v34
        v_and_b32 v35, 1, v29
        v_lshl_add_u32 v34, v35, 5, v34
        v_lshl_add_u32 v34, v33, 3, v34
        """)
        for tt in range(4):
            a(f"""
            s_add_u32 {sT0}, {sW}, {tt}
            s_and_b32 {sT0}, {sT0}, 3
            s_lshl_b32 {sT1}, {sT0}, 5
            s_lshl_b32 {sT0}, {sT0}, 11
            v_xor_b32 {V(vXR[tt])}, {sT1}, v31
            v_add_u32 {V(vA[tt][0])}, {sT0}, v34
            v_xor_b32 {V(vA[tt][1])}, 64, {V(vA[tt][0])}
            """)
        a(f"""
        v_lshrrev_b32 v31, 2, {V(vL)}
        v_xor_b32 v31, v31, v29
        v_and_b32 v31, 1, v31
        v_add_u32 v31, -1, v31
        v_and_b32 v31, 0x3f803f80, v31
        v_accvgpr_write_b32 {A(aSEL)}, v31
        v_accvgpr_write_b32 {A(aSEL+1)}, v31
        v_accvgpr_write_b32 {A(aSEL+2)}, v31
        v_accvgpr_write_b32 {A(aSEL+3)}, v31
        """)

    def a1(self, fill):
        a = self.a
        a(f"""
        v_lshrrev_b32 v27, 4, {V(vL)}         ; G
        v_bfe_u32 v28, {V(vL)}, 2, 2          ; r
        v_and_b32 v29, 3, {V(vL)}             ; c
        v_lshrrev_b32 v30, 2, {V(vL)}         ; 4G + r
        v_lshlrev_b32 v30, 9, v30
        v_lshl_add_u32 v30, v29, 3, v30
        v_xor_b32 v31, {sW}, v28
        v_lshl_add_u32 v31, v31, 5, v30
        v_add_u32 v31, {KT + 1024}, v31
        v_add_u32 v32, 3, v28
        v_and_b32 v32, 3, v32
        v_xor_b32 v32, {sW}, v32
        v_lshl_add_u32 v32, v32, 5, v30
        v_add_u32 v32, {KT + 512}, v32
        v_bfe_u32 v33, {V(vL)}, 1, 3          ; i>>1
        v_mul_u32_u24 v33, 272, v33
        v_lshl_add_u32 v33, v27, 4, v33
        v_add_u32 v33, {sXBW}, v33
        v_and_b32 v34, 1, {V(vL)}
        v_lshlrev_b32 v34, 1, v34
        s_and_b32 {sT0}, {sST}, 3
        v_xor_b32 v34, {sT0}, v34
        v_xor_b32 v35, 1, v34
        v_lshl_add_u32 v34, v34, 6, v33
        v_lshl_add_u32 v35, v35, 6, v33
        v_and_b32 v36, 15, {V(vL)}
        v_lshlrev_b32 v36, 4, v36
        v_mul_u32_u24 v37, 272, v27
        v_add3_u32 v37, v37, v36, {sXBW}
        v_lshl_add_u32 v36, v27, 13, v36
        """)
        a.wait("a1")
        a("s_barrier")
        self.stamp("a1data")
        KR, VR, KF, VF, WF, U = 64, 78, 86, 114, 44, 48
        for s in range(-3, 4):
            base, imm = ("v31", s * 128) if s >= 0 else ("v32", (s + 4) * 128)
            a(f"ds_read_b64_tr_b16 {V(KR+2*(s+3),2)}, {base} offset:{imm}")
        for r in range(4):
            a(f"ds_read_b64_tr_b16 {V(VR+2*r,2)}, v31 offset:{VT-KT-1024+r*128}")
        ops = []
        ops += [f"v_lshlrev_b32 {V(WF)}, 16, {V(RING)}", f"v_and_b32 {V(WF+1)}, 0xffff0000, {V(RING)}",
                f"v_lshlrev_b32 {V(WF+2)}, 16, {V(RING+1)}", f"v_and_b32 {V(WF+3)}, 0xffff0000, {V(RING+1)}"]
        def unpack(dst, src):
            return [f"v_lshlrev_b32 {V(dst)}, 16, {V(src)}", f"v_and_b32 {V(dst+1)}, 0xffff0000, {V(src)}",
                    f"v_lshlrev_b32 {V(dst+2)}, 16, {V(src+1)}", f"v_and_b32 {V(dst+3)}, 0xffff0000, {V(src+1)}"]
        done = set()
        for rho in range(4):
            acc = 122
            for j in range(3, -1, -1):
                s = rho - j
                if s not in done:
                    ops += unpack(KF + 4 * (s + 3), KR + 2 * (s + 3))
                    done.add(s)
            vf = VF + 4 * (rho & 1)
            ops += unpack(vf, VR + 2 * rho)
            for j in range(3, -1, -1):
                s = rho - j
                wp = V(WF + (j & 2), 2)
                lo = j & 1
                for h in range(2):
                    k = V(KF + 4 * (s + 3) + 2 * h, 2)
                    d = V(acc + 2 * h, 2)
                    if j == 3:
                        ops.append(f"v_pk_mul_f32 {d}, {k}, {wp} op_sel:[0,{lo}] op_sel_hi:[1,{lo}]")
                    else:
                        ops.append(f"v_pk_fma_f32 {d}, {k}, {wp}, {d} op_sel:[0,{lo},0] op_sel_hi:[1,{lo},1]")
            for h in range(2):
                ops.append(f"v_pk_mul_f32 {V(acc+2*h,2)}, {V(acc+2*h,2)}, {V(vf+2*h,2)}")
            for h in range(2):
                ops.append(f"v_cvt_pk_bf16_f32 {V(U+2*rho+h)}, {V(acc+2*h)}, {V(acc+2*h+1)}")
            if rho & 1:
                ops.append(f"ds_write_b128 {'v34' if rho == 1 else 'v35'}, {V(U+4*(rho>>1),4)}")
        step = max(1, len(ops) // (len(fill) + 1))
        for n, op in enumerate(ops):
            a(op)
            if n % step == step - 1 and fill:
                fill.pop(0)()
        for f in fill:
            f()
        a(f"ds_read_b128 {V(U,4)}, v37")
        a(f"ds_read_b128 {V(U+4,4)}, v37 offset:1088")
        a(f"""
        s_lshl2_add_u32 {sT0}, {sDT}, {sW}
        s_lshl_b32 {sT1}, {sT0}, 16
        s_lshl_b32 {sT2}, {sST}, 8
        s_add_u32 {sT1}, {sT1}, {sT2}
        s_add_u32 {sT2}, {sT1}, {4*8192}
        s_add_u32 s42, s42, 0x7f4a7c15
        s_addc_u32 s43, s43, 0x9e3779b9
        v_mov_b32 {V(vTAG)}, s42
        v_mov_b32 {V(vTAG+1)}, s43
        """)
        a(f"buffer_store_dwordx4 {V(U,4)}, v36, {SWS}, {sT1} offen sc1", "kvst")
        a(f"buffer_store_dwordx4 {V(U+4,4)}, v36, {SWS}, {sT2} offen sc1", "kvst")

    def kv_flag(self):
        a = self.a
        a(f"""
        s_lshl2_add_u32 {sT0}, {sDT}, {sW}
        s_lshl_b32 {sT1}, {sST}, 5
        s_add_u32 {sT0}, {sT0}, {sT1}
        s_lshl_b32 {sT0}, {sT0}, 7
        s_add_u32 {sT0}, {sT0}, {FL_KV}
        """)
        a.wait("kvst")
        self.flag_store(sT0)

    def x_write(self, c):
        for i in range(4):
            self.a(f"ds_write_b128 {V(vXW1 if i & 1 else vXW0)}, {V(XR+16*c+4*i,4)} offset:{i*1024}")

    def x_read(self, c):
        for tt in range(4):
            self.a(f"ds_read_b128 {V(XR+16*c+4*tt,4)}, {V(vXR[tt])}")

    def w_frag(self, c, tt, fb, slot):
        r = RING + 8 * slot + 4 * fb
        for jj in range(2):
            self.a(f"ds_read_b64_tr_b16 {V(r+2*jj,2)}, {V(vA[tt][fb])} offset:{c*8192+jj*512}")

    def b1_pass(self, hf, fill):
        a = self.a
        for c in range(8):
            for tt in range(4):
                step = 32 * hf + 4 * c + tt
                slot = step % 3
                nxt = step + 1
                x = V(XR + 16 * c + 4 * tt, 4)
                for fb in range(2):
                    acc = V(ACC + 32 * hf + 16 * fb, 16)
                    fr = V(RING + 8 * slot + 4 * fb, 4)
                    first = (c == 0 and tt == 0)
                    pos = 2 * tt + fb
                    if pos == 6 and nxt < 64:
                        a.wait(f"w{nxt//4}")
                        a("s_barrier")
                        if nxt == 32:
                            for t2 in range(4):
                                for f2 in range(2):
                                    a(f"v_add_u32 {V(vA[t2][f2])}, 0x10000, {V(vA[t2][f2])}")
                    a(f"v_mfma_f32_32x32x16_bf16 {acc}, {fr}, {x}, {'0' if first else acc}")
                    if nxt < 64:
                        self.w_frag((nxt // 4) % 8, nxt % 4, fb, nxt % 3)
                    if tt == 0:
                        cc = A(aC + 8 * hf + 4 * fb, 4)
                        a(f"v_mfma_f32_16x16x32_bf16 {cc}, {A(aSEL,4)}, {fr}, {'0' if c == 0 else cc}")
                    if hf == 0 and fb == 1:
                        mm = A(aM, 4)
                        a(f"v_mfma_f32_16x16x32_bf16 {mm}, {A(aSEL,4)}, {x}, {'0' if first else mm}")
                    if hf == 0 and c < 7:
                        if pos == 2:
                            self.x_write(c + 1)
                        if pos == 3:
                            self.x_read(c + 1)
                    for f in fill.get((c, pos), []):
                        f()
            self.stamp(f"p{hf+1}.c{c}")

    def c_publish(self, hf):
        a = self.a
        a(f"""
        v_accvgpr_read_b32 v27, {A(aC+8*hf)}
        v_accvgpr_read_b32 v28, {A(aC+8*hf+4)}
        v_cmp_gt_u32 vcc, 32, {V(vL)}
        s_lshl_b32 {sT0}, {sW}, 3
        s_add_u32 {sT0}, {sT0}, {CX + 2048*hf}
        v_cndmask_b32 v27, v28, v27, vcc
        v_and_b32 v28, 0xffff0000, v27
        v_sub_f32 v27, v27, v28
        v_and_b32 v29, 0xffff0000, v27
        v_sub_f32 v27, v27, v29
        v_lshrrev_b32 v28, 16, v28
        v_or_b32 v28, v28, v29
        v_lshrrev_b32 v29, 16, v27
        v_lshlrev_b32 v30, 5, {V(vL)}
        v_add_u32 v30, {sT0}, v30
        """)
        a("ds_write_b64 v30, v[28:29]", "cx")

    def m_finish(self):
        a = self.a
        a(f"""
        v_accvgpr_read_b32 v27, {A(aM)}
        v_mul_f32 v27, 0xbb000000, v27
        v_cvt_pk_bf16_f32 v27, v27, v27
        v_accvgpr_write_b32 {A(aM)}, v27
        v_accvgpr_write_b32 {A(aM+1)}, v27
        v_accvgpr_write_b32 {A(aM+2)}, v27
        v_accvgpr_write_b32 {A(aM+3)}, v27
        """)

    def c_read(self, hf):
        a = self.a
        a(f"""
        v_and_b32 v27, 31, {V(vL)}
        v_lshrrev_b32 v28, 5, {V(vL)}
        v_lshlrev_b32 v27, 5, v27
        v_lshl_add_u32 v27, v28, 4, v27
        v_add_u32 v27, {CX + 2048*hf}, v27
        ds_read_b128 v[28:31], v27
        ds_read_b128 v[32:35], v27 offset:1024
        """)

    def c_apply(self, hf, fb):
        acc = V(ACC + 32 * hf + 16 * fb, 16)
        self.a(f"v_mfma_f32_32x32x16_bf16 {acc}, {V(28+4*fb,4)}, {A(aM,4)}, {acc}")

    def h_store(self, hf, fb, q01):
        a = self.a
        r = ACC + 32 * hf + 16 * fb + 8 * q01
        for i in range(4):
            a(f"v_cvt_pk_bf16_f32 {V(r+i)}, {V(r+2*i)}, {V(r+2*i+1)}")
        a(f"s_add_u32 {sT0}, {sHO}, {(hf*56 + (2*fb+q01)*14)*1024}")
        for i in range(4):
            a(f"v_pk_max_i16 {V(r+i)}, {V(r+i)}, 0")
        a(f"buffer_store_dwordx4 {V(r,4)}, {V(vL16)}, {SWS}, {sT0} offen sc1", f"hst{hf}")

    def h_flag(self, hf):
        a = self.a
        a(f"s_add_u32 {sT0}, {sFH}, {128*hf}")
        a.wait(f"hst{hf}")
        self.flag_store(sT0)

    def w2_init(self):
        self.a(f"""
        s_lshl_b32 {sW2O}, {sW}, 14
        s_lshl_b32 {sT0}, {sDT}, 7
        s_add_u32 {sW2O}, {sW2O}, {sT0}
        """)

    def ld_w2(self, idx):
        a = self.a
        a(f"buffer_load_dwordx4 {A(8*idx,4)}, {V(vV0)}, {SW2}, {sW2O} offen")
        a(f"buffer_load_dwordx4 {A(8*idx+4,4)}, {V(vV1)}, {SW2}, {sW2O} offen")
        if idx == 13:
            a(f"s_sub_u32 {sW2O}, {sW2O}, {13*131072 - 65536}")
        elif idx < 27:
            a(f"s_add_u32 {sW2O}, {sW2O}, 131072")

    HK = 64
    def ld_hk(self):
        a = self.a
        a(f"""
        s_lshr_b32 {sT0}, {sW}, 1
        s_lshl1_add_u32 {sT0}, s2, {sT0}
        s_lshl_b32 {sT0}, {sT0}, 12
        s_and_b32 {sT1}, {sW}, 1
        s_lshl_b32 {sT1}, {sT1}, 2
        s_sub_u32 {sT0}, {sT0}, {sT1}
        s_add_u32 {sT0}, {sT0}, 8
        """)
        nt = " nt" if self.o["nt_hk"] else ""
        for i in range(4):
            a(f"buffer_load_dwordx4 {V(self.HK+4*i,4)}, {V(vL16)}, {SHK}, {sT0} offen offset:{1024*i}{nt}")

    def p_head(self):
        a = self.a
        a(f"""
        s_lshr_b32 {sT0}, {sW}, 1
        s_lshl_b32 {sT0}, {sT0}, 4
        s_lshr_b32 {sT0}, {sD}, {sT0}
        s_lshl_b32 {sT0}, {sT0}, 16
        s_lshl_b32 {sT1}, {sH0}, 16
        v_mov_b32 v80, {sT0}
        v_add_f32 v80, {sT1}, v80
        v_cvt_pk_bf16_f32 v80, v80, v80
        s_mul_i32 {sT2}, {sW}, 8256
        v_mov_b32 v84, 0
        v_readfirstlane_b32 {sT0}, v80
        v_mov_b32 v85, 0
        v_mov_b32 v86, 0
        v_mov_b32 v87, 0
        s_and_b32 {sT0}, {sT0}, 0xffff
        s_and_b32 {sT1}, {sH0}, 0xffff0000
        s_or_b32 {sT0}, {sT0}, {sT1}            ; (h0 + D, h1)
        s_bitcmp1_b32 {sW}, 0
        s_cselect_b32 s57, {sT0}, {sH1}
        s_cselect_b32 {sT0}, 0, {sT0}
        s_lshl_b32 {sT1}, {sT0}, 16
        s_lshl_b32 {sT3}, s57, 16
        v_writelane_b32 v86, {sT0}, 1
        s_lshr_b32 {sT0}, {sT0}, 16
        v_writelane_b32 v87, s57, 1
        s_or_b32 {sT3}, {sT3}, {sT0}
        v_writelane_b32 v86, {sT1}, 3
        v_writelane_b32 v87, {sT3}, 3
        v_and_b32 v80, 1, {V(vL)}
        v_lshrrev_b32 v81, 1, {V(vL)}
        v_mul_u32_u24 v81, 4128, v81
        v_lshl_add_u32 v80, v80, 4, v81
        v_add_u32 v80, {sT2}, v80
        v_add_u32 v27, {sT2}, {V(vL16)}
        v_lshlrev_b32 v81, 2, v0
        s_mov_b64 exec, 15
        ds_write_b128 v80, v[84:87] offset:{PB}
        s_mov_b64 exec, -1
        """)
        a(f"ds_write_b32 v81, v84 offset:{KV}", "pw")

    def p_body(self, i):
        a = self.a
        r = self.HK + 4 * i
        a(f"""
        v_mov_b32 v80, s57
        ds_write_b128 v27, {V(r,4)} offset:{PB + 32 + 1024*i}
        v_readlane_b32 s57, {V(r+3)}, 63
        v_mov_b32_dpp v80, {V(r+3)} wave_shr:1 row_mask:0xf bank_mask:0xf
        v_alignbyte_b32 v85, {V(r+1)}, {V(r)}, 2
        v_alignbyte_b32 v86, {V(r+2)}, {V(r+1)}, 2
        v_alignbyte_b32 v87, {V(r+3)}, {V(r+2)}, 2
        v_alignbyte_b32 v84, {V(r)}, v80, 2
        """)
        a(f"ds_write_b128 v27, v[84:87] offset:{PB + 4128 + 32 + 1024*i}", "pw")

    def kv_poll_issue(self):
        a = self.a
        a(f"""
        v_and_b32 {V(vPO)}, 7, {V(vL)}
        v_lshlrev_b32 {V(vPO)}, 12, {V(vPO)}
        s_lshl_b32 s40, {sW}, 15
        s_lshr_b32 {sT0}, s2, 3
        s_lshl_b32 {sT0}, {sT0}, 7
        s_add_u32 s40, s40, {sT0}
        s_add_u32 s40, s40, {FL_KV}
        """)
        self.poll_issue("s40")

    def kv_fetch(self, name):
        a = self.a
        self.poll_check(name, "s40")
        a(f"""
        s_lshl_b32 {sT0}, s2, 13
        s_lshl_b32 {sT1}, {sW}, 11
        s_add_u32 m0, {sT1}, {KV + 1024}
        s_add_u32 {sT0}, {sT0}, {sT1}
        """)
        a(f"buffer_load_dwordx4 {V(vL16)}, {SWS}, {sT0} offen sc1 lds", "kv")
        a(f"buffer_load_dwordx4 {V(vL16)}, {SWS}, {sT0} offen offset:1024 sc1 lds", "kv")

    def conv_addr(self):
        a = self.a
        a(f"""
        v_lshrrev_b32 v27, 4, {V(vL)}          ; G
        v_bfe_u32 v28, {V(vL)}, 2, 2           ; r
        v_and_b32 v29, 3, {V(vL)}              ; c
        v_lshl_add_u32 v29, v27, 2, v29
        v_sub_u32 v29, v29, v28
        s_mul_i32 {sT0}, {sW}, 8256
        s_add_u32 {sT0}, {sT0}, {PB + 24}
        v_lshlrev_b32 v29, 3, v29
        v_add_u32 v12, {sT0}, v29
        v_and_b32 v28, 15, {V(vL)}
        v_sub_u32 v28, v28, v27                ; a - G
        """)
        for e in range(4):
            a(f"""
            v_add_u32 v29, {16 - 4*e}, v28
            v_lshrrev_b32 v30, 2, v29
            v_and_b32 v31, 3, v30
            v_xor_b32 v31, {sW}, v31
            v_lshlrev_b32 v30, 8, v30
            v_lshl_add_u32 v30, v31, 6, v30
            v_and_b32 v29, 3, v29
            v_lshl_add_u32 v30, v29, 4, v30
            v_add_u32 {V(13+e)}, {KV}, v30
            """)

    def conv_reads(self, e):
        base = XR + 64 * (e & 1)
        L = []
        order = []
        for n in range(8):
            order.append(("B", n))
            order.append(("A", n))
        for kind, n in order:
            if kind == "A":
                for ph in range(2):
                    L.append(f"ds_read_b64_tr_b16 {V(base+4*n+2*ph,2)}, v12 offset:{ph*4128 + 128*(4*n+e)}")
            else:
                L.append(f"ds_read_b128 {V(base+32+4*n,4)}, {V(13+e)} offset:{1024*n}")
        return L

    def conv(self, fill):
        a = self.a
        for op in self.conv_reads(0):
            a(op)
        k = 0
        for e in range(4):
            base = XR + 64 * (e & 1)
            nxt = self.conv_reads(e + 1) if e < 3 else []
            prs = sorted([(n, d) for n in range(8) for d in range(8) if n + d < 8], key=lambda p: (max(p), p[0] + p[1]))
            seen = set()
            for i, (n, d) in enumerate(prs):
                acc = A(aY + 4 * (n + d), 4)
                first = (e == 0 and (n + d) not in seen)
                seen.add(n + d)
                a(f"v_mfma_f32_16x16x32_bf16 {acc}, {V(base+4*n,4)}, {V(base+32+4*d,4)}, {'0' if first else acc}")
                if nxt and i >= 8:
                    a(nxt.pop(0))
                for f in fill.get(k, []):
                    f()
                k += 1
            for op in nxt:
                a(op)
            self.stamp(f"cv.e{e}")

    def y_out(self):
        a = self.a
        a(f"""
        v_lshrrev_b32 v27, 4, {V(vL)}
        v_and_b32 v28, 15, {V(vL)}
        v_mul_u32_u24 v27, 20, v27
        v_add_lshl_u32 v27, v27, v28, 4
        s_mul_i32 {sT0}, {sW}, 10240
        s_add_u32 {sT0}, {sT0}, {EX}
        v_add_u32 v27, {sT0}, v27
        v_and_b32 v28, 3, {V(vL)}
        v_lshrrev_b32 v29, 2, {V(vL)}
        v_mul_u32_u24 v28, 20, v28
        v_add_lshl_u32 v28, v28, v29, 4
        s_mul_i32 {sT0}, {sW}, 2560
        s_add_u32 {sT0}, {sT0}, {EX}
        v_add_u32 v28, {sT0}, v28
        """)
        for t in range(8):
            a(f"ds_write_b128 v27, {A(aY+4*t,4)} offset:{1280*t}", "ex")
        a.wait("ex")
        a("s_barrier")
        R = 64
        for t in range(2):
            for src in range(4):
                a(f"ds_read_b128 {V(R+16*t+4*src,4)}, v28 offset:{10240*src + 1280*t}")
        a(f"""
        s_lshl_b32 {sT0}, s2, 13
        s_lshl_b32 {sT1}, {sW}, 11
        s_add_u32 {sT0}, {sT0}, {sT1}
        s_add_u32 {sT0}, {sT0}, {YWS}
        """)
        for t in range(2):
            b = R + 16 * t
            for h in range(2):
                a(f"v_pk_add_f32 {V(b+2*h,2)}, {V(b+2*h,2)}, {V(b+4+2*h,2)}")
                a(f"v_pk_add_f32 {V(b+8+2*h,2)}, {V(b+8+2*h,2)}, {V(b+12+2*h,2)}")
            for i in range(4):
                a(f"v_cvt_pk_bf16_f32 {V(b+4+i)}, {V(b+i)}, {V(b+8+i)}")
            a(f"buffer_store_dwordx4 {V(b+4,4)}, {V(vL16)}, {SWS}, {sT0} offen offset:{1024*t} sc1", "yst")

    def y_flag(self):
        a = self.a
        a(f"""
        s_lshl2_add_u32 {sT0}, s2, {sW}
        s_lshl_b32 {sT0}, {sT0}, 7
        s_add_u32 {sT0}, {sT0}, {FL_Y}
        """)
        a.wait("yst")
        self.flag_store(sT0)

    def h_poll_addr(self):
        a = self.a
        a(f"""
        v_and_b32 v27, 1, {V(vL)}
        v_lshrrev_b32 v28, 1, {V(vL)}
        v_min_u32 v28, 13, v28
        v_mul_u32_u24 v27, 14, v27
        v_add_lshl_u32 {V(vPO)}, v27, v28, 8
        s_mul_i32 s40, {sST}, {28*256}
        s_add_u32 s40, s40, {FL_H}
        s_mul_i32 {sHL}, {sST}, 224
        s_mul_i32 {sT0}, {sW}, 14
        s_add_u32 {sHL}, {sHL}, {sT0}
        s_lshl_b32 {sHL}, {sHL}, 10
        s_add_u32 {sHL}, {sHL}, {HWS}
        v_add_u32 v17, {112*1024}, {V(vL16)}
        """)

    def hslot(self, k, sb):
        return XR + 4 * ((2 * k + sb) % 32)

    def ld_h(self, k):
        a = self.a
        hf, T = divmod(k, 14)
        if T % 4 == 0:
            a(f"s_add_u32 s41, {sHL}, {(hf*56 + T)*1024}")
        for sb in range(2):
            a(f"buffer_load_dwordx4 {V(self.hslot(k,sb),4)}, {V(17 if sb else vL16)}, {SWS}, s41 offen offset:{1024*(T%4)} sc1")

    def b2_addr(self):
        a = self.a
        a(f"""
        v_add_u32 v12, {sXBW}, {V(vL16)}
        v_lshrrev_b32 v27, 5, {V(vL)}
        v_bfe_u32 v28, {V(vL)}, 2, 2
        v_lshl_add_u32 v27, v27, 2, v28
        v_lshlrev_b32 v27, 7, v27
        v_bfe_u32 v28, {V(vL)}, 3, 1
        v_lshl_add_u32 v27, v28, 6, v27
        v_bfe_u32 v28, {V(vL)}, 4, 1
        v_lshl_add_u32 v27, v28, 5, v27
        v_and_b32 v28, 3, {V(vL)}
        v_lshl_add_u32 v27, v28, 3, v27
        v_add_u32 v13, {sXBW}, v27
        v_xor_b32 v14, 64, v13
        """)

    def w2_frag(self, k):
        a = self.a
        r = RING + 8 * (k % 3)
        a(f"ds_write_b128 v12, {A(8*k,4)}")
        a(f"ds_write_b128 v12, {A(8*k+4,4)} offset:1024")
        for nb in range(2):
            for jj in range(2):
                a(f"ds_read_b64_tr_b16 {V(r+4*nb+2*jj,2)}, {V(13+nb)} offset:{1024*jj}")

    def b2(self, fill):
        a = self.a
        self.w2_frag(0)
        for k in range(28):
            r = RING + 8 * (k % 3)
            for q in range(4):
                sb, nb = q >> 1, q & 1
                acc = V(ACC + 16 * q, 16)
                a(f"v_mfma_f32_32x32x16_bf16 {acc}, {V(r+4*nb,4)}, {V(self.hslot(k,sb),4)}, {'0' if k == 0 else acc}")
                if q == 0 and k < 27:
                    self.w2_frag(k + 1)
                for f in fill.get((k, q), []):
                    f()
            if k % 2 == 1:
                self.stamp(f"b2.k{k}")

    EXR, EYR, ESR = 224, 232, 240
    def y_poll_issue(self):
        a = self.a
        a(f"""
        v_and_b32 {V(vPO)}, 31, {V(vL)}
        v_lshlrev_b32 {V(vPO)}, 9, {V(vPO)}
        s_lshl_b32 s40, {sDT}, 14
        s_lshr_b32 {sT0}, {sST}, 3
        s_lshl_b32 {sT0}, {sT0}, 7
        s_add_u32 s40, s40, {sT0}
        s_add_u32 s40, s40, {FL_Y}
        """)
        self.poll_issue("s40")

    def ep_loads(self):
        a = self.a
        a(f"""
        v_lshrrev_b32 v27, 3, {V(vL)}
        v_lshlrev_b32 v18, 4, v27
        s_lshl_b32 {sT0}, {sST}, 10
        s_lshl_b32 {sT1}, {sW}, 8
        s_add_u32 {sT0}, {sT0}, {sT1}
        s_add_u32 s57, {sT0}, {STAT}
        s_add_u32 {sT1}, {sEO}, 8192
        """)
        a(f"buffer_load_dwordx4 {V(self.ESR,4)}, v18, {SWS}, s57 offen sc1")
        a(f"buffer_load_dwordx4 {V(self.ESR+4,4)}, v18, {SWS}, s57 offen offset:128 sc1")
        a(f"buffer_load_dwordx4 {V(self.EXR,4)}, {V(vXO)}, {SX}, {sEO} offen")
        a(f"buffer_load_dwordx4 {V(self.EXR+4,4)}, {V(vXO)}, {SX}, {sT1} offen")

    def y_fetch(self):
        a = self.a
        a(f"""
        v_lshrrev_b32 v27, 3, {V(vL)}
        v_and_b32 v28, 7, {V(vL)}
        v_lshrrev_b32 v29, 4, {V(vL)}
        v_xor_b32 v29, v28, v29                ; idx
        v_lshrrev_b32 v30, 2, v29
        v_lshl_add_u32 v30, v27, 1, v30
        v_and_b32 v29, 3, v29
        v_lshlrev_b32 v29, 4, v29
        v_lshl_add_u32 v30, v30, 13, v29
        v_xor_b32 v31, 0x2000, v30
        v_add_u32 v31, {16*8192 - 1024}, v31
        s_lshl_b32 {sT0}, {sDT}, 18
        s_lshl_b32 {sT1}, {sST}, 8
        s_lshl_b32 {sT2}, {sW}, 6
        s_add_u32 {sT0}, {sT0}, {sT1}
        s_add_u32 {sT0}, {sT0}, {sT2}
        s_add_u32 {sT0}, {sT0}, {YWS}
        s_add_u32 m0, {sXBW}, 2048
        """)
        self.poll_check("y", "s40")
        a(f"buffer_load_dwordx4 v30, {SWS}, {sT0} offen sc1 lds", "y")
        a(f"buffer_load_dwordx4 v31, {SWS}, {sT0} offen offset:1024 sc1 lds", "y")

    def y_read(self):
        a = self.a
        a(f"""
        v_lshrrev_b32 v27, 5, {V(vL)}
        v_and_b32 v28, 7, {V(vL)}
        v_xor_b32 v27, v27, v28
        v_lshlrev_b32 v27, 4, v27
        v_lshl_add_u32 v27, v28, 8, v27
        v_bfe_u32 v28, {V(vL)}, 3, 2
        v_lshl_add_u32 v27, v28, 2, v27
        v_add_u32 v27, {sXBW}, v27
        v_xor_b32 v28, 64, v27
        v_xor_b32 v29, 32, v27
        v_xor_b32 v30, 0x60, v27
        """)
        a.wait("y")
        for st in range(2):
            for e in range(4):
                a(f"ds_read_b32 {V(self.EYR+4*st+e)}, {V(27 + 2*st + (e & 1))} offset:{2048 + 128*(e >> 1)}")

    def stat_check(self):
        a = self.a
        S = self.ESR
        a(f"v_cmp_ne_u64 vcc, {sTAG}, {V(S+2,2)}")
        a(f"v_cmp_ne_u64 s[60:61], {sTAG}, {V(S+6,2)}")
        a("s_or_b64 vcc, vcc, s[60:61]")
        a("s_cbranch_vccnz L_slow_st")
        a.label("L_back_st")
        self.slow.append(f"""L_slow_st:
    s_mov_b32 {sCNT}, 0
L_spin_st:
    buffer_load_dwordx4 {V(S,4)}, v18, {SWS}, s57 offen sc1
    buffer_load_dwordx4 {V(S+4,4)}, v18, {SWS}, s57 offen offset:128 sc1
    s_add_u32 {sCNT}, {sCNT}, 1
    s_cmp_gt_u32 {sCNT}, 20000
    s_waitcnt vmcnt(0)
    s_cbranch_scc1 L_back_st
    v_cmp_ne_u64 vcc, {sTAG}, {V(S+2,2)}
    v_cmp_ne_u64 s[60:61], {sTAG}, {V(S+6,2)}
    s_or_b64 vcc, vcc, s[60:61]
    s_cbranch_vccnz L_spin_st
    s_branch L_back_st
""")

    XF, TF = 128, 144
    def ep_pre(self, st, e):
        a = self.a
        x, y = self.EXR + 4 * st + e, self.EYR + 4 * st + e
        xf, tf = self.XF + 8 * st + 2 * e, self.TF + 8 * st + 2 * e
        m = V(self.ESR + 4 * st, 2)
        a(f"""
        v_lshlrev_b32 {V(xf)}, 16, {V(x)}
        v_and_b32 {V(xf+1)}, 0xffff0000, {V(x)}
        v_lshlrev_b32 v32, 16, {V(y)}
        v_and_b32 v33, 0xffff0000, {V(y)}
        v_pk_add_f32 {V(tf,2)}, {V(xf,2)}, {m} op_sel:[0,0] op_sel_hi:[1,0] neg_lo:[0,1] neg_hi:[0,1]
        v_pk_mul_f32 {V(tf,2)}, {V(tf,2)}, v[32:33]
        """)

    def ep_addr(self):
        a = self.a
        a(f"""
        v_and_b32 v27, 31, {V(vL)}
        v_mul_u32_u24 v27, 272, v27
        v_lshrrev_b32 v28, 5, {V(vL)}
        v_lshl_add_u32 v27, v28, 4, v27
        s_mul_i32 {sT0}, {sW}, 17408
        v_add_u32 v15, {sT0}, v27
        v_lshrrev_b32 v27, 3, {V(vL)}
        v_mul_u32_u24 v27, 272, v27
        v_and_b32 v28, 7, {V(vL)}
        v_lshl_add_u32 v27, v28, 5, v27
        s_mul_i32 {sT0}, {sW}, {16*272}
        v_add_u32 v16, {sT0}, v27
        """)

    def epilogue(self):
        a = self.a
        for q in range(4):
            sb, nb = q >> 1, q & 1
            for g in range(4):
                a(f"ds_write_b128 v15, {V(ACC+16*q+4*g,4)} offset:{RED + sb*8704 + nb*128 + g*32}", "red")
        a.wait("red")
        a("s_barrier")
        self.stamp("redbar")
        R = 160
        for st in range(2):
            for src in range(4):
                for hh in range(2):
                    a(f"ds_read_b128 {V(R+32*st+8*src+4*hh,4)}, v16 offset:{RED + src*17408 + st*2176 + hh*16}")
        a(f"s_add_u32 {sT1}, {sEO}, 8192")
        for st in range(2):
            tf, xf = self.TF + 8 * st, self.XF + 8 * st
            for src in range(4):
                for p in range(4):
                    a(f"v_pk_add_f32 {V(tf+2*p,2)}, {V(tf+2*p,2)}, {V(R+32*st+8*src+2*p,2)}")
            rr = V(self.ESR + 4 * st, 2)
            for p in range(4):
                a(f"v_pk_fma_f32 {V(tf+2*p,2)}, {V(tf+2*p,2)}, {rr}, {V(xf+2*p,2)} op_sel:[0,1,0] op_sel_hi:[1,1,1]")
            for p in range(4):
                a(f"v_cvt_pk_bf16_f32 {V(xf+p)}, {V(tf+2*p)}, {V(tf+2*p+1)}")
            a(f"buffer_store_dwordx4 {V(xf,4)}, {V(vXO)}, {SO}, {sT1 if st else sEO} offen")

    def stats(self):
        a = self.a
        a("v_mov_b32 v27, 0x3f803f80")
        def red8(r):
            a(f"v_add_f32_dpp {V(r)}, {V(r)}, {V(r)} quad_perm:[1,0,3,2] row_mask:0xf bank_mask:0xf")
            a(f"v_add_f32_dpp {V(r)}, {V(r)}, {V(r)} quad_perm:[2,3,0,1] row_mask:0xf bank_mask:0xf")
            a(f"v_add_f32_dpp {V(r)}, {V(r)}, {V(r)} row_half_mirror row_mask:0xf bank_mask:0xf")
        for i in range(2):
            a(f"v_mov_b32 {V(64+8*i)}, 0")
            a(f"v_mov_b32 {V(65+8*i)}, 0")
        for c in range(8):
            for j in range(4):
                for i in range(2):
                    a(f"v_dot2c_f32_bf16 {V(64+8*i+(j&1))}, {V(XR+16*c+4*i+j)}, v27")
        for i in range(2):
            a(f"v_add_f32 {V(64+8*i)}, {V(64+8*i)}, {V(65+8*i)}")
        for i in range(2):
            red8(64 + 8 * i)
        for i in range(2):
            a(f"v_mul_f32 {V(64+8*i)}, 0x3b000000, {V(64+8*i)}")
            a(f"v_mov_b32 {V(66+8*i)}, 0")
            a(f"v_mov_b32 {V(67+8*i)}, 0")
        for c in range(8):
            for j in range(4):
                for i in range(2):
                    x = V(XR + 16 * c + 4 * i + j)
                    t = 68 + 8 * i
                    a(f"v_lshlrev_b32 {V(t)}, 16, {x}")
                    a(f"v_and_b32 {V(t+1)}, 0xffff0000, {x}")
                    a(f"v_pk_add_f32 {V(t,2)}, {V(t,2)}, {V(64+8*i,2)} op_sel:[0,0] op_sel_hi:[1,0] neg_lo:[0,1] neg_hi:[0,1]")
                    a(f"v_pk_fma_f32 {V(66+8*i,2)}, {V(t,2)}, {V(t,2)}, {V(66+8*i,2)}")
        for i in range(2):
            a(f"v_add_f32 {V(66+8*i)}, {V(66+8*i)}, {V(67+8*i)}")
        for i in range(2):
            red8(66 + 8 * i)
        a(f"""
        v_lshrrev_b32 v28, 3, {V(vL)}
        v_lshlrev_b32 v28, 4, v28
        s_lshr_b32 {sT0}, {sXO[0]}, 6
        s_add_u32 {sT0}, {sT0}, {STAT}
        """)
        for i in range(2):
            m, v = 64 + 8 * i, 66 + 8 * i
            a(f"""
            v_mul_f32 {V(v)}, 0x3b000000, {V(v)}
            v_cvt_pk_bf16_f32 {V(v)}, {V(v)}, {V(m)}
            v_and_b32 {V(m)}, 0xffff0000, {V(v)}
            v_lshlrev_b32 {V(v)}, 16, {V(v)}
            v_add_f32 {V(v)}, 0x3727c5ac, {V(v)}
            v_cvt_pk_bf16_f32 {V(v)}, {V(v)}, {V(v)}
            v_lshlrev_b32 {V(v)}, 16, {V(v)}
            v_sqrt_f32 {V(v)}, {V(v)}
            v_cvt_pk_bf16_f32 {V(v)}, {V(v)}, {V(v)}
            v_lshlrev_b32 {V(v)}, 16, {V(v)}
            v_rcp_f32 {V(m+1)}, {V(v)}
            v_mov_b32 {V(m+2)}, {V(vTAG)}
            v_mov_b32 {V(m+3)}, {V(vTAG+1)}
            """)
        a("s_mov_b32 exec_lo, 0x01010101")
        a("s_mov_b32 exec_hi, 0x01010101")
        for i in range(2):
            a(f"buffer_store_dwordx4 {V(64+8*i,4)}, v28, {SWS}, {sT0} offen offset:{128*i} sc1")
        a("s_mov_b64 exec, -1")

    def gen_update(self):
        a = self.a
        a(f"s_cmp_lg_u32 s2, {28*8}")
        a("s_cbranch_scc1 L_nogen")
        a.wait_all()
        a.raw(f"""    v_lshlrev_b32 v28, 7, v0
    s_mov_b32 {sT1}, {FL_KV}
L_gen_next:
    s_mov_b32 {sCNT}, 0
L_gen_spin:
    buffer_load_dwordx2 v[30:31], v28, {SWS}, {sT1} offen sc1
    s_add_u32 {sCNT}, {sCNT}, 1
    s_cmp_gt_u32 {sCNT}, 20000
    s_waitcnt vmcnt(0)
    s_cbranch_scc1 L_gen_got
    v_cmp_ne_u64 vcc, {sTAG}, v[30:31]
    s_cbranch_vccnz L_gen_spin
L_gen_got:
    s_add_u32 {sT1}, {sT1}, 0x8000
    s_cmp_lt_u32 {sT1}, {FL_KV + 0x20000}
    s_cbranch_scc1 L_gen_next
    s_barrier
    s_cmp_lg_u32 {sW}, 0
    s_cbranch_scc1 L_nogen
    s_mov_b32 {sT1}, {GEN}
    s_mov_b64 exec, 1
    buffer_store_dwordx2 {V(vTAG,2)}, off, {SWS}, {sT1} sc1
    s_mov_b64 exec, -1
    s_waitcnt vmcnt(0)
L_nogen:""")

    def build(self):
        a = self.a
        self.prologue()
        L = self.b1_load_list()
        NPRE, NA1 = 15, 10
        for _ in range(NPRE):
            L.pop(0)()
        self.addr_b1()
        self.a1([L.pop(0) for _ in range(NA1)])
        self.stamp("a1done")
        a(f"s_cmp_ge_u32 {sJ}, 28")
        a("s_cbranch_scc1 L_spare")
        st_spare = a.state()
        nL = len(L)
        self.stamp("p1.a1done")
        self.x_write(0)
        self.x_read(0)
        a.wait("w0")
        a("s_barrier")
        self.stamp("p1.w0")
        for fb in range(2):
            self.w_frag(0, 0, fb, 0)
        fill = {}
        def put(d, key, f):
            d.setdefault(key, []).append(f)
        slots = [(c, p) for c in range(8) for p in (0, 1, 4, 5, 7)]
        for i, f in enumerate(L):
            put(fill, slots[i], f)
        put(fill, (5, 0), self.kv_flag)
        self.b1_pass(0, fill)
        self.stamp("pass1")
        fill = {}
        put(fill, (0, 1), lambda: self.c_publish(0))
        put(fill, (0, 2), self.m_finish)
        put(fill, (0, 3), self.w2_init)
        put(fill, (0, 5), lambda: a.wait("cx"))
        put(fill, (0, 7), lambda: self.c_read(0))
        put(fill, (1, 0), lambda: self.c_apply(0, 0))
        put(fill, (1, 1), lambda: self.c_apply(0, 1))
        for q in range(4):
            put(fill, (1, 3 + q), lambda q=q: self.h_store(0, q >> 1, q & 1))
        put(fill, (2, 0), self.ld_hk)
        put(fill, (2, 1), self.kv_poll_issue)
        put(fill, (2, 2), self.p_head)
        w2 = list(range(28))
        for c in range(2, 8):
            for p in (3, 5):
                put(fill, (c, p), lambda k=w2.pop(0): self.ld_w2(k))
        put(fill, (4, 0), lambda: self.h_flag(0))
        for i in range(4):
            put(fill, (4, 1 + i), lambda i=i: self.p_body(i))
        put(fill, (5, 0), lambda: self.kv_fetch("kv"))
        self.b1_pass(1, fill)
        self.stamp("pass2")
        self.c_publish(1)
        self.conv_addr()
        a.wait("cx", "kv", "pw")
        a("s_barrier")
        self.stamp("cv.bar")
        self.c_read(1)
        self.c_apply(1, 0)
        self.c_apply(1, 1)
        for q in range(4):
            self.h_store(1, q >> 1, q & 1)
        w2_left = list(w2)
        a("s_branch L_conv")
        st_join = a.state()
        a.restore(st_spare)
        a.label("L_spare")
        for f in self.b1_load_list()[-nL:]:
            pass
        issued = NPRE + NA1
        for n in range(issued, 40):
            c, i = divmod(n, 5)
            if i < 2:
                self.ld_x(c, i)
        self.ld_hk()
        self.kv_flag()
        a("s_barrier")
        self.w2_init()
        self.p_head()
        for i in range(4):
            self.p_body(i)
        for k in range(28 - len(w2_left)):
            self.ld_w2(k)
        self.stats()
        self.kv_poll_issue()
        self.kv_fetch("kv2")
        self.conv_addr()
        self.gen_update()
        a.wait_all()
        a("s_barrier")
        a.restore(st_join)
        a.label("L_conv")
        self.stamp("convstart")
        self.stamp("cv.start")
        fill = {}
        for i, k in enumerate(w2_left):
            put(fill, 4 + 8 * i, lambda k=k: self.ld_w2(k))
        put(fill, 60, self.h_flag1)
        put(fill, 100, self.h_poll_addr)
        put(fill, 101, lambda: self.poll_issue("s40", 0))
        self.conv(fill)
        self.stamp("convend")
        self.y_out()
        self.stamp("cv.yout")
        self.b2_addr()
        self.poll_check("h0", "s40", 0)
        self.stamp("h0")
        self.stamp("cv.h0")
        for k in range(14):
            self.ld_h(k)
        self.poll_issue("s40", 128)
        self.stamp("cv.hissued")
        self.y_flag()
        self.stamp("cv.yflag")
        fill = {}
        put(fill, (2, 1), lambda: self.poll_check("h1", "s40", 128))
        put(fill, (2, 2), lambda: self.ld_h(14))
        put(fill, (2, 3), lambda: self.ld_h(15))
        for k in range(16, 28):
            put(fill, (3, k - 16) if k < 19 else (k - 15, 1), lambda k=k: self.ld_h(k))
        put(fill, (14, 1), self.y_poll_issue)
        put(fill, (15, 2), self.ep_addr)
        put(fill, (16, 1), self.ep_loads)
        put(fill, (18, 1), self.y_fetch)
        put(fill, (22, 1), self.y_read)
        put(fill, (23, 1), self.stat_check)
        n = 0
        for st in range(2):
            for e in range(4):
                put(fill, (24 + n // 2, 1 + 2 * (n & 1)), lambda st=st, e=e: self.ep_pre(st, e))
                n += 1
        self.b2(fill)
        self.stamp("b2end")
        self.epilogue()
        if self.o["diag"]:
            a.wait_all()
            self.stamp("end")
            a.wait_all()
            a(f"""
            s_lshl2_add_u32 {sT0}, s2, {sW}
            s_lshl_b32 {sT0}, {sT0}, 6
            s_add_u32 {sT0}, {sT0}, {STAMP}
            s_mov_b64 exec, 1
            """)
            for i in range(self.nst):
                a(f"v_mov_b32 v27, s{sSTAMP+2*i}")
                a(f"buffer_store_dword v27, off, {SWS}, {sT0} offset:{4*i}")
            if self.o.get("dbgwg") is not None:
                a(f"""
                s_lshl2_add_u32 {sT0}, s2, {sW}
                s_cmp_lg_u32 {sT0}, {4*self.o["dbgwg"]}
                s_cbranch_scc1 L_end
                s_load_dwordx2 s[4:5], s[0:1], 80
                s_mov_b32 s6, 256
                """)
                for i in range(self.nst):
                    a(f"s_sub_u32 {sT0}, s{sSTAMP+2*i}, s{sSTAMP}")
                    a(f"v_mov_b32 v27, {sT0}")
                    a(f"buffer_store_dword v27, off, {SX}, 0 offset:{4*i}")
        a.label("L_end")
        a("s_endpgm")
        for s in self.slow:
            a.raw(s)
        a.label("L_codeend")
        return self.wrap(a.text())

    def h_flag1(self):
        a = self.a
        a(f"s_add_u32 {sT0}, {sFH}, 128")
        a(f"s_cmp_lt_u32 {sJ}, 28")
        a(f"s_cselect_b32 {sT0}, {sT0}, {WS_SIZE}")
        a.wait("hst1")
        self.flag_store(sT0)

    def wrap(self, body):
        return f"""; Fused kernel: out = x + LN(x) * (longconv(shiftconv(k) * v) + D * kv) + relu(LN(x) @ w1) @ w2
; @launch grid=(256,1,1) block=(256,1,1) lds={LDS_SIZE}
.amdgcn_target "amdgcn-amd-amdhsa--gfx950"
.text
.globl {KN}
.p2align 8
.type {KN},@function
{KN}:
{body}
.section .rodata,"a"
.p2align 6
.amdhsa_kernel {KN}
  .amdhsa_next_free_vgpr 512
  .amdhsa_next_free_sgpr 102
  .amdhsa_accum_offset 256
  .amdhsa_group_segment_fixed_size 0
  .amdhsa_kernarg_size 96
  .amdhsa_user_sgpr_count 2
  .amdhsa_user_sgpr_kernarg_segment_ptr 1
  .amdhsa_system_sgpr_workgroup_id_x 1
  .amdhsa_float_denorm_mode_32 3
.end_amdhsa_kernel
"""


if __name__ == "__main__":
    opts = {}
    out = None
    for arg in sys.argv[1:]:
        if "=" in arg:
            k, v = arg.split("=")
            opts[k] = eval(v)
        else:
            out = arg
    g = Gen(**opts)
    txt = g.build()
    if out:
        open(out, "w").write(txt)
        if g.names:
            open(out + ".names", "w").write(" ".join(g.names))
    print("nops inserted:", g.a.nops, "lines:", txt.count("\n"), file=sys.stderr)
```

```python
import sys, os
sys.path.insert(0, os.path.dirname(os.path.abspath(__file__)))
from emit import Asm

KN = "parallel_sum__ssm_conv_h3__dense_activation_relu__prompt_kernel"

KVT = 0x000000
YWS = 0x200000
HWS = 0x400000
FL_KV = 0xC00000
FL_Y = 0xC20000
FL_H = 0xC40000
STAT = 0xC80000
GEN = 0xC90000
STAMP = 0xD00000
WS_SIZE = 0x1000000

XB = 131072
CX = 147456
KT = 131072 - 17408
VT = KT + 9216
PB = 0
KV = 33280
EX = 90112
RED = 0
LDS_SIZE = 163840

SX, SK, SV, SSH, SHK, SW1, SW2, SO, SWS = [f"s[{4*i}:{4*i+3}]" for i in range(1, 10)]
sTAG = "s[42:43]"
sW, sXCD, sJ = "s44", "s45", "s46"
sST, sDT = "s47", "s48"
sXO = ["s49", "s50", "s51", "s52"]
sW1O, sM0 = "s53", "s54"
sHO = "s55"
sD, sH0, sH1 = "s56", "s58", "s59"
sT0, sT1, sT2, sT3 = "s60", "s61", "s62", "s63"
sW2O = "s64"
sXBW = "s65"
sFH = "s66"
sCNT = "s67"
sHL = "s68"
sFT = "s69"
sEO = "s70"
sSTAMP = 72

def V(i, n=1):
    return f"v{i}" if n == 1 else f"v[{i}:{i+n-1}]"
def A(i, n=1):
    return f"a{i}" if n == 1 else f"a[{i}:{i+n-1}]"

vL, vL16, vXO, vW0, vW1 = 1, 2, 3, 4, 5
vXW0, vXW1 = 6, 7
vXR = [8, 9, 10, 11]
vA = [[12, 13], [14, 15], [16, 17], [18, 19]]
vV0, vV1 = 20, 21
vTAG = 22
vP = 24
vPO = 26
vT = 27
RING = 40
ACC = 64
XR = 128
aSEL, aM, aC = 224, 228, 232
aY = 224


class Gen:
    def __init__(self, **o):
        self.o = dict(diag=False, codepf=True, nt_kv=False, nt_hk=False)
        self.o.update(o)
        self.a = Asm()
        self.slow = []
        self.nst = 0
        self.names = []

    def stamp(self, name):
        if not self.o["diag"]:
            return
        grp = name.split(".")[0] if "." in name else "main"
        if name != "start" and grp not in self.o["diag"]:
            return
        r = sSTAMP + 2 * self.nst
        assert r + 1 < 102
        self.a(f"s_memrealtime s[{r}:{r+1}]")
        self.names.append(name)
        self.nst += 1

    def flag_store(self, soff):
        a = self.a
        a("s_mov_b64 exec, 1")
        a(f"buffer_store_dwordx2 {V(vTAG,2)}, off, {SWS}, {soff} sc1")
        a("s_mov_b64 exec, -1")

    def poll_issue(self, soff, imm=0):
        self.a(f"buffer_load_dwordx2 {V(vP,2)}, {V(vPO)}, {SWS}, {soff} offen offset:{imm} sc1")

    def poll_check(self, name, soff, imm=0):
        a = self.a
        a(f"v_cmp_ne_u64 vcc, {sTAG}, {V(vP,2)}")
        a(f"s_cbranch_vccnz L_slow_{name}")
        a.label(f"L_back_{name}")
        self.slow.append(f"""L_slow_{name}:
    s_mov_b32 {sCNT}, 0
L_spin_{name}:
    buffer_load_dwordx2 {V(vP,2)}, {V(vPO)}, {SWS}, {soff} offen offset:{imm} sc1
    s_add_u32 {sCNT}, {sCNT}, 1
    s_cmp_gt_u32 {sCNT}, 20000
    s_waitcnt vmcnt(0)
    s_cbranch_scc1 L_back_{name}
    v_cmp_ne_u64 vcc, {sTAG}, {V(vP,2)}
    s_cbranch_vccnz L_spin_{name}
    s_branch L_back_{name}
""")

    def prologue(self):
        a = self.a
        a(f"""
        s_cmp_ge_u32 s2, 0x100
        s_cbranch_scc1 L_end
        s_load_dwordx2 s[8:9], s[0:1], 8
        s_load_dwordx2 s[12:13], s[0:1], 16
        s_load_dwordx2 s[16:17], s[0:1], 24
        s_load_dwordx2 s[4:5], s[0:1], 0
        s_load_dwordx2 s[24:25], s[0:1], 56
        s_load_dwordx2 s[36:37], s[0:1], 88
        s_load_dwordx2 s[20:21], s[0:1], 32
        s_load_dwordx2 s[40:41], s[0:1], 40
        s_load_dwordx2 s[28:29], s[0:1], 64
        s_load_dwordx2 s[32:33], s[0:1], 72
        """)
        self.stamp("start")
        a(f"""
        v_lshrrev_b32 v27, 6, v0
        v_and_b32 {V(vL)}, 63, v0
        s_and_b32 {sXCD}, s2, 7
        v_readfirstlane_b32 {sW}, v27
        s_lshr_b32 {sJ}, s2, 3
        """)
        if self.o["codepf"]:
            a(f"""
            s_getpc_b64 s[60:61]
            L_pc:
            v_lshlrev_b32 v28, 7, v0
            v_min_u32 v28, L_codeend-L_pc-4, v28
            v_mov_b32 v29, s61
            v_add_co_u32 v28, vcc, s60, v28
            v_addc_co_u32 v29, vcc, 0, v29, vcc
            global_load_dword v39, v[28:29], off
            """)
        a(f"""
        s_mov_b32 s6, 0x200000
        s_mov_b32 s7, 0x20000
        s_mov_b64 s[10:11], s[6:7]
        s_mov_b64 s[14:15], s[6:7]
        s_mov_b64 s[22:23], s[6:7]
        s_mov_b64 s[34:35], s[6:7]
        s_mov_b32 s18, 0x1000
        s_mov_b32 s19, s7
        s_mov_b32 s30, 0x1c0000
        s_mov_b32 s31, s7
        s_mov_b32 s27, s7
        s_mov_b32 s38, {WS_SIZE}
        s_mov_b32 s39, s7
        s_cmp_lt_u32 {sJ}, 28
        s_cselect_b32 s26, s30, 0
        s_lshr_b32 {sT0}, {sJ}, 3
        s_lshl2_add_u32 {sST}, {sXCD}, {sT0}
        s_and_b32 {sDT}, {sJ}, 7
        v_lshlrev_b32 {V(vL16)}, 4, {V(vL)}
        v_lshrrev_b32 v27, 3, {V(vL)}          ; l>>3
        v_and_b32 v28, 7, {V(vL)}              ; l&7
        v_lshrrev_b32 v29, 4, {V(vL)}          ; l>>4
        v_lshrrev_b32 v30, 5, {V(vL)}          ; l>>5
        v_lshlrev_b32 v31, 10, v27             ; (l>>3)*1024
        v_lshl_or_b32 {V(vXO)}, v28, 4, v31
        v_lshlrev_b32 v32, 5, v30
        v_xor_b32 v32, {V(vXO)}, v32
        v_xor_b32 v33, 64, v32
        v_add_u32 v33, 7168, v33
        s_lshl_b32 {sT0}, {sST}, 16
        s_lshl_b32 {sT1}, {sW}, 14
        s_lshl_b32 {sT2}, {sDT}, 7
        s_add_u32 {sT0}, {sT0}, {sT2}
        s_add_u32 {sEO}, {sT0}, {sT1}
        s_lshl_b32 {sT1}, {sW}, 10
        s_add_u32 {sT0}, {sT0}, {sT1}
        s_sub_u32 {sT0}, {sT0}, 4096
        v_xor_b32 v34, 6, v28
        v_lshlrev_b32 v34, 4, v34
        v_add_u32 v34, {sT0}, v34
        s_lshl_b32 {sT1}, {sW}, 11
        s_add_u32 m0, {sT1}, {KT + 1024}
        s_lshl_b32 {sT2}, {sW}, 7
        s_lshl_b32 {sT3}, {sDT}, 9
        s_add_u32 {sT3}, {sT3}, {sT2}
        v_and_b32 v35, 15, {V(vL)}             ; l&15
        v_lshlrev_b32 v36, 3, v35
        """)
        nt = " nt" if self.o["nt_kv"] else ""
        a(f"buffer_load_dwordx4 v32, {SK}, {sEO} offen{nt} lds", "a1")
        a(f"buffer_load_dwordx4 v33, {SK}, {sEO} offen offset:1024{nt} lds", "a1")
        a(f"s_add_u32 m0, {sT1}, {VT}")
        a(f"buffer_load_dwordx2 {V(RING,2)}, v36, {SSH}, {sT3} offen", "a1")
        a(f"buffer_load_dwordx4 v32, {SV}, {sEO} offen{nt} lds", "a1")
        a(f"buffer_load_dwordx4 v33, {SV}, {sEO} offen offset:1024{nt} lds", "a1")
        a(f"s_add_u32 m0, {sT2}, {KT + 512}")
        a("s_mov_b64 exec, 0xff")
        a(f"buffer_load_dwordx4 v34, {SK}, 0 offen lds", "a1")
        a("s_mov_b64 exec, -1")
        a(f"""
        s_lshr_b32 {sT0}, {sW}, 1
        s_lshl1_add_u32 {sT0}, s2, {sT0}
        s_lshl_b32 {sT0}, {sT0}, 12
        s_lshl_b32 {sT1}, s2, 2
        s_mov_b32 {sT2}, {GEN}
        s_load_dwordx2 s[58:59], s[20:21], {sT0}
        s_load_dword {sD}, s[40:41], {sT1}
        s_load_dwordx2 {sTAG}, s[36:37], {sT2}
        """)
        a(f"""
        s_lshr_b32 {sT0}, {sXCD}, 1
        s_and_b32 {sT1}, {sJ}, 3
        s_lshl2_add_u32 {sT0}, {sT0}, {sT1}         ; rb
        s_lshl2_add_u32 {sT0}, {sT0}, {sW}
        s_and_b32 {sT2}, {sXCD}, 1
        s_mul_i32 {sT2}, {sT2}, 7
        s_lshr_b32 {sT3}, {sJ}, 2
        s_add_u32 {sFT}, {sT2}, {sT3}               ; ft
        s_mul_i32 {sFH}, {sT0}, 14
        s_add_u32 {sFH}, {sFH}, {sFT}
        s_lshl_b32 {sFH}, {sFH}, 8
        s_add_u32 {sFH}, {sFH}, {FL_H}
        s_mul_i32 {sHO}, {sT0}, 112
        s_add_u32 {sHO}, {sHO}, {sFT}
        s_lshl_b32 {sHO}, {sHO}, 10
        s_add_u32 {sHO}, {sHO}, {HWS}
        s_lshl_b32 {sT0}, {sT0}, 15
        s_lshl2_add_u32 {sT1}, {sXCD}, {sT1}
        s_lshl2_add_u32 {sT1}, {sT1}, {sW}
        s_lshl_b32 {sT1}, {sT1}, 14
        s_cmp_lt_u32 {sJ}, 28
        s_cselect_b32 {sXO[0]}, {sT0}, {sT1}
        s_cselect_b32 {sT2}, 0, 0x400000
        s_add_u32 {sXO[1]}, {sXO[0]}, 8192
        s_add_u32 {sXO[2]}, {sXO[1]}, 8192
        s_add_u32 {sXO[2]}, {sXO[2]}, {sT2}
        s_add_u32 {sXO[3]}, {sXO[2]}, 8192
        s_mul_i32 {sW1O}, {sW}, {16*3584}
        s_lshl_b32 {sT0}, {sFT}, 8
        s_add_u32 {sW1O}, {sW1O}, {sT0}
        s_lshl_b32 {sM0}, {sW}, 11
        v_and_b32 v37, 1, v29
        v_lshlrev_b32 v37, 6, v37
        v_xor_b32 {V(vV0)}, {V(vXO)}, v37
        v_add_u32 {V(vV1)}, 8192, {V(vV0)}
        v_mul_u32_u24 v38, 2560, v27
        v_add_u32 {V(vW0)}, {V(vV0)}, v38
        v_add_u32 {V(vW1)}, {8*3584-1024}, {V(vW0)}
        """)

    def ld_x(self, c, i):
        self.a(f"buffer_load_dwordx4 {V(XR+16*c+4*i,4)}, {V(vXO)}, {SX}, {sXO[i]} offen offset:{128*c}", f"x{c}")

    def ld_w1(self, n):
        a = self.a
        a(f"s_mov_b32 m0, {sM0}")
        a(f"s_add_u32 {sM0}, {sM0}, 8192")
        a(f"buffer_load_dwordx4 {V(vW0)}, {SW1}, {sW1O} offen lds", f"w{n}")
        a(f"buffer_load_dwordx4 {V(vW1)}, {SW1}, {sW1O} offen offset:1024 lds", f"w{n}")
        if n == 7:
            a(f"s_sub_u32 {sW1O}, {sW1O}, {7*64*3584 - 128}")
        elif n < 15:
            a(f"s_add_u32 {sW1O}, {sW1O}, {64*3584}")

    def b1_load_list(self):
        L = []
        for c in range(8):
            for i in range(4):
                L.append(lambda c=c, i=i: self.ld_x(c, i))
            L.append(lambda c=c: self.ld_w1(c))
        for c in range(8):
            L.append(lambda c=c: self.ld_w1(8 + c))
        return L

    def addr_b1(self):
        a = self.a
        a(f"""
        s_lshl_b32 {sXBW}, {sW}, 12
        s_add_u32 {sXBW}, {sXBW}, {XB}
        v_lshrrev_b32 v27, 3, {V(vL)}
        v_and_b32 v28, 7, {V(vL)}
        v_lshrrev_b32 v29, 4, {V(vL)}
        v_lshrrev_b32 v30, 5, {V(vL)}
        v_xor_b32 v31, v28, v29
        v_lshlrev_b32 v31, 4, v31
        v_lshl_add_u32 v31, v27, 7, v31
        v_add_u32 {V(vXW0)}, {sXBW}, v31
        v_xor_b32 {V(vXW1)}, 64, {V(vXW0)}
        v_bfe_u32 v31, {V(vL)}, 1, 3
        v_xor_b32 v31, v31, v30
        v_lshlrev_b32 v31, 4, v31
        v_and_b32 v32, 31, {V(vL)}
        v_lshl_add_u32 v31, v32, 7, v31
        v_add_u32 v31, {sXBW}, v31
        v_bfe_u32 v32, {V(vL)}, 2, 2          ; r
        v_and_b32 v33, 3, {V(vL)}             ; c
        v_lshl_add_u32 v34, v30, 3, v32       ; 8*half + r
        v_lshlrev_b32 v34, 7, v34
        v_bfe_u32 v35, {V(vL)}, 3, 1          ; (r>>1)&1
        v_lshl_add_u32 v34, v35, 6, v34
        v_and_b32 v35, 1, v29
        v_lshl_add_u32 v34, v35, 5, v34
        v_lshl_add_u32 v34, v33, 3, v34
        """)
        for tt in range(4):
            a(f"""
            s_add_u32 {sT0}, {sW}, {tt}
            s_and_b32 {sT0}, {sT0}, 3
            s_lshl_b32 {sT1}, {sT0}, 5
            s_lshl_b32 {sT0}, {sT0}, 11
            v_xor_b32 {V(vXR[tt])}, {sT1}, v31
            v_add_u32 {V(vA[tt][0])}, {sT0}, v34
            v_xor_b32 {V(vA[tt][1])}, 64, {V(vA[tt][0])}
            """)
        a(f"""
        v_lshrrev_b32 v31, 2, {V(vL)}
        v_xor_b32 v31, v31, v29
        v_and_b32 v31, 1, v31
        v_add_u32 v31, -1, v31
        v_and_b32 v31, 0x3f803f80, v31
        v_accvgpr_write_b32 {A(aSEL)}, v31
        v_accvgpr_write_b32 {A(aSEL+1)}, v31
        v_accvgpr_write_b32 {A(aSEL+2)}, v31
        v_accvgpr_write_b32 {A(aSEL+3)}, v31
        """)

    def a1(self, fill):
        a = self.a
        a(f"""
        v_lshrrev_b32 v27, 4, {V(vL)}         ; G
        v_bfe_u32 v28, {V(vL)}, 2, 2          ; r
        v_and_b32 v29, 3, {V(vL)}             ; c
        v_lshrrev_b32 v30, 2, {V(vL)}         ; 4G + r
        v_lshlrev_b32 v30, 9, v30
        v_lshl_add_u32 v30, v29, 3, v30
        v_xor_b32 v31, {sW}, v28
        v_lshl_add_u32 v31, v31, 5, v30
        v_add_u32 v31, {KT + 1024}, v31
        v_add_u32 v32, 3, v28
        v_and_b32 v32, 3, v32
        v_xor_b32 v32, {sW}, v32
        v_lshl_add_u32 v32, v32, 5, v30
        v_add_u32 v32, {KT + 512}, v32
        v_bfe_u32 v33, {V(vL)}, 1, 3          ; i>>1
        v_mul_u32_u24 v33, 272, v33
        v_lshl_add_u32 v33, v27, 4, v33
        v_add_u32 v33, {sXBW}, v33
        v_and_b32 v34, 1, {V(vL)}
        v_lshlrev_b32 v34, 1, v34
        s_and_b32 {sT0}, {sST}, 3
        v_xor_b32 v34, {sT0}, v34
        v_xor_b32 v35, 1, v34
        v_lshl_add_u32 v34, v34, 6, v33
        v_lshl_add_u32 v35, v35, 6, v33
        v_and_b32 v36, 15, {V(vL)}
        v_lshlrev_b32 v36, 4, v36
        v_mul_u32_u24 v37, 272, v27
        v_add3_u32 v37, v37, v36, {sXBW}
        v_lshl_add_u32 v36, v27, 13, v36
        """)
        a.wait("a1")
        a("s_barrier")
        self.stamp("a1data")
        KR, VR, KF, VF, WF, U = 64, 78, 86, 114, 44, 48
        for s in range(-3, 4):
            base, imm = ("v31", s * 128) if s >= 0 else ("v32", (s + 4) * 128)
            a(f"ds_read_b64_tr_b16 {V(KR+2*(s+3),2)}, {base} offset:{imm}")
        for r in range(4):
            a(f"ds_read_b64_tr_b16 {V(VR+2*r,2)}, v31 offset:{VT-KT-1024+r*128}")
        ops = []
        ops += [f"v_lshlrev_b32 {V(WF)}, 16, {V(RING)}", f"v_and_b32 {V(WF+1)}, 0xffff0000, {V(RING)}",
                f"v_lshlrev_b32 {V(WF+2)}, 16, {V(RING+1)}", f"v_and_b32 {V(WF+3)}, 0xffff0000, {V(RING+1)}"]
        def unpack(dst, src):
            return [f"v_lshlrev_b32 {V(dst)}, 16, {V(src)}", f"v_and_b32 {V(dst+1)}, 0xffff0000, {V(src)}",
                    f"v_lshlrev_b32 {V(dst+2)}, 16, {V(src+1)}", f"v_and_b32 {V(dst+3)}, 0xffff0000, {V(src+1)}"]
        done = set()
        for rho in range(4):
            acc = 122
            for j in range(3, -1, -1):
                s = rho - j
                if s not in done:
                    ops += unpack(KF + 4 * (s + 3), KR + 2 * (s + 3))
                    done.add(s)
            vf = VF + 4 * (rho & 1)
            ops += unpack(vf, VR + 2 * rho)
            for j in range(3, -1, -1):
                s = rho - j
                wp = V(WF + (j & 2), 2)
                lo = j & 1
                for h in range(2):
                    k = V(KF + 4 * (s + 3) + 2 * h, 2)
                    d = V(acc + 2 * h, 2)
                    if j == 3:
                        ops.append(f"v_pk_mul_f32 {d}, {k}, {wp} op_sel:[0,{lo}] op_sel_hi:[1,{lo}]")
                    else:
                        ops.append(f"v_pk_fma_f32 {d}, {k}, {wp}, {d} op_sel:[0,{lo},0] op_sel_hi:[1,{lo},1]")
            for h in range(2):
                ops.append(f"v_pk_mul_f32 {V(acc+2*h,2)}, {V(acc+2*h,2)}, {V(vf+2*h,2)}")
            for h in range(2):
                ops.append(f"v_cvt_pk_bf16_f32 {V(U+2*rho+h)}, {V(acc+2*h)}, {V(acc+2*h+1)}")
            if rho & 1:
                ops.append(f"ds_write_b128 {'v34' if rho == 1 else 'v35'}, {V(U+4*(rho>>1),4)}")
        step = max(1, len(ops) // (len(fill) + 1))
        for n, op in enumerate(ops):
            a(op)
            if n % step == step - 1 and fill:
                fill.pop(0)()
        for f in fill:
            f()
        a(f"ds_read_b128 {V(U,4)}, v37")
        a(f"ds_read_b128 {V(U+4,4)}, v37 offset:1088")
        a(f"""
        s_lshl2_add_u32 {sT0}, {sDT}, {sW}
        s_lshl_b32 {sT1}, {sT0}, 16
        s_lshl_b32 {sT2}, {sST}, 8
        s_add_u32 {sT1}, {sT1}, {sT2}
        s_add_u32 {sT2}, {sT1}, {4*8192}
        s_add_u32 s42, s42, 0x7f4a7c15
        s_addc_u32 s43, s43, 0x9e3779b9
        v_mov_b32 {V(vTAG)}, s42
        v_mov_b32 {V(vTAG+1)}, s43
        """)
        a(f"buffer_store_dwordx4 {V(U,4)}, v36, {SWS}, {sT1} offen sc1", "kvst")
        a(f"buffer_store_dwordx4 {V(U+4,4)}, v36, {SWS}, {sT2} offen sc1", "kvst")

    def kv_flag(self):
        a = self.a
        a(f"""
        s_lshl2_add_u32 {sT0}, {sDT}, {sW}
        s_lshl_b32 {sT1}, {sST}, 5
        s_add_u32 {sT0}, {sT0}, {sT1}
        s_lshl_b32 {sT0}, {sT0}, 7
        s_add_u32 {sT0}, {sT0}, {FL_KV}
        """)
        a.wait("kvst")
        self.flag_store(sT0)

    def x_write(self, c):
        for i in range(4):
            self.a(f"ds_write_b128 {V(vXW1 if i & 1 else vXW0)}, {V(XR+16*c+4*i,4)} offset:{i*1024}")

    def x_read(self, c):
        for tt in range(4):
            self.a(f"ds_read_b128 {V(XR+16*c+4*tt,4)}, {V(vXR[tt])}")

    def w_frag(self, c, tt, fb, slot):
        r = RING + 8 * slot + 4 * fb
        for jj in range(2):
            self.a(f"ds_read_b64_tr_b16 {V(r+2*jj,2)}, {V(vA[tt][fb])} offset:{c*8192+jj*512}")

    def b1_pass(self, hf, fill):
        a = self.a
        for c in range(8):
            for tt in range(4):
                step = 32 * hf + 4 * c + tt
                slot = step % 3
                nxt = step + 1
                x = V(XR + 16 * c + 4 * tt, 4)
                for fb in range(2):
                    acc = V(ACC + 32 * hf + 16 * fb, 16)
                    fr = V(RING + 8 * slot + 4 * fb, 4)
                    first = (c == 0 and tt == 0)
                    pos = 2 * tt + fb
                    if pos == 6 and nxt < 64:
                        a.wait(f"w{nxt//4}")
                        a("s_barrier")
                        if nxt == 32:
                            for t2 in range(4):
                                for f2 in range(2):
                                    a(f"v_add_u32 {V(vA[t2][f2])}, 0x10000, {V(vA[t2][f2])}")
                    a(f"v_mfma_f32_32x32x16_bf16 {acc}, {fr}, {x}, {'0' if first else acc}")
                    if nxt < 64:
                        self.w_frag((nxt // 4) % 8, nxt % 4, fb, nxt % 3)
                    if tt == 0:
                        cc = A(aC + 8 * hf + 4 * fb, 4)
                        a(f"v_mfma_f32_16x16x32_bf16 {cc}, {A(aSEL,4)}, {fr}, {'0' if c == 0 else cc}")
                    if hf == 0 and fb == 1:
                        mm = A(aM, 4)
                        a(f"v_mfma_f32_16x16x32_bf16 {mm}, {A(aSEL,4)}, {x}, {'0' if first else mm}")
                    if hf == 0 and c < 7:
                        if pos == 2:
                            self.x_write(c + 1)
                        if pos == 3:
                            self.x_read(c + 1)
                    for f in fill.get((c, pos), []):
                        f()
            self.stamp(f"p{hf+1}.c{c}")

    def c_publish(self, hf):
        a = self.a
        a(f"""
        v_accvgpr_read_b32 v27, {A(aC+8*hf)}
        v_accvgpr_read_b32 v28, {A(aC+8*hf+4)}
        v_cmp_gt_u32 vcc, 32, {V(vL)}
        s_lshl_b32 {sT0}, {sW}, 3
        s_add_u32 {sT0}, {sT0}, {CX + 2048*hf}
        v_cndmask_b32 v27, v28, v27, vcc
        v_and_b32 v28, 0xffff0000, v27
        v_sub_f32 v27, v27, v28
        v_and_b32 v29, 0xffff0000, v27
        v_sub_f32 v27, v27, v29
        v_lshrrev_b32 v28, 16, v28
        v_or_b32 v28, v28, v29
        v_lshrrev_b32 v29, 16, v27
        v_lshlrev_b32 v30, 5, {V(vL)}
        v_add_u32 v30, {sT0}, v30
        """)
        a("ds_write_b64 v30, v[28:29]", "cx")

    def m_finish(self):
        a = self.a
        a(f"""
        v_accvgpr_read_b32 v27, {A(aM)}
        v_mul_f32 v27, 0xbb000000, v27
        v_cvt_pk_bf16_f32 v27, v27, v27
        v_accvgpr_write_b32 {A(aM)}, v27
        v_accvgpr_write_b32 {A(aM+1)}, v27
        v_accvgpr_write_b32 {A(aM+2)}, v27
        v_accvgpr_write_b32 {A(aM+3)}, v27
        """)

    def c_read(self, hf):
        a = self.a
        a(f"""
        v_and_b32 v27, 31, {V(vL)}
        v_lshrrev_b32 v28, 5, {V(vL)}
        v_lshlrev_b32 v27, 5, v27
        v_lshl_add_u32 v27, v28, 4, v27
        v_add_u32 v27, {CX + 2048*hf}, v27
        ds_read_b128 v[28:31], v27
        ds_read_b128 v[32:35], v27 offset:1024
        """)

    def c_apply(self, hf, fb):
        acc = V(ACC + 32 * hf + 16 * fb, 16)
        self.a(f"v_mfma_f32_32x32x16_bf16 {acc}, {V(28+4*fb,4)}, {A(aM,4)}, {acc}")

    def h_store(self, hf, fb, q01):
        a = self.a
        r = ACC + 32 * hf + 16 * fb + 8 * q01
        for i in range(4):
            a(f"v_cvt_pk_bf16_f32 {V(r+i)}, {V(r+2*i)}, {V(r+2*i+1)}")
        a(f"s_add_u32 {sT0}, {sHO}, {(hf*56 + (2*fb+q01)*14)*1024}")
        for i in range(4):
            a(f"v_pk_max_i16 {V(r+i)}, {V(r+i)}, 0")
        a(f"buffer_store_dwordx4 {V(r,4)}, {V(vL16)}, {SWS}, {sT0} offen sc1", f"hst{hf}")

    def h_flag(self, hf):
        a = self.a
        a(f"s_add_u32 {sT0}, {sFH}, {128*hf}")
        a.wait(f"hst{hf}")
        self.flag_store(sT0)

    def w2_init(self):
        self.a(f"""
        s_lshl_b32 {sW2O}, {sW}, 14
        s_lshl_b32 {sT0}, {sDT}, 7
        s_add_u32 {sW2O}, {sW2O}, {sT0}
        """)

    def ld_w2(self, idx):
        a = self.a
        a(f"buffer_load_dwordx4 {A(8*idx,4)}, {V(vV0)}, {SW2}, {sW2O} offen")
        a(f"buffer_load_dwordx4 {A(8*idx+4,4)}, {V(vV1)}, {SW2}, {sW2O} offen")
        if idx == 13:
            a(f"s_sub_u32 {sW2O}, {sW2O}, {13*131072 - 65536}")
        elif idx < 27:
            a(f"s_add_u32 {sW2O}, {sW2O}, 131072")

    HK = 64
    def ld_hk(self):
        a = self.a
        a(f"""
        s_lshr_b32 {sT0}, {sW}, 1
        s_lshl1_add_u32 {sT0}, s2, {sT0}
        s_lshl_b32 {sT0}, {sT0}, 12
        s_and_b32 {sT1}, {sW}, 1
        s_lshl_b32 {sT1}, {sT1}, 2
        s_sub_u32 {sT0}, {sT0}, {sT1}
        s_add_u32 {sT0}, {sT0}, 8
        """)
        nt = " nt" if self.o["nt_hk"] else ""
        for i in range(4):
            a(f"buffer_load_dwordx4 {V(self.HK+4*i,4)}, {V(vL16)}, {SHK}, {sT0} offen offset:{1024*i}{nt}")

    def p_head(self):
        a = self.a
        a(f"""
        s_lshr_b32 {sT0}, {sW}, 1
        s_lshl_b32 {sT0}, {sT0}, 4
        s_lshr_b32 {sT0}, {sD}, {sT0}
        s_lshl_b32 {sT0}, {sT0}, 16
        s_lshl_b32 {sT1}, {sH0}, 16
        v_mov_b32 v80, {sT0}
        v_add_f32 v80, {sT1}, v80
        v_cvt_pk_bf16_f32 v80, v80, v80
        s_mul_i32 {sT2}, {sW}, 8256
        v_mov_b32 v84, 0
        v_readfirstlane_b32 {sT0}, v80
        v_mov_b32 v85, 0
        v_mov_b32 v86, 0
        v_mov_b32 v87, 0
        s_and_b32 {sT0}, {sT0}, 0xffff
        s_and_b32 {sT1}, {sH0}, 0xffff0000
        s_or_b32 {sT0}, {sT0}, {sT1}            ; (h0 + D, h1)
        s_bitcmp1_b32 {sW}, 0
        s_cselect_b32 s57, {sT0}, {sH1}
        s_cselect_b32 {sT0}, 0, {sT0}
        s_lshl_b32 {sT1}, {sT0}, 16
        s_lshl_b32 {sT3}, s57, 16
        v_writelane_b32 v86, {sT0}, 1
        s_lshr_b32 {sT0}, {sT0}, 16
        v_writelane_b32 v87, s57, 1
        s_or_b32 {sT3}, {sT3}, {sT0}
        v_writelane_b32 v86, {sT1}, 3
        v_writelane_b32 v87, {sT3}, 3
        v_and_b32 v80, 1, {V(vL)}
        v_lshrrev_b32 v81, 1, {V(vL)}
        v_mul_u32_u24 v81, 4128, v81
        v_lshl_add_u32 v80, v80, 4, v81
        v_add_u32 v80, {sT2}, v80
        v_add_u32 v27, {sT2}, {V(vL16)}
        v_lshlrev_b32 v81, 2, v0
        s_mov_b64 exec, 15
        ds_write_b128 v80, v[84:87] offset:{PB}
        s_mov_b64 exec, -1
        """)
        a(f"ds_write_b32 v81, v84 offset:{KV}", "pw")

    def p_body(self, i):
        a = self.a
        r = self.HK + 4 * i
        a(f"""
        v_mov_b32 v80, s57
        ds_write_b128 v27, {V(r,4)} offset:{PB + 32 + 1024*i}
        v_readlane_b32 s57, {V(r+3)}, 63
        v_mov_b32_dpp v80, {V(r+3)} wave_shr:1 row_mask:0xf bank_mask:0xf
        v_alignbyte_b32 v85, {V(r+1)}, {V(r)}, 2
        v_alignbyte_b32 v86, {V(r+2)}, {V(r+1)}, 2
        v_alignbyte_b32 v87, {V(r+3)}, {V(r+2)}, 2
        v_alignbyte_b32 v84, {V(r)}, v80, 2
        """)
        a(f"ds_write_b128 v27, v[84:87] offset:{PB + 4128 + 32 + 1024*i}", "pw")

    def kv_poll_issue(self):
        a = self.a
        a(f"""
        v_and_b32 {V(vPO)}, 7, {V(vL)}
        v_lshlrev_b32 {V(vPO)}, 12, {V(vPO)}
        s_lshl_b32 s40, {sW}, 15
        s_lshr_b32 {sT0}, s2, 3
        s_lshl_b32 {sT0}, {sT0}, 7
        s_add_u32 s40, s40, {sT0}
        s_add_u32 s40, s40, {FL_KV}
        """)
        self.poll_issue("s40")

    def kv_fetch(self, name):
        a = self.a
        self.poll_check(name, "s40")
        a(f"""
        s_lshl_b32 {sT0}, s2, 13
        s_lshl_b32 {sT1}, {sW}, 11
        s_add_u32 m0, {sT1}, {KV + 1024}
        s_add_u32 {sT0}, {sT0}, {sT1}
        """)
        a(f"buffer_load_dwordx4 {V(vL16)}, {SWS}, {sT0} offen sc1 lds", "kv")
        a(f"buffer_load_dwordx4 {V(vL16)}, {SWS}, {sT0} offen offset:1024 sc1 lds", "kv")

    def conv_addr(self):
        a = self.a
        a(f"""
        v_lshrrev_b32 v27, 4, {V(vL)}          ; G
        v_bfe_u32 v28, {V(vL)}, 2, 2           ; r
        v_and_b32 v29, 3, {V(vL)}              ; c
        v_lshl_add_u32 v29, v27, 2, v29
        v_sub_u32 v29, v29, v28
        s_mul_i32 {sT0}, {sW}, 8256
        s_add_u32 {sT0}, {sT0}, {PB + 24}
        v_lshlrev_b32 v29, 3, v29
        v_add_u32 v12, {sT0}, v29
        v_and_b32 v28, 15, {V(vL)}
        v_sub_u32 v28, v28, v27                ; a - G
        """)
        for e in range(4):
            a(f"""
            v_add_u32 v29, {16 - 4*e}, v28
            v_lshrrev_b32 v30, 2, v29
            v_and_b32 v31, 3, v30
            v_xor_b32 v31, {sW}, v31
            v_lshlrev_b32 v30, 8, v30
            v_lshl_add_u32 v30, v31, 6, v30
            v_and_b32 v29, 3, v29
            v_lshl_add_u32 v30, v29, 4, v30
            v_add_u32 {V(13+e)}, {KV}, v30
            """)

    def conv_reads(self, e):
        base = XR + 64 * (e & 1)
        L = []
        order = []
        for n in range(8):
            order.append(("B", n))
            order.append(("A", n))
        for kind, n in order:
            if kind == "A":
                for ph in range(2):
                    L.append(f"ds_read_b64_tr_b16 {V(base+4*n+2*ph,2)}, v12 offset:{ph*4128 + 128*(4*n+e)}")
            else:
                L.append(f"ds_read_b128 {V(base+32+4*n,4)}, {V(13+e)} offset:{1024*n}")
        return L

    def conv(self, fill):
        a = self.a
        for op in self.conv_reads(0):
            a(op)
        k = 0
        for e in range(4):
            base = XR + 64 * (e & 1)
            nxt = self.conv_reads(e + 1) if e < 3 else []
            prs = sorted([(n, d) for n in range(8) for d in range(8) if n + d < 8], key=lambda p: (max(p), p[0] + p[1]))
            seen = set()
            for i, (n, d) in enumerate(prs):
                acc = A(aY + 4 * (n + d), 4)
                first = (e == 0 and (n + d) not in seen)
                seen.add(n + d)
                a(f"v_mfma_f32_16x16x32_bf16 {acc}, {V(base+4*n,4)}, {V(base+32+4*d,4)}, {'0' if first else acc}")
                if nxt and i >= 8:
                    a(nxt.pop(0))
                for f in fill.get(k, []):
                    f()
                k += 1
            for op in nxt:
                a(op)
            self.stamp(f"cv.e{e}")

    def y_out(self):
        a = self.a
        a(f"""
        v_lshrrev_b32 v27, 4, {V(vL)}
        v_and_b32 v28, 15, {V(vL)}
        v_mul_u32_u24 v27, 20, v27
        v_add_lshl_u32 v27, v27, v28, 4
        s_mul_i32 {sT0}, {sW}, 10240
        s_add_u32 {sT0}, {sT0}, {EX}
        v_add_u32 v27, {sT0}, v27
        v_and_b32 v28, 3, {V(vL)}
        v_lshrrev_b32 v29, 2, {V(vL)}
        v_mul_u32_u24 v28, 20, v28
        v_add_lshl_u32 v28, v28, v29, 4
        s_mul_i32 {sT0}, {sW}, 2560
        s_add_u32 {sT0}, {sT0}, {EX}
        v_add_u32 v28, {sT0}, v28
        """)
        for t in range(8):
            a(f"ds_write_b128 v27, {A(aY+4*t,4)} offset:{1280*t}", "ex")
        a.wait("ex")
        a("s_barrier")
        R = 64
        for t in range(2):
            for src in range(4):
                a(f"ds_read_b128 {V(R+16*t+4*src,4)}, v28 offset:{10240*src + 1280*t}")
        a(f"""
        s_lshl_b32 {sT0}, s2, 13
        s_lshl_b32 {sT1}, {sW}, 11
        s_add_u32 {sT0}, {sT0}, {sT1}
        s_add_u32 {sT0}, {sT0}, {YWS}
        """)
        for t in range(2):
            b = R + 16 * t
            for h in range(2):
                a(f"v_pk_add_f32 {V(b+2*h,2)}, {V(b+2*h,2)}, {V(b+4+2*h,2)}")
                a(f"v_pk_add_f32 {V(b+8+2*h,2)}, {V(b+8+2*h,2)}, {V(b+12+2*h,2)}")
            for i in range(4):
                a(f"v_cvt_pk_bf16_f32 {V(b+4+i)}, {V(b+i)}, {V(b+8+i)}")
            a(f"buffer_store_dwordx4 {V(b+4,4)}, {V(vL16)}, {SWS}, {sT0} offen offset:{1024*t} sc1", "yst")

    def y_flag(self):
        a = self.a
        a(f"""
        s_lshl2_add_u32 {sT0}, s2, {sW}
        s_lshl_b32 {sT0}, {sT0}, 7
        s_add_u32 {sT0}, {sT0}, {FL_Y}
        """)
        a.wait("yst")
        self.flag_store(sT0)

    def h_poll_addr(self):
        a = self.a
        a(f"""
        v_and_b32 v27, 1, {V(vL)}
        v_lshrrev_b32 v28, 1, {V(vL)}
        v_min_u32 v28, 13, v28
        v_mul_u32_u24 v27, 14, v27
        v_add_lshl_u32 {V(vPO)}, v27, v28, 8
        s_mul_i32 s40, {sST}, {28*256}
        s_add_u32 s40, s40, {FL_H}
        s_mul_i32 {sHL}, {sST}, 224
        s_mul_i32 {sT0}, {sW}, 14
        s_add_u32 {sHL}, {sHL}, {sT0}
        s_lshl_b32 {sHL}, {sHL}, 10
        s_add_u32 {sHL}, {sHL}, {HWS}
        v_add_u32 v17, {112*1024}, {V(vL16)}
        """)

    def hslot(self, k, sb):
        return XR + 4 * ((2 * k + sb) % 32)

    def ld_h(self, k):
        a = self.a
        hf, T = divmod(k, 14)
        if T % 4 == 0:
            a(f"s_add_u32 s41, {sHL}, {(hf*56 + T)*1024}")
        for sb in range(2):
            a(f"buffer_load_dwordx4 {V(self.hslot(k,sb),4)}, {V(17 if sb else vL16)}, {SWS}, s41 offen offset:{1024*(T%4)} sc1")

    def b2_addr(self):
        a = self.a
        a(f"""
        v_add_u32 v12, {sXBW}, {V(vL16)}
        v_lshrrev_b32 v27, 5, {V(vL)}
        v_bfe_u32 v28, {V(vL)}, 2, 2
        v_lshl_add_u32 v27, v27, 2, v28
        v_lshlrev_b32 v27, 7, v27
        v_bfe_u32 v28, {V(vL)}, 3, 1
        v_lshl_add_u32 v27, v28, 6, v27
        v_bfe_u32 v28, {V(vL)}, 4, 1
        v_lshl_add_u32 v27, v28, 5, v27
        v_and_b32 v28, 3, {V(vL)}
        v_lshl_add_u32 v27, v28, 3, v27
        v_add_u32 v13, {sXBW}, v27
        v_xor_b32 v14, 64, v13
        """)

    def w2_frag(self, k):
        a = self.a
        r = RING + 8 * (k % 3)
        a(f"ds_write_b128 v12, {A(8*k,4)}")
        a(f"ds_write_b128 v12, {A(8*k+4,4)} offset:1024")
        for nb in range(2):
            for jj in range(2):
                a(f"ds_read_b64_tr_b16 {V(r+4*nb+2*jj,2)}, {V(13+nb)} offset:{1024*jj}")

    def w2_part(self, k, q):
        a = self.a
        r = RING + 8 * (k % 3)
        if q < 2:
            a(f"ds_write_b128 v12, {A(8*k+4*q,4)} offset:{1024*q}")
        else:
            nb = q - 2
            for jj in range(2):
                a(f"ds_read_b64_tr_b16 {V(r+4*nb+2*jj,2)}, {V(13+nb)} offset:{1024*jj}")

    def b2(self, fill):
        a = self.a
        la = self.o.get("b2la", 1)
        self.w2_frag(0)
        if la == 2:
            self.w2_frag(1)
        for k in range(28):
            r = RING + 8 * (k % 3)
            for q in range(4):
                sb, nb = q >> 1, q & 1
                acc = V(ACC + 16 * q, 16)
                a(f"v_mfma_f32_32x32x16_bf16 {acc}, {V(r+4*nb,4)}, {V(self.hslot(k,sb),4)}, {'0' if k == 0 else acc}")
                if la == 1 and q == 0 and k < 27:
                    self.w2_frag(k + 1)
                if la == 2 and k < 26:
                    self.w2_part(k + 2, q)
                for f in fill.get((k, q), []):
                    f()
            if k % 2 == 1:
                self.stamp(f"b2.k{k}")

    EXR, EYR, ESR = 224, 232, 240
    def y_poll_issue(self):
        a = self.a
        a(f"""
        v_and_b32 {V(vPO)}, 31, {V(vL)}
        v_lshlrev_b32 {V(vPO)}, 9, {V(vPO)}
        s_lshl_b32 s40, {sDT}, 14
        s_lshr_b32 {sT0}, {sST}, 3
        s_lshl_b32 {sT0}, {sT0}, 7
        s_add_u32 s40, s40, {sT0}
        s_add_u32 s40, s40, {FL_Y}
        """)
        self.poll_issue("s40")

    def ep_loads(self):
        a = self.a
        a(f"""
        v_lshrrev_b32 v27, 3, {V(vL)}
        v_lshlrev_b32 v18, 4, v27
        s_lshl_b32 {sT0}, {sST}, 10
        s_lshl_b32 {sT1}, {sW}, 8
        s_add_u32 {sT0}, {sT0}, {sT1}
        s_add_u32 s57, {sT0}, {STAT}
        s_add_u32 {sT1}, {sEO}, 8192
        """)
        a(f"buffer_load_dwordx4 {V(self.ESR,4)}, v18, {SWS}, s57 offen sc1")
        a(f"buffer_load_dwordx4 {V(self.ESR+4,4)}, v18, {SWS}, s57 offen offset:128 sc1")
        a(f"buffer_load_dwordx4 {V(self.EXR,4)}, {V(vXO)}, {SX}, {sEO} offen")
        a(f"buffer_load_dwordx4 {V(self.EXR+4,4)}, {V(vXO)}, {SX}, {sT1} offen")

    def y_fetch(self):
        a = self.a
        a(f"""
        v_lshrrev_b32 v27, 3, {V(vL)}
        v_and_b32 v28, 7, {V(vL)}
        v_lshrrev_b32 v29, 4, {V(vL)}
        v_xor_b32 v29, v28, v29                ; idx
        v_lshrrev_b32 v30, 2, v29
        v_lshl_add_u32 v30, v27, 1, v30
        v_and_b32 v29, 3, v29
        v_lshlrev_b32 v29, 4, v29
        v_lshl_add_u32 v30, v30, 13, v29
        v_xor_b32 v31, 0x2000, v30
        v_add_u32 v31, {16*8192 - 1024}, v31
        s_lshl_b32 {sT0}, {sDT}, 18
        s_lshl_b32 {sT1}, {sST}, 8
        s_lshl_b32 {sT2}, {sW}, 6
        s_add_u32 {sT0}, {sT0}, {sT1}
        s_add_u32 {sT0}, {sT0}, {sT2}
        s_add_u32 {sT0}, {sT0}, {YWS}
        s_add_u32 m0, {sXBW}, 2048
        """)
        self.poll_check("y", "s40")
        a(f"buffer_load_dwordx4 v30, {SWS}, {sT0} offen sc1 lds", "y")
        a(f"buffer_load_dwordx4 v31, {SWS}, {sT0} offen offset:1024 sc1 lds", "y")

    def y_read(self):
        a = self.a
        a(f"""
        v_lshrrev_b32 v27, 5, {V(vL)}
        v_and_b32 v28, 7, {V(vL)}
        v_xor_b32 v27, v27, v28
        v_lshlrev_b32 v27, 4, v27
        v_lshl_add_u32 v27, v28, 8, v27
        v_bfe_u32 v28, {V(vL)}, 3, 2
        v_lshl_add_u32 v27, v28, 2, v27
        v_add_u32 v27, {sXBW}, v27
        v_xor_b32 v28, 64, v27
        v_xor_b32 v29, 32, v27
        v_xor_b32 v30, 0x60, v27
        """)
        a.wait("y")
        for st in range(2):
            for e in range(4):
                a(f"ds_read_b32 {V(self.EYR+4*st+e)}, {V(27 + 2*st + (e & 1))} offset:{2048 + 128*(e >> 1)}")

    def stat_check(self):
        a = self.a
        S = self.ESR
        a(f"v_cmp_ne_u64 vcc, {sTAG}, {V(S+2,2)}")
        a(f"v_cmp_ne_u64 s[60:61], {sTAG}, {V(S+6,2)}")
        a("s_or_b64 vcc, vcc, s[60:61]")
        a("s_cbranch_vccnz L_slow_st")
        a.label("L_back_st")
        self.slow.append(f"""L_slow_st:
    s_mov_b32 {sCNT}, 0
L_spin_st:
    buffer_load_dwordx4 {V(S,4)}, v18, {SWS}, s57 offen sc1
    buffer_load_dwordx4 {V(S+4,4)}, v18, {SWS}, s57 offen offset:128 sc1
    s_add_u32 {sCNT}, {sCNT}, 1
    s_cmp_gt_u32 {sCNT}, 20000
    s_waitcnt vmcnt(0)
    s_cbranch_scc1 L_back_st
    v_cmp_ne_u64 vcc, {sTAG}, {V(S+2,2)}
    v_cmp_ne_u64 s[60:61], {sTAG}, {V(S+6,2)}
    s_or_b64 vcc, vcc, s[60:61]
    s_cbranch_vccnz L_spin_st
    s_branch L_back_st
""")

    XF, TF = 128, 144
    def ep_pre(self, st, e):
        a = self.a
        x, y = self.EXR + 4 * st + e, self.EYR + 4 * st + e
        xf, tf = self.XF + 8 * st + 2 * e, self.TF + 8 * st + 2 * e
        m = V(self.ESR + 4 * st, 2)
        a(f"""
        v_lshlrev_b32 {V(xf)}, 16, {V(x)}
        v_and_b32 {V(xf+1)}, 0xffff0000, {V(x)}
        v_lshlrev_b32 v32, 16, {V(y)}
        v_and_b32 v33, 0xffff0000, {V(y)}
        v_pk_add_f32 {V(tf,2)}, {V(xf,2)}, {m} op_sel:[0,0] op_sel_hi:[1,0] neg_lo:[0,1] neg_hi:[0,1]
        v_pk_mul_f32 {V(tf,2)}, {V(tf,2)}, v[32:33]
        """)

    def ep_addr(self):
        a = self.a
        a(f"""
        v_and_b32 v27, 31, {V(vL)}
        v_mul_u32_u24 v27, 272, v27
        v_lshrrev_b32 v28, 5, {V(vL)}
        v_lshl_add_u32 v27, v28, 4, v27
        s_mul_i32 {sT0}, {sW}, 17408
        v_add_u32 v15, {sT0}, v27
        v_lshrrev_b32 v27, 3, {V(vL)}
        v_mul_u32_u24 v27, 272, v27
        v_and_b32 v28, 7, {V(vL)}
        v_lshl_add_u32 v27, v28, 5, v27
        s_mul_i32 {sT0}, {sW}, {16*272}
        v_add_u32 v16, {sT0}, v27
        """)

    def epilogue(self):
        a = self.a
        for q in range(4):
            sb, nb = q >> 1, q & 1
            for g in range(4):
                a(f"ds_write_b128 v15, {V(ACC+16*q+4*g,4)} offset:{RED + sb*8704 + nb*128 + g*32}", "red")
        a.wait("red")
        a("s_barrier")
        self.stamp("redbar")
        R = 160
        for st in range(2):
            for src in range(4):
                for hh in range(2):
                    a(f"ds_read_b128 {V(R+32*st+8*src+4*hh,4)}, v16 offset:{RED + src*17408 + st*2176 + hh*16}")
        a(f"s_add_u32 {sT1}, {sEO}, 8192")
        for st in range(2):
            tf, xf = self.TF + 8 * st, self.XF + 8 * st
            for src in range(4):
                for p in range(4):
                    a(f"v_pk_add_f32 {V(tf+2*p,2)}, {V(tf+2*p,2)}, {V(R+32*st+8*src+2*p,2)}")
            rr = V(self.ESR + 4 * st, 2)
            for p in range(4):
                a(f"v_pk_fma_f32 {V(tf+2*p,2)}, {V(tf+2*p,2)}, {rr}, {V(xf+2*p,2)} op_sel:[0,1,0] op_sel_hi:[1,1,1]")
            for p in range(4):
                a(f"v_cvt_pk_bf16_f32 {V(xf+p)}, {V(tf+2*p)}, {V(tf+2*p+1)}")
            a(f"buffer_store_dwordx4 {V(xf,4)}, {V(vXO)}, {SO}, {sT1 if st else sEO} offen")

    def stats(self):
        a = self.a
        a("v_mov_b32 v27, 0x3f803f80")
        def red8(r):
            a(f"v_add_f32_dpp {V(r)}, {V(r)}, {V(r)} quad_perm:[1,0,3,2] row_mask:0xf bank_mask:0xf")
            a(f"v_add_f32_dpp {V(r)}, {V(r)}, {V(r)} quad_perm:[2,3,0,1] row_mask:0xf bank_mask:0xf")
            a(f"v_add_f32_dpp {V(r)}, {V(r)}, {V(r)} row_half_mirror row_mask:0xf bank_mask:0xf")
        for i in range(2):
            a(f"v_mov_b32 {V(64+8*i)}, 0")
            a(f"v_mov_b32 {V(65+8*i)}, 0")
        for c in range(8):
            for j in range(4):
                for i in range(2):
                    a(f"v_dot2c_f32_bf16 {V(64+8*i+(j&1))}, {V(XR+16*c+4*i+j)}, v27")
        for i in range(2):
            a(f"v_add_f32 {V(64+8*i)}, {V(64+8*i)}, {V(65+8*i)}")
        for i in range(2):
            red8(64 + 8 * i)
        for i in range(2):
            a(f"v_mul_f32 {V(64+8*i)}, 0x3b000000, {V(64+8*i)}")
            a(f"v_mov_b32 {V(66+8*i)}, 0")
            a(f"v_mov_b32 {V(67+8*i)}, 0")
        for c in range(8):
            for j in range(4):
                for i in range(2):
                    x = V(XR + 16 * c + 4 * i + j)
                    t = 68 + 8 * i
                    a(f"v_lshlrev_b32 {V(t)}, 16, {x}")
                    a(f"v_and_b32 {V(t+1)}, 0xffff0000, {x}")
                    a(f"v_pk_add_f32 {V(t,2)}, {V(t,2)}, {V(64+8*i,2)} op_sel:[0,0] op_sel_hi:[1,0] neg_lo:[0,1] neg_hi:[0,1]")
                    a(f"v_pk_fma_f32 {V(66+8*i,2)}, {V(t,2)}, {V(t,2)}, {V(66+8*i,2)}")
        for i in range(2):
            a(f"v_add_f32 {V(66+8*i)}, {V(66+8*i)}, {V(67+8*i)}")
        for i in range(2):
            red8(66 + 8 * i)
        a(f"""
        v_lshrrev_b32 v28, 3, {V(vL)}
        v_lshlrev_b32 v28, 4, v28
        s_lshr_b32 {sT0}, {sXO[0]}, 6
        s_add_u32 {sT0}, {sT0}, {STAT}
        """)
        for i in range(2):
            m, v = 64 + 8 * i, 66 + 8 * i
            a(f"""
            v_mul_f32 {V(v)}, 0x3b000000, {V(v)}
            v_cvt_pk_bf16_f32 {V(v)}, {V(v)}, {V(m)}
            v_and_b32 {V(m)}, 0xffff0000, {V(v)}
            v_lshlrev_b32 {V(v)}, 16, {V(v)}
            v_add_f32 {V(v)}, 0x3727c5ac, {V(v)}
            v_cvt_pk_bf16_f32 {V(v)}, {V(v)}, {V(v)}
            v_lshlrev_b32 {V(v)}, 16, {V(v)}
            v_sqrt_f32 {V(v)}, {V(v)}
            v_cvt_pk_bf16_f32 {V(v)}, {V(v)}, {V(v)}
            v_lshlrev_b32 {V(v)}, 16, {V(v)}
            v_rcp_f32 {V(m+1)}, {V(v)}
            v_mov_b32 {V(m+2)}, {V(vTAG)}
            v_mov_b32 {V(m+3)}, {V(vTAG+1)}
            """)
        a("s_mov_b32 exec_lo, 0x01010101")
        a("s_mov_b32 exec_hi, 0x01010101")
        for i in range(2):
            a(f"buffer_store_dwordx4 {V(64+8*i,4)}, v28, {SWS}, {sT0} offen offset:{128*i} sc1")
        a("s_mov_b64 exec, -1")

    def gen_update(self):
        a = self.a
        a(f"s_cmp_lg_u32 s2, {28*8}")
        a("s_cbranch_scc1 L_nogen")
        a.wait_all()
        a.raw(f"""    v_lshlrev_b32 v28, 7, v0
    s_mov_b32 {sT1}, {FL_KV}
L_gen_next:
    s_mov_b32 {sCNT}, 0
L_gen_spin:
    buffer_load_dwordx2 v[30:31], v28, {SWS}, {sT1} offen sc1
    s_add_u32 {sCNT}, {sCNT}, 1
    s_cmp_gt_u32 {sCNT}, 20000
    s_waitcnt vmcnt(0)
    s_cbranch_scc1 L_gen_got
    v_cmp_ne_u64 vcc, {sTAG}, v[30:31]
    s_cbranch_vccnz L_gen_spin
L_gen_got:
    s_add_u32 {sT1}, {sT1}, 0x8000
    s_cmp_lt_u32 {sT1}, {FL_KV + 0x20000}
    s_cbranch_scc1 L_gen_next
    s_barrier
    s_cmp_lg_u32 {sW}, 0
    s_cbranch_scc1 L_nogen
    s_mov_b32 {sT1}, {GEN}
    s_mov_b64 exec, 1
    buffer_store_dwordx2 {V(vTAG,2)}, off, {SWS}, {sT1} sc1
    s_mov_b64 exec, -1
    s_waitcnt vmcnt(0)
L_nogen:""")

    def build(self):
        a = self.a
        self.prologue()
        L = self.b1_load_list()
        NPRE, NA1 = 15, 10
        for _ in range(NPRE):
            L.pop(0)()
        self.addr_b1()
        self.a1([L.pop(0) for _ in range(NA1)])
        self.stamp("a1done")
        a(f"s_cmp_ge_u32 {sJ}, 28")
        a("s_cbranch_scc1 L_spare")
        st_spare = a.state()
        nL = len(L)
        self.stamp("p1.a1done")
        self.x_write(0)
        self.x_read(0)
        a.wait("w0")
        a("s_barrier")
        self.stamp("p1.w0")
        for fb in range(2):
            self.w_frag(0, 0, fb, 0)
        fill = {}
        def put(d, key, f):
            d.setdefault(key, []).append(f)
        slots = [(c, p) for c in range(8) for p in (0, 1, 4, 5, 7)]
        for i, f in enumerate(L):
            put(fill, slots[i], f)
        put(fill, (5, 0), self.kv_flag)
        self.b1_pass(0, fill)
        self.stamp("pass1")
        fill = {}
        put(fill, (0, 1), lambda: self.c_publish(0))
        put(fill, (0, 2), self.m_finish)
        put(fill, (0, 3), self.w2_init)
        put(fill, (0, 5), lambda: a.wait("cx"))
        put(fill, (0, 7), lambda: self.c_read(0))
        put(fill, (1, 0), lambda: self.c_apply(0, 0))
        put(fill, (1, 1), lambda: self.c_apply(0, 1))
        for q in range(4):
            put(fill, (1, 3 + q), lambda q=q: self.h_store(0, q >> 1, q & 1))
        put(fill, (2, 0), self.ld_hk)
        put(fill, (2, 1), self.kv_poll_issue)
        put(fill, (2, 2), self.p_head)
        w2 = list(range(28))
        for c in range(2, 8):
            for p in (3, 5):
                put(fill, (c, p), lambda k=w2.pop(0): self.ld_w2(k))
        put(fill, (4, 0), lambda: self.h_flag(0))
        for i in range(4):
            put(fill, (4, 1 + i), lambda i=i: self.p_body(i))
        put(fill, (5, 0), lambda: self.kv_fetch("kv"))
        self.b1_pass(1, fill)
        self.stamp("pass2")
        self.c_publish(1)
        self.conv_addr()
        a.wait("cx", "kv", "pw")
        a("s_barrier")
        self.stamp("cv.bar")
        self.c_read(1)
        self.c_apply(1, 0)
        self.c_apply(1, 1)
        for q in range(4):
            self.h_store(1, q >> 1, q & 1)
        w2_left = list(w2)
        a("s_branch L_conv")
        st_join = a.state()
        a.restore(st_spare)
        a.label("L_spare")
        for f in self.b1_load_list()[-nL:]:
            pass
        issued = NPRE + NA1
        for n in range(issued, 40):
            c, i = divmod(n, 5)
            if i < 2:
                self.ld_x(c, i)
        self.ld_hk()
        self.kv_flag()
        a("s_barrier")
        self.w2_init()
        self.p_head()
        for i in range(4):
            self.p_body(i)
        for k in range(28 - len(w2_left)):
            self.ld_w2(k)
        self.stats()
        self.kv_poll_issue()
        self.kv_fetch("kv2")
        self.conv_addr()
        self.gen_update()
        a.wait_all()
        a("s_barrier")
        a.restore(st_join)
        a.label("L_conv")
        self.stamp("convstart")
        self.stamp("cv.start")
        fill = {}
        for i, k in enumerate(w2_left):
            put(fill, 4 + 8 * i, lambda k=k: self.ld_w2(k))
        put(fill, 60, self.h_flag1)
        put(fill, 100, self.h_poll_addr)
        put(fill, 101, lambda: self.poll_issue("s40", 0))
        self.conv(fill)
        self.stamp("convend")
        self.y_out()
        self.stamp("cv.yout")
        self.b2_addr()
        self.poll_check("h0", "s40", 0)
        self.stamp("h0")
        self.stamp("cv.h0")
        for k in range(14):
            self.ld_h(k)
        self.poll_issue("s40", 128)
        self.stamp("cv.hissued")
        self.y_flag()
        self.stamp("cv.yflag")
        fill = {}
        put(fill, (2, 1), lambda: self.poll_check("h1", "s40", 128))
        put(fill, (2, 2), lambda: self.ld_h(14))
        put(fill, (2, 3), lambda: self.ld_h(15))
        for k in range(16, 28):
            put(fill, (3, k - 16) if k < 19 else (k - 15, 1), lambda k=k: self.ld_h(k))
        put(fill, (14, 1), self.y_poll_issue)
        put(fill, (15, 2), self.ep_addr)
        put(fill, (16, 1), self.ep_loads)
        put(fill, (18, 1), self.y_fetch)
        put(fill, (22, 1), self.y_read)
        put(fill, (23, 1), self.stat_check)
        n = 0
        for st in range(2):
            for e in range(4):
                put(fill, (24 + n // 2, 1 + 2 * (n & 1)), lambda st=st, e=e: self.ep_pre(st, e))
                n += 1
        self.b2(fill)
        self.stamp("b2end")
        self.epilogue()
        if self.o["diag"]:
            a.wait_all()
            self.stamp("end")
            a.wait_all()
            a(f"""
            s_lshl2_add_u32 {sT0}, s2, {sW}
            s_lshl_b32 {sT0}, {sT0}, 6
            s_add_u32 {sT0}, {sT0}, {STAMP}
            s_mov_b64 exec, 1
            """)
            for i in range(self.nst):
                a(f"v_mov_b32 v27, s{sSTAMP+2*i}")
                a(f"buffer_store_dword v27, off, {SWS}, {sT0} offset:{4*i}")
            if self.o.get("dbgwg") is not None:
                a(f"""
                s_lshl2_add_u32 {sT0}, s2, {sW}
                s_cmp_lg_u32 {sT0}, {4*self.o["dbgwg"]}
                s_cbranch_scc1 L_end
                s_load_dwordx2 s[4:5], s[0:1], 80
                s_mov_b32 s6, 256
                """)
                for i in range(self.nst):
                    a(f"s_sub_u32 {sT0}, s{sSTAMP+2*i}, s{sSTAMP}")
                    a(f"v_mov_b32 v27, {sT0}")
                    a(f"buffer_store_dword v27, off, {SX}, 0 offset:{4*i}")
        a.label("L_end")
        a("s_endpgm")
        for s in self.slow:
            a.raw(s)
        a.label("L_codeend")
        return self.wrap(a.text())

    def h_flag1(self):
        a = self.a
        a(f"s_add_u32 {sT0}, {sFH}, 128")
        a(f"s_cmp_lt_u32 {sJ}, 28")
        a(f"s_cselect_b32 {sT0}, {sT0}, {WS_SIZE}")
        a.wait("hst1")
        self.flag_store(sT0)

    def wrap(self, body):
        return f"""; Fused kernel: out = x + LN(x) * (longconv(shiftconv(k) * v) + D * kv) + relu(LN(x) @ w1) @ w2
; @launch grid=(256,1,1) block=(256,1,1) lds={LDS_SIZE}
.amdgcn_target "amdgcn-amd-amdhsa--gfx950"
.text
.globl {KN}
.p2align 8
.type {KN},@function
{KN}:
{body}
.section .rodata,"a"
.p2align 6
.amdhsa_kernel {KN}
  .amdhsa_next_free_vgpr 512
  .amdhsa_next_free_sgpr 102
  .amdhsa_accum_offset 256
  .amdhsa_group_segment_fixed_size 0
  .amdhsa_kernarg_size 96
  .amdhsa_user_sgpr_count 2
  .amdhsa_user_sgpr_kernarg_segment_ptr 1
  .amdhsa_system_sgpr_workgroup_id_x 1
  .amdhsa_float_denorm_mode_32 3
.end_amdhsa_kernel
"""


if __name__ == "__main__":
    opts = {}
    out = None
    for arg in sys.argv[1:]:
        if "=" in arg:
            k, v = arg.split("=")
            opts[k] = eval(v)
        else:
            out = arg
    g = Gen(**opts)
    txt = g.build()
    if out:
        open(out, "w").write(txt)
        if g.names:
            open(out + ".names", "w").write(" ".join(g.names))
    print("nops inserted:", g.a.nops, "lines:", txt.count("\n"), file=sys.stderr)
```

```python
import sys, os
sys.path.insert(0, os.path.dirname(os.path.abspath(__file__)))
from emit import Asm

KN = "parallel_sum__ssm_conv_h3__dense_activation_relu__prompt_kernel"

KVT = 0x000000
YWS = 0x200000
HWS = 0x400000
FL_KV = 0xC00000
FL_Y = 0xC20000
FL_H = 0xC40000
STAT = 0xC80000
GEN = 0xC90000
STAMP = 0xD00000
W2T = 0xE00000
WS_SIZE = 0x1000000

R1 = 65536
W2R = 49152
KT = 131072
VT = KT + 9216
CX = 148480
YB = 152576
PB = 0
KV = 33280
EX = 90112
RED = 0
LDS_SIZE = 163840

SX, SK, SV, SSH, SHK, SW1, SW2, SO, SWS = [f"s[{4*i}:{4*i+3}]" for i in range(1, 10)]
sTAG = "s[42:43]"
sB = "s2"
sW, sXCD, sJ = "s44", "s45", "s46"
sST, sDT = "s47", "s48"
sXO = ["s49", "s50", "s51", "s52"]
sW1O, sM0 = "s53", "s54"
sHO = "s55"
sD, sCY, sH0, sH1 = "s56", "s57", "s58", "s59"
sT0, sT1, sT2, sT3 = "s60", "s61", "s62", "s63"
sW2O = "s64"
sFK = "s65"
sFH = "s66"
sCNT = "s67"
sHL = "s68"
sKF = "s69"
sEO = "s70"
sPO, sHL2 = "s40", "s41"
sU0, sU1, sU2 = "s71", "s3", "s72"
sHK, sST2 = "s73", "s74"
sSTAMP = 76


def V(i, n=1):
    return f"v{i}" if n == 1 else f"v[{i}:{i+n-1}]"


def A(i, n=1):
    return f"a{i}" if n == 1 else f"a[{i}:{i+n-1}]"


vL, vL16, vXO, vW0, vW1 = 1, 2, 3, 4, 5
vXA = [6, 7]
vXR = [8, 9, 10, 11]
vA = [[12, 13], [14, 15], [16, 17], [18, 19]]
vCA, vH2 = 20, 21
vTAG = 22
vP = 24
vPO = 26
RING = 40
ACC = 64
XR = 128
HK = 96
aSEL, aM, aC = 224, 228, 232
aY = 224
ACC2 = 192


def hslot(k, sb):
    return 40 + 8 * (k % 19) + 4 * sb


class Gen:
    def __init__(self, **o):
        self.o = dict(diag=False, codepf=True, nt_kv=False, nt_hk=False, out_pol="")
        self.o.update(o)
        self.a = Asm()
        self.slow = []
        self.nst = 0
        self.names = []
        self.load = []

    def stamp(self, name):
        if not self.o["diag"]:
            return
        grp = name.split(".")[0] if "." in name else "main"
        if name not in ("start", "end") and grp not in self.o["diag"]:
            return
        r = sSTAMP + 2 * self.nst
        assert r + 1 < 102, name
        self.a(f"s_memrealtime s[{r}:{r+1}]")
        self.names.append(name)
        self.nst += 1

    def T(self, text, tag=None):
        groups = []
        for line in text.strip().split("\n"):
            line = line.strip()
            if not line or line.startswith(";"):
                continue
            if line.startswith("+"):
                groups[-1].append(line[1:].strip())
            else:
                groups.append([line])
        return [(lambda g=g: [self.a(x, tag) for x in g]) for g in groups]

    def W(self, *tags):
        return [lambda: self.a.wait(*tags)]

    @staticmethod
    def join(*lists):
        fs = [f for l in lists for f in l]
        return [lambda: [f() for f in fs]]

    @staticmethod
    def run(items):
        for f in items:
            f()

    @staticmethod
    def place(fill, items, g0, per=1.0):
        g = g0
        for i, f in enumerate(items):
            g = g0 + int(i / per)
            fill.setdefault(g, []).append(f)
        return g

    def gap(self, fill, g, phase):
        n0 = len(self.a.out)
        for f in fill.pop(g, []):
            f()
        return len(self.a.out) - n0

    def flag_store(self, soff):
        return self.T(f"""
        s_mov_b64 exec, 1
        +buffer_store_dwordx2 {V(vTAG,2)}, off, {SWS}, {soff} sc1
        +s_mov_b64 exec, -1""")

    def poll_issue(self, imm=0):
        return self.T(f"buffer_load_dwordx2 {V(vP,2)}, {V(vPO)}, {SWS}, {sPO} offen offset:{imm} sc1")

    def poll_check(self, name, imm=0):
        def f():
            a = self.a
            a(f"v_cmp_ne_u64 vcc, {sTAG}, {V(vP,2)}")
            a(f"s_cbranch_vccnz L_slow_{name}")
            a.label(f"L_back_{name}")
            self.slow.append(f"""L_slow_{name}:
    s_mov_b32 {sCNT}, 0
L_spin_{name}:
    buffer_load_dwordx2 {V(vP,2)}, {V(vPO)}, {SWS}, {sPO} offen offset:{imm} sc1
    s_add_u32 {sCNT}, {sCNT}, 1
    s_cmp_gt_u32 {sCNT}, 20000
    s_waitcnt vmcnt(0)
    s_cbranch_scc1 L_back_{name}
    v_cmp_ne_u64 vcc, {sTAG}, {V(vP,2)}
    s_cbranch_vccnz L_spin_{name}
    s_branch L_back_{name}
""")
        return [f]

    def prologue(self):
        a = self.a
        a(f"""
        s_cmp_ge_u32 s2, 0x100
        s_cbranch_scc1 L_end
        s_load_dwordx2 s[8:9], s[0:1], 8
        s_load_dwordx2 s[12:13], s[0:1], 16
        s_load_dwordx2 s[16:17], s[0:1], 24
        s_load_dwordx2 s[4:5], s[0:1], 0
        s_load_dwordx2 s[24:25], s[0:1], 56
        s_load_dwordx2 s[36:37], s[0:1], 88
        s_load_dwordx2 s[20:21], s[0:1], 32
        s_load_dwordx2 s[40:41], s[0:1], 40
        s_load_dwordx2 s[28:29], s[0:1], 64
        s_load_dwordx2 s[32:33], s[0:1], 72
        """)
        self.stamp("start")
        if self.o["codepf"]:
            a(f"""
            s_getpc_b64 s[60:61]
            L_pc:
            v_lshlrev_b32 v28, 7, v0
            v_min_u32 v28, L_codeend-L_pc-4, v28
            v_mov_b32 v29, s61
            v_add_co_u32 v28, vcc, s60, v28
            v_lshrrev_b32 v27, 6, v0
            v_and_b32 {V(vL)}, 63, v0
            v_addc_co_u32 v29, vcc, 0, v29, vcc
            global_load_dword v39, v[28:29], off
            """)
        else:
            a(f"""
            v_lshrrev_b32 v27, 6, v0
            v_and_b32 {V(vL)}, 63, v0
            """)
        a(f"""
        s_and_b32 {sXCD}, s2, 7
        s_lshr_b32 {sJ}, s2, 3
        v_readfirstlane_b32 {sW}, v27
        s_mov_b32 s10, 0x200000
        s_mov_b32 s11, 0x20000
        s_mov_b64 s[14:15], s[10:11]
        s_mov_b64 s[22:23], s[10:11]
        s_mov_b64 s[34:35], s[10:11]
        s_mov_b32 s18, 0x1000
        s_mov_b32 s19, s11
        s_mov_b32 s7, s11
        s_mov_b32 s31, s11
        s_mov_b32 s27, s11
        s_mov_b32 s38, {WS_SIZE}
        s_mov_b32 s39, s11
        s_cmp_lt_u32 {sJ}, 28
        s_cselect_b32 s26, 0x1c0000, 0
        s_cselect_b32 s6, s10, 0
        s_mov_b32 s30, s26
        s_lshr_b32 {sT0}, {sJ}, 3
        s_lshl2_add_u32 {sST}, {sXCD}, {sT0}
        s_and_b32 {sDT}, {sJ}, 7
        v_lshrrev_b32 v27, 3, {V(vL)}          ; l>>3
        v_and_b32 v28, 7, {V(vL)}              ; l&7
        v_lshrrev_b32 v29, 4, {V(vL)}          ; l>>4
        v_lshrrev_b32 v30, 5, {V(vL)}          ; l>>5
        v_lshlrev_b32 v31, 10, v27             ; (l>>3)*1024
        v_lshl_or_b32 {V(vXO)}, v28, 4, v31
        v_lshlrev_b32 v32, 5, v30
        v_xor_b32 v32, {V(vXO)}, v32
        v_xor_b32 v33, 64, v32
        v_add_u32 v33, 7168, v33
        s_lshl_b32 {sT0}, {sST}, 16
        s_lshl_b32 {sT1}, {sW}, 14
        s_lshl_b32 {sT2}, {sDT}, 7
        s_add_u32 {sT0}, {sT0}, {sT2}
        s_add_u32 {sEO}, {sT0}, {sT1}
        s_lshl_b32 {sT1}, {sW}, 10
        s_add_u32 {sT0}, {sT0}, {sT1}
        s_sub_u32 {sT0}, {sT0}, 4096
        v_xor_b32 v34, 6, v28
        v_lshlrev_b32 v34, 4, v34
        v_add_u32 v34, {sT0}, v34
        s_lshl_b32 {sT1}, {sW}, 11
        s_add_u32 m0, {sT1}, {KT + 1024}
        s_lshl_b32 {sT2}, {sW}, 7
        s_lshl_b32 {sT3}, {sDT}, 9
        s_add_u32 {sT3}, {sT3}, {sT2}
        v_and_b32 v35, 15, {V(vL)}             ; l&15
        v_lshlrev_b32 v36, 3, v35
        v_and_b32 v37, 1, v29
        v_lshlrev_b32 v37, 6, v37
        v_xor_b32 v20, {V(vXO)}, v37
        v_add_u32 v21, 7168, v20
        s_lshl_b32 {sM0}, {sW}, 12
        s_cmp_ge_u32 {sJ}, 14
        s_cselect_b32 {sU0}, {27*65536}, 0
        s_lshl_b32 {sU1}, {sJ}, 17
        s_sub_u32 {sU1}, {sU1}, {sU0}
        s_lshl2_add_u32 {sU1}, {sM0}, {sU1}
        s_lshl_b32 {sU0}, {sXCD}, 7
        s_add_u32 {sU1}, {sU1}, {sU0}
        """)
        nt = " nt" if self.o["nt_kv"] else ""
        a(f"buffer_load_dwordx4 v32, {SK}, {sEO} offen{nt} lds", "a1")
        self.stamp("pro.args")
        a(f"buffer_load_dwordx4 v33, {SK}, {sEO} offen offset:1024{nt} lds", "a1")
        a(f"s_add_u32 m0, {sT1}, {VT}")
        a(f"buffer_load_dwordx2 {V(RING,2)}, v36, {SSH}, {sT3} offen", "a1")
        a(f"buffer_load_dwordx4 v32, {SV}, {sEO} offen{nt} lds", "a1")
        a(f"buffer_load_dwordx4 v33, {SV}, {sEO} offen offset:1024{nt} lds", "a1")
        a(f"s_add_u32 m0, {sT2}, {KT + 512}")
        a("s_mov_b64 exec, 0xff")
        a(f"buffer_load_dwordx4 v34, {SK}, 0 offen lds", "a1")
        a("s_mov_b64 exec, -1")
        a(f"s_add_u32 m0, {sM0}, {W2R}")
        a(f"""
        s_lshr_b32 {sT0}, {sXCD}, 1
        """)
        a(f"buffer_load_dwordx4 v20, {SW2}, {sU1} offen{nt} lds", "w2r")
        a(f"buffer_load_dwordx4 v21, {SW2}, {sU1} offen offset:1024{nt} lds", "w2r")
        a(f"""
        s_and_b32 {sT1}, {sJ}, 3
        s_lshl2_add_u32 {sT0}, {sT0}, {sT1}         ; rb
        s_lshl2_add_u32 {sT0}, {sT0}, {sW}
        s_lshr_b32 {sT1}, {sT0}, 1
        s_lshl_b32 {sT1}, {sT1}, 16
        s_and_b32 {sT2}, {sW}, 1
        s_lshl_b32 {sT2}, {sT2}, 13
        s_add_u32 {sXO[0]}, {sT1}, {sT2}
        s_add_u32 {sXO[1]}, {sXO[0]}, {16384-1024}
        s_add_u32 {sXO[2]}, {sXO[1]}, {16384-1024}
        s_add_u32 {sXO[3]}, {sXO[2]}, {16384-1024}
        v_lshlrev_b32 v37, 4, v29
        v_xor_b32 {V(vXA[0])}, {V(vXO)}, v37
        v_xor_b32 {V(vXA[1])}, 64, {V(vXA[0])}
        s_and_b32 {sT2}, {sXCD}, 1
        s_mul_i32 {sT2}, {sT2}, 7
        s_lshr_b32 {sT3}, {sJ}, 2
        s_add_u32 {sT2}, {sT2}, {sT3}               ; ft
        s_mul_i32 {sW1O}, {sW}, {16*3584}
        s_lshl_b32 {sT3}, {sT2}, 8
        s_add_u32 {sW1O}, {sW1O}, {sT3}
        v_mul_u32_u24 v38, 2560, v27
        v_add_u32 {V(vW0)}, v20, v38
        v_add_u32 {V(vW1)}, {8*3584-1024}, {V(vW0)}
        """)
        return self.T(f"""
        s_mul_i32 {sFH}, {sT0}, 14
        s_add_u32 {sFH}, {sFH}, {sT2}
        s_lshl_b32 {sFH}, {sFH}, 8
        s_add_u32 {sFH}, {sFH}, {FL_H}
        s_mul_i32 {sHO}, {sT0}, 112
        s_add_u32 {sHO}, {sHO}, {sT2}
        s_lshl_b32 {sHO}, {sHO}, 10
        s_add_u32 {sHO}, {sHO}, {HWS}
        s_lshr_b32 {sT0}, {sW}, 1
        s_lshl1_add_u32 {sT0}, s2, {sT0}
        s_lshl_b32 {sHK}, {sT0}, 12
        s_lshl_b32 {sT1}, s2, 2
        s_mov_b32 {sT2}, {GEN}
        s_load_dwordx2 s[58:59], s[20:21], {sHK}
        s_load_dword {sD}, s[40:41], {sT1}
        s_load_dwordx2 {sTAG}, s[36:37], {sT2}
        s_and_b32 {sT1}, {sW}, 1
        s_lshl_b32 {sT1}, {sT1}, 2
        s_sub_u32 {sHK}, {sHK}, {sT1}
        s_add_u32 {sHK}, {sHK}, 8
        s_lshl2_add_u32 {sFK}, s2, {sW}
        s_lshl_b32 {sKF}, {sFK}, 11
        s_lshl_b32 {sFK}, {sFK}, 7
        s_add_u32 {sFK}, {sFK}, {FL_KV}
        v_lshlrev_b32 {V(vL16)}, 4, {V(vL)}
        """)

    def ld_x(self, c):
        L = []
        for i in range(4):
            t = f"buffer_load_dwordx4 {V(vXA[i&1])}, {SX}, {sXO[i]} offen offset:{1024*i + 128*c} lds"
            if i == 0:
                t = f"s_add_u32 m0, {sM0}, {R1 + (c & 3)*16384 - 128*c}\n+" + t
            L += self.T(t, f"x{c}")
        if c >= 4:
            L[0] = self.join(self.W(f"xr{c-4}"), [L[0]])[0]
        return L

    def ld_w1(self, n):
        c = n & 7
        adv = (128 - 7*64*3584) if n == 7 else 64*3584
        L = self.T(f"""
        s_add_u32 m0, {sM0}, {(n >> 3)*R1 + (c >> 1)*16384 + (c & 1)*2048}
        +buffer_load_dwordx4 {V(vW0)}, {SW1}, {sW1O} offen lds
        buffer_load_dwordx4 {V(vW1)}, {SW1}, {sW1O} offen offset:1024 lds
        """ + (f"+s_add_u32 {sW1O}, {sW1O}, {adv & 0xffffffff}" if n < 15 else ""), f"w{n}")
        if n >= 8 and n % 2 == 0:
            L[0] = self.join(self.W(f"xr{4 + (n-8)//2}"), [L[0]])[0]
        if n == 6:
            L[0] = self.join(self.W("bounce"), [L[0]])[0]
        return L

    def rd_x(self, c):
        L = self.T("\n".join(f"ds_read_b128 {V(XR+16*c+4*tt,4)}, {V(vXR[tt])} offset:{(c & 3)*16384}" for tt in range(4)), f"xr{c}")
        L[0] = self.join(self.W(f"x{c}"), [L[0]])[0]
        return L

    def addr_b1(self):
        t = f"""
        v_lshrrev_b32 v29, 4, {V(vL)}
        v_lshrrev_b32 v30, 5, {V(vL)}
        v_bfe_u32 v31, {V(vL)}, 1, 3
        v_xor_b32 v31, v31, v30
        v_lshlrev_b32 v31, 4, v31
        v_and_b32 v32, 31, {V(vL)}
        v_lshl_add_u32 v31, v32, 7, v31
        s_add_u32 {sT0}, {sM0}, {R1}
        v_add_u32 v31, {sT0}, v31
        v_bfe_u32 v32, {V(vL)}, 2, 2          ; r
        v_and_b32 v33, 3, {V(vL)}             ; c
        v_bfe_u32 v35, {V(vL)}, 3, 1          ; (r>>1)&1
        v_lshlrev_b32 v35, 6, v35
        v_lshl_add_u32 v35, v32, 7, v35
        v_and_b32 v34, 1, v29
        v_lshl_add_u32 v35, v34, 5, v35
        v_lshl_add_u32 v35, v33, 3, v35
        v_lshl_add_u32 v34, v30, 10, v35
        v_lshl_add_u32 v38, v30, 9, v35
        s_add_u32 {sT0}, {sM0}, {W2R}
        v_add_u32 v38, {sT0}, v38
        """
        for tt in range(4):
            t += f"""
            s_add_u32 {sT0}, {sW}, {tt}
            s_and_b32 {sT0}, {sT0}, 3
            s_lshl_b32 {sT1}, {sT0}, 5
            s_lshl_b32 {sT0}, {sT0}, 12
            v_xor_b32 {V(vXR[tt])}, {sT1}, v31
            v_add_u32 {V(vA[tt][0])}, {sT0}, v34
            v_xor_b32 {V(vA[tt][1])}, 64, {V(vA[tt][0])}
            """
        t += f"""
        v_lshrrev_b32 v31, 2, {V(vL)}
        v_xor_b32 v31, v31, v29
        v_and_b32 v31, 1, v31
        v_add_u32 v31, -1, v31
        v_and_b32 v31, 0x3f803f80, v31
        v_accvgpr_write_b32 {A(aSEL)}, v31
        v_accvgpr_write_b32 {A(aSEL+1)}, v31
        v_accvgpr_write_b32 {A(aSEL+2)}, v31
        v_accvgpr_write_b32 {A(aSEL+3)}, v31
        """
        return self.T(t)

    def addr_a1(self):
        return self.T(f"""
        v_lshrrev_b32 v27, 4, {V(vL)}         ; G
        v_bfe_u32 v28, {V(vL)}, 2, 2          ; r
        v_and_b32 v29, 3, {V(vL)}             ; c
        v_lshrrev_b32 v30, 2, {V(vL)}         ; 4G + r
        v_lshlrev_b32 v30, 9, v30
        v_lshl_add_u32 v30, v29, 3, v30
        v_xor_b32 v31, {sW}, v28
        v_lshl_add_u32 v31, v31, 5, v30
        v_add_u32 v31, {KT + 1024}, v31
        v_add_u32 v32, 3, v28
        v_and_b32 v32, 3, v32
        v_xor_b32 v32, {sW}, v32
        v_lshl_add_u32 v32, v32, 5, v30
        v_add_u32 v32, {KT + 512}, v32
        s_add_u32 {sT1}, {sM0}, {W2R}
        v_bfe_u32 v33, {V(vL)}, 1, 3          ; i>>1
        v_mul_u32_u24 v33, 272, v33
        v_lshl_add_u32 v33, v27, 4, v33
        v_add_u32 v33, {sT1}, v33
        v_and_b32 v34, 1, {V(vL)}
        v_lshlrev_b32 v34, 1, v34
        s_and_b32 {sT0}, {sST}, 3
        v_xor_b32 v34, {sT0}, v34
        v_xor_b32 v35, 1, v34
        v_lshl_add_u32 v34, v34, 6, v33
        v_lshl_add_u32 v35, v35, 6, v33
        v_and_b32 v36, 15, {V(vL)}
        v_lshlrev_b32 v36, 4, v36
        v_mul_u32_u24 v37, 272, v27
        v_add3_u32 v37, v37, v36, {sT1}
        v_lshl_add_u32 v36, v27, 13, v36
        v_xor_b32 v33, 64, v38
        s_lshl2_add_u32 {sT0}, {sXCD}, {sW}
        s_mul_i32 {sT0}, {sT0}, 28
        s_add_u32 {sT0}, {sT0}, {sJ}
        s_lshl_b32 {sT0}, {sT0}, 11
        s_add_u32 {sT0}, {sT0}, {W2T}
        s_cmp_lt_u32 {sJ}, 28
        +s_cselect_b32 {sU0}, {sT0}, {WS_SIZE}      ; w2 fragment store (spare workgroups have none)
        s_lshl2_add_u32 {sT0}, {sDT}, {sW}
        s_lshl_b32 {sT1}, {sT0}, 16
        s_lshl_b32 {sT2}, {sST}, 8
        s_add_u32 {sU1}, {sT1}, {sT2}
        s_add_u32 {sU2}, {sU1}, {4*8192}
        s_mul_i32 {sW2O}, {sT0}, {28*2048}
        s_add_u32 {sW2O}, {sW2O}, {W2T}
        """)

    def a1(self, fill):
        a = self.a
        a.wait("a1")
        a("s_barrier")
        self.stamp("a1data")
        self.stamp("pro.a1data")
        KR, VR, KF, VF, acc, WF, U, WT = 192, 206, 214, 242, 250, 44, 48, 56
        for s in range(-3, 4):
            base, imm = ("v31", s * 128) if s >= 0 else ("v32", (s + 4) * 128)
            a(f"ds_read_b64_tr_b16 {V(KR+2*(s+3),2)}, {base} offset:{imm}")
        for r in range(4):
            a(f"ds_read_b64_tr_b16 {V(VR+2*r,2)}, v31 offset:{VT-KT-1024+r*128}")
        a.wait("w2r")
        for nb in range(2):
            for jj in range(2):
                a(f"ds_read_b64_tr_b16 {V(WT+4*nb+2*jj,2)}, {'v33' if nb else 'v38'} offset:{1024*jj}")
        ops = []
        def unpack(dst, src):
            return [f"v_lshlrev_b32 {V(dst)}, 16, {V(src)}", f"v_and_b32 {V(dst+1)}, 0xffff0000, {V(src)}",
                    f"v_lshlrev_b32 {V(dst+2)}, 16, {V(src+1)}", f"v_and_b32 {V(dst+3)}, 0xffff0000, {V(src+1)}"]
        ops += unpack(WF, RING)
        done = set()
        for rho in range(4):
            for j in range(3, -1, -1):
                s = rho - j
                if s not in done:
                    ops += unpack(KF + 4 * (s + 3), KR + 2 * (s + 3))
                    done.add(s)
            if rho == 0:
                for nb in range(2):
                    ops.append(f"buffer_store_dwordx4 {V(WT+4*nb,4)}, {V(vL16)}, {SWS}, {sU0} offen offset:{1024*nb} sc1")
            vf = VF + 4 * (rho & 1)
            ops += unpack(vf, VR + 2 * rho)
            for j in range(3, -1, -1):
                s = rho - j
                wp = V(WF + (j & 2), 2)
                lo = j & 1
                for h in range(2):
                    k = V(KF + 4 * (s + 3) + 2 * h, 2)
                    d = V(acc + 2 * h, 2)
                    if j == 3:
                        ops.append(f"v_pk_mul_f32 {d}, {k}, {wp} op_sel:[0,{lo}] op_sel_hi:[1,{lo}]")
                    else:
                        ops.append(f"v_pk_fma_f32 {d}, {k}, {wp}, {d} op_sel:[0,{lo},0] op_sel_hi:[1,{lo},1]")
            for h in range(2):
                ops.append(f"v_pk_mul_f32 {V(acc+2*h,2)}, {V(acc+2*h,2)}, {V(vf+2*h,2)}")
            for h in range(2):
                ops.append(f"v_cvt_pk_bf16_f32 {V(U+2*rho+h)}, {V(acc+2*h)}, {V(acc+2*h+1)}")
            if rho & 1:
                ops.append(f"ds_write_b128 {'v34' if rho == 1 else 'v35'}, {V(U+4*(rho>>1),4)}")
        nf = len(fill)
        k = 0
        for n, op in enumerate(ops):
            a(op, "kvst")
            while k < nf and (k + 1) * len(ops) <= (n + 1) * (nf + 1):
                fill[k]()
                k += 1
        a(f"ds_read_b128 {V(U,4)}, v37", "bounce")
        a(f"ds_read_b128 {V(U+4,4)}, v37 offset:1088", "bounce")
        for f in fill[k:]:
            f()
        a(f"""
        s_add_u32 s42, s42, 0x7f4a7c15
        s_addc_u32 s43, s43, 0x9e3779b9
        v_mov_b32 {V(vTAG)}, s42
        v_mov_b32 {V(vTAG+1)}, s43
        """)
        a(f"buffer_store_dwordx4 {V(U,4)}, v36, {SWS}, {sU1} offen sc1", "kvst")
        a(f"buffer_store_dwordx4 {V(U+4,4)}, v36, {SWS}, {sU2} offen sc1", "kvst")

    def kv_flag(self):
        return self.join(self.W("kvst"), self.flag_store(sFK))

    def w_frag(self, s, fb):
        c, tt = (s >> 2) & 7, s & 3
        r = RING + 8 * (s % 3) + 4 * fb
        for jj in range(2):
            self.a(f"ds_read_b64_tr_b16 {V(r+2*jj,2)}, {V(vA[tt][fb])} offset:{(c>>1)*16384 + (c&1)*2048 + jj*512}", f"f{s}")

    def b1(self, fill):
        a = self.a
        for s in range(64):
            hf, c, tt = s >> 5, (s >> 2) & 7, s & 3
            x = V(XR + 16 * c + 4 * tt, 4)
            n2 = s + 2
            cnt = []
            for fb in range(2):
                n0 = len(a.out)
                acc = V(ACC + 32 * hf + 16 * fb, 16)
                fr = V(RING + 8 * (s % 3) + 4 * fb, 4)
                first = (c == 0 and tt == 0)
                if fb == 0:
                    a.wait(f"f{s}")
                a(f"v_mfma_f32_32x32x16_bf16 {acc}, {fr}, {x}, {'0' if first else acc}")
                if n2 < 64:
                    if fb == 0 and tt == 2:
                        a.wait(f"w{n2 >> 2}")
                    if fb == 0 and tt == 3:
                        a("s_barrier")
                    if 32 <= n2 < 36:
                        a(f"v_add_u32 {V(vA[n2&3][fb])}, 0x10000, {V(vA[n2&3][fb])}")
                    self.w_frag(n2, fb)
                self.gap(fill, 2 * s + fb, "b1")
                if tt == 0:
                    cc = A(aC + 8 * hf + 4 * fb, 4)
                    a(f"v_mfma_f32_16x16x32_bf16 {cc}, {A(aSEL,4)}, {fr}, {'0' if c == 0 else cc}")
                if hf == 0 and fb == 1:
                    mm = A(aM, 4)
                    a(f"v_mfma_f32_16x16x32_bf16 {mm}, {A(aSEL,4)}, {x}, {'0' if first else mm}")
                cnt.append(len(a.out) - n0)
            self.load.append(("b1", s, cnt))
            if tt == 3:
                self.stamp(f"p{hf+1}.c{c}")
            if s == 31:
                self.stamp("pass1")
        assert not fill, fill.keys()

    def c_publish(self, hf):
        return self.T(f"""
        v_accvgpr_read_b32 v27, {A(aC+8*hf)}
        v_accvgpr_read_b32 v28, {A(aC+8*hf+4)}
        s_lshl_b32 {sT0}, {sW}, 3
        s_add_u32 {sT0}, {sT0}, {CX + 2048*hf}
        v_cmp_gt_u32 vcc, 32, {V(vL)}
        +v_lshlrev_b32 v30, 5, {V(vL)}
        +v_add_u32 v30, {sT0}, v30
        +v_cndmask_b32 v27, v28, v27, vcc
        v_and_b32 v28, 0xffff0000, v27
        v_sub_f32 v27, v27, v28
        v_and_b32 v29, 0xffff0000, v27
        v_sub_f32 v27, v27, v29
        v_lshrrev_b32 v28, 16, v28
        v_or_b32 v28, v28, v29
        v_lshrrev_b32 v29, 16, v27
        ds_write_b64 v30, v[28:29]
        """, f"cx{hf}")

    def m_finish(self):
        return self.T(f"""
        v_accvgpr_read_b32 v36, {A(aM)}
        v_mul_f32 v36, 0xbb000000, v36
        v_cvt_pk_bf16_f32 v36, v36, v36
        v_accvgpr_write_b32 {A(aM)}, v36
        v_accvgpr_write_b32 {A(aM+1)}, v36
        v_accvgpr_write_b32 {A(aM+2)}, v36
        v_accvgpr_write_b32 {A(aM+3)}, v36
        """)

    def c_addr(self):
        return self.T(f"""
        v_and_b32 v37, 31, {V(vL)}
        v_lshrrev_b32 v36, 5, {V(vL)}
        v_lshlrev_b32 v37, 5, v37
        v_lshl_add_u32 v37, v36, 4, v37
        v_add_u32 v37, {CX}, v37
        """)

    def c_read(self, hf):
        return self.T(f"""
        ds_read_b128 v[28:31], v37 offset:{2048*hf}
        ds_read_b128 v[32:35], v37 offset:{2048*hf + 1024}
        """)

    def c_apply(self, hf, fb):
        acc = V(ACC + 32 * hf + 16 * fb, 16)
        return self.T(f"v_mfma_f32_32x32x16_bf16 {acc}, {V(28+4*fb,4)}, {A(aM,4)}, {acc}")

    def h_store(self, hf, q):
        r = ACC + 32 * hf + 8 * q
        t = "\n".join(f"v_cvt_pk_bf16_f32 {V(r+i)}, {V(r+2*i)}, {V(r+2*i+1)}" for i in range(4)) + "\n"
        t += "\n".join(f"v_pk_max_i16 {V(r+i)}, {V(r+i)}, 0" for i in range(4)) + "\n"
        t += f"s_add_u32 {sT0}, {sHO}, {(hf*56 + q*14)*1024}\n"
        t += f"+buffer_store_dwordx4 {V(r,4)}, {V(vL16)}, {SWS}, {sT0} offen sc1"
        return self.T(t, f"hst{hf}")

    def h_flag(self, hf):
        if hf == 0:
            return self.join(self.W("hst0"), self.flag_store(sFH))
        return self.join(self.T(f"s_add_u32 {sT0}, {sFH}, 128"), self.W("hst1"), self.flag_store(sT0))

    def ld_w2(self):
        L = []
        for i in range(56):
            t = f"buffer_load_dwordx4 {A(4*i,4)}, {V(vL16)}, {SWS}, {sW2O} offen offset:{1024*(i&3)} sc1"
            if i % 4 == 3 and i < 55:
                t += f"\n+s_add_u32 {sW2O}, {sW2O}, 4096"
            L += self.T(t)
        return L

    def ld_hk(self):
        nt = " nt" if self.o["nt_hk"] else ""
        return self.T("\n".join(f"buffer_load_dwordx4 {V(HK+4*i,4)}, {V(vL16)}, {SHK}, {sHK} offen offset:{1024*i}{nt}" for i in range(4)))

    def p_head(self):
        x = HK + 16
        return self.T(f"""
        s_lshr_b32 {sT0}, {sW}, 1
        s_lshl_b32 {sT0}, {sT0}, 4
        s_lshr_b32 {sT0}, {sD}, {sT0}
        s_lshl_b32 {sT0}, {sT0}, 16
        s_lshl_b32 {sT1}, {sH0}, 16
        v_mov_b32 {V(x)}, {sT0}
        v_add_f32 {V(x)}, {sT1}, {V(x)}
        v_cvt_pk_bf16_f32 {V(x)}, {V(x)}, {V(x)}
        s_mul_i32 {sT2}, {sW}, 8256
        v_mov_b32 {V(x+4)}, 0
        v_readfirstlane_b32 {sT0}, {V(x)}
        v_mov_b32 {V(x+5)}, 0
        v_mov_b32 {V(x+6)}, 0
        v_mov_b32 {V(x+7)}, 0
        s_and_b32 {sT0}, {sT0}, 0xffff
        s_and_b32 {sT1}, {sH0}, 0xffff0000
        s_or_b32 {sT0}, {sT0}, {sT1}            ; (h0 + D, h1)
        s_bitcmp1_b32 {sW}, 0
        +s_cselect_b32 {sCY}, {sT0}, {sH1}      ; dword 3 of chunk 1
        +s_cselect_b32 {sT0}, 0, {sT0}          ; dword 2 of chunk 1
        s_lshl_b32 {sT1}, {sT0}, 16
        s_lshl_b32 {sT3}, {sCY}, 16
        v_writelane_b32 {V(x+6)}, {sT0}, 1
        s_lshr_b32 {sT0}, {sT0}, 16
        v_writelane_b32 {V(x+7)}, {sCY}, 1
        s_or_b32 {sT3}, {sT3}, {sT0}
        v_writelane_b32 {V(x+6)}, {sT1}, 3
        v_writelane_b32 {V(x+7)}, {sT3}, 3
        v_and_b32 {V(x)}, 1, {V(vL)}
        v_lshrrev_b32 {V(x+1)}, 1, {V(vL)}
        v_mul_u32_u24 {V(x+1)}, 4128, {V(x+1)}
        v_lshl_add_u32 {V(x)}, {V(x)}, 4, {V(x+1)}
        v_add_u32 {V(x)}, {sT2}, {V(x)}
        v_add_u32 {V(x+2)}, {sT2}, {V(vL16)}
        v_lshlrev_b32 {V(x+1)}, 2, v0
        """)

    def p_head2(self):
        x = HK + 16
        return self.T(f"""
        s_mov_b64 exec, 15
        +ds_write_b128 {V(x)}, {V(x+4,4)} offset:{PB}
        +s_mov_b64 exec, -1
        ds_write_b32 {V(x+1)}, {V(x+4)} offset:{KV}
        """, "pw")

    def p_shift(self, i):
        r = HK + 4 * i
        x = HK + 16
        d = HK + 24 + 4 * (i & 1)
        return self.T(f"""
        v_mov_b32 {V(x+3)}, {sCY}
        v_readlane_b32 {sCY}, {V(r+3)}, 63
        v_alignbyte_b32 {V(d+1)}, {V(r+1)}, {V(r)}, 2
        v_mov_b32_dpp {V(x+3)}, {V(r+3)} wave_shr:1 row_mask:0xf bank_mask:0xf
        v_alignbyte_b32 {V(d+2)}, {V(r+2)}, {V(r+1)}, 2
        v_alignbyte_b32 {V(d+3)}, {V(r+3)}, {V(r+2)}, 2
        v_alignbyte_b32 {V(d)}, {V(r)}, {V(x+3)}, 2
        """)

    def p_write(self, i, ph):
        x = HK + 16
        src = HK + 24 + 4 * (i & 1) if ph else HK + 4 * i
        return self.T(f"ds_write_b128 {V(x+2)}, {V(src,4)} offset:{PB + 4128*ph + 32 + 1024*i}", "pw")

    def kv_poll_addr(self):
        return self.T(f"""
        v_min_u32 v27, 27, {V(vL)}
        v_lshlrev_b32 v27, 12, v27
        s_lshl2_add_u32 {sT0}, {sDT}, {sW}
        s_lshl_b32 {sT0}, {sT0}, 7
        v_add_u32 v27, {sT0}, v27
        v_and_b32 v28, 3, {V(vL)}
        v_bfe_u32 v29, {V(vL)}, 2, 1
        v_lshlrev_b32 v28, 15, v28
        v_lshl_add_u32 v28, v29, 9, v28
        s_lshr_b32 {sT0}, {sJ}, 2
        s_lshl_b32 {sT0}, {sT0}, 12
        s_and_b32 {sT1}, {sJ}, 3
        s_lshl_b32 {sT1}, {sT1}, 7
        s_add_u32 {sT0}, {sT0}, {sT1}
        s_lshl_b32 {sT1}, {sW}, 10
        s_add_u32 {sT0}, {sT0}, {sT1}
        v_cmp_gt_u32 vcc, 32, {V(vL)}
        +v_add_u32 v28, {sT0}, v28
        +s_mov_b32 {sPO}, {FL_KV}
        +v_cndmask_b32 {V(vPO)}, v28, v27, vcc
        """)

    def kv_fetch(self):
        return self.T(f"""
        s_lshr_b32 {sU0}, {sM0}, 1
        +s_add_u32 m0, {sU0}, {KV + 1024}
        +buffer_load_dwordx4 {V(vL16)}, {SWS}, {sKF} offen sc1 lds
        +buffer_load_dwordx4 {V(vL16)}, {SWS}, {sKF} offen offset:1024 sc1 lds
        """, "kv")

    def conv_addr(self):
        t = f"""
        v_lshrrev_b32 v27, 4, {V(vL)}          ; G
        v_bfe_u32 v28, {V(vL)}, 2, 2           ; r
        v_and_b32 v29, 3, {V(vL)}              ; c
        v_lshl_add_u32 v29, v27, 2, v29
        v_sub_u32 v29, v29, v28
        s_mul_i32 {sT0}, {sW}, 8256
        s_add_u32 {sT0}, {sT0}, {PB + 24}
        v_lshlrev_b32 v29, 3, v29
        v_add_u32 {V(vCA)}, {sT0}, v29
        v_and_b32 v28, 15, {V(vL)}
        v_sub_u32 v28, v28, v27                ; a - G
        v_add_u32 v28, 16, v28
        v_lshrrev_b32 v27, 2, v28
        v_and_b32 v28, 3, v28
        v_lshlrev_b32 v28, 4, v28
        v_lshl_add_u32 v28, v27, 8, v28
        """
        for e in range(4):
            t += f"""
            v_add_u32 v29, {-e}, v27
            v_xor_b32 v29, {sW}, v29
            v_and_b32 v29, 3, v29
            v_lshl_add_u32 v29, v29, 6, v28
            v_add_u32 {V(vXR[e])}, {KV - 256*e}, v29
            """
        return self.T(t)

    def conv_reads(self, e):
        base = XR + 64 * (e & 1)
        L = []
        for n in range(8):
            L.append(f"ds_read_b128 {V(base+32+4*n,4)}, {V(vXR[e])} offset:{1024*n}")
            for ph in range(2):
                L.append(f"ds_read_b64_tr_b16 {V(base+4*n+2*ph,2)}, {V(vCA)} offset:{ph*4128 + 128*(4*n+e)}")
        return self.T("\n".join(L), f"cv{e}")

    def conv(self, fill):
        a = self.a
        k = 0
        for e in range(4):
            base = XR + 64 * (e & 1)
            if e < 3:
                self.place(fill, self.conv_reads(e + 1), 36 * e + 2, 0.75)
                prs = sorted([(n, d) for n in range(8) for d in range(8) if n + d < 8], key=lambda p: (max(p), p[0] + p[1]))
            else:
                prs = sorted([(n, d) for n in range(8) for d in range(8) if n + d < 8], key=lambda p: (-(p[0] + p[1]), max(p)))
            seen = set()
            cnt = []
            for i, (n, d) in enumerate(prs):
                n0 = len(a.out)
                acc = A(aY + 4 * (n + d), 4)
                first = (e == 0 and (n + d) not in seen)
                seen.add(n + d)
                a(f"v_mfma_f32_16x16x32_bf16 {acc}, {V(base+4*n,4)}, {V(base+32+4*d,4)}, {'0' if first else acc}")
                self.gap(fill, k, "cv")
                cnt.append(len(a.out) - n0)
                k += 1
            self.load.append(("cv", e, cnt))
            self.stamp(f"cv.e{e}")
        assert not fill, fill.keys()

    def y_addr(self):
        return self.T(f"""
        v_lshrrev_b32 v27, 4, {V(vL)}
        v_and_b32 v28, 15, {V(vL)}
        v_mul_u32_u24 v27, 20, v27
        v_add_lshl_u32 v27, v27, v28, 4
        s_mul_i32 {sT0}, {sW}, 10240
        s_add_u32 {sT0}, {sT0}, {EX}
        v_add_u32 v12, {sT0}, v27
        v_and_b32 v28, 3, {V(vL)}
        v_lshrrev_b32 v29, 2, {V(vL)}
        v_mul_u32_u24 v28, 20, v28
        v_add_lshl_u32 v28, v28, v29, 4
        s_mul_i32 {sT0}, {sW}, 2560
        s_add_u32 {sT0}, {sT0}, {EX}
        v_add_u32 v13, {sT0}, v28
        """)

    def y_write(self, t):
        return self.T(f"ds_write_b128 v12, {A(aY+4*t,4)} offset:{1280*t}", "ex")

    YT = 160
    def y_gather(self):
        R = self.YT
        L = self.join(self.W("ex"), self.T("s_barrier"))
        L += self.T("\n".join(f"ds_read_b128 {V(R+16*t+4*src,4)}, v13 offset:{10240*src + 1280*t}" for t in range(2) for src in range(4)))
        return L

    def y_sum(self, t):
        b = self.YT + 16 * t
        x = ""
        for i in range(4):
            x += f"v_add_f32 {V(b+i)}, {V(b+i)}, {V(b+4+i)}\n"
        for i in range(4):
            x += f"v_add_f32 {V(b+8+i)}, {V(b+8+i)}, {V(b+12+i)}\n"
        for i in range(4):
            x += f"v_cvt_pk_bf16_f32 {V(b+4+i)}, {V(b+i)}, {V(b+8+i)}\n"
        x += f"s_add_u32 {sT0}, {sKF}, {YWS}\n"
        x += f"+buffer_store_dwordx4 {V(b+4,4)}, {V(vL16)}, {SWS}, {sT0} offen offset:{1024*t} sc1"
        return self.T(x, "yst")

    def y_flag(self):
        return self.join(self.T(f"s_add_u32 {sT0}, {sFK}, {FL_Y - FL_KV}"), self.W("yst"), self.flag_store(sT0))

    def h_poll_addr(self):
        return self.T(f"""
        v_and_b32 v27, 1, {V(vL)}
        v_lshrrev_b32 v28, 1, {V(vL)}
        v_min_u32 v28, 13, v28
        v_mul_u32_u24 v27, 14, v27
        v_add_lshl_u32 {V(vPO)}, v27, v28, 8
        s_mul_i32 {sPO}, {sST}, {28*256}
        s_add_u32 {sPO}, {sPO}, {FL_H}
        s_mul_i32 {sHL}, {sST}, 224
        s_mul_i32 {sT0}, {sW}, 14
        s_add_u32 {sHL}, {sHL}, {sT0}
        s_lshl_b32 {sHL}, {sHL}, 10
        s_add_u32 {sHL}, {sHL}, {HWS}
        v_add_u32 {V(vH2)}, {112*1024}, {V(vL16)}
        """)

    def ld_h(self, order):
        L = []
        cur = None
        for k, sb in order:
            hf, T = divmod(k, 14)
            t = f"buffer_load_dwordx4 {V(hslot(k,sb),4)}, {V(vH2 if sb else vL16)}, {SWS}, {sHL2} offen offset:{1024*(T%4)} sc1"
            if cur != (hf, T // 4):
                cur = (hf, T // 4)
                t = f"s_add_u32 {sHL2}, {sHL}, {(hf*56 + T//4*4)*1024}\n+" + t
            L += self.T(t)
        return L

    def b2(self, order, fill):
        a = self.a
        seen = set()
        cnt = []
        for g, (k, q) in enumerate(order):
            n0 = len(a.out)
            sb, nb = q >> 1, q & 1
            acc = V(ACC2 + 16 * q, 16)
            a(f"v_mfma_f32_32x32x16_bf16 {acc}, {A(8*k+4*nb,4)}, {V(hslot(k,sb),4)}, {acc if q in seen else '0'}")
            seen.add(q)
            self.gap(fill, g, "b2")
            cnt.append(len(a.out) - n0)
            if g % 16 == 15:
                self.load.append(("b2", g, cnt))
                cnt = []
            if g % 12 == 11:
                self.stamp(f"b2.g{g}")
        assert not fill, fill.keys()

    EXR, ESR, EYR = 112, 120, 160
    XF, TF, RR = 128, 144, 160

    def y_poll_addr(self):
        return self.T(f"""
        v_and_b32 {V(vPO)}, 31, {V(vL)}
        v_lshlrev_b32 {V(vPO)}, 9, {V(vPO)}
        s_lshl_b32 {sPO}, {sDT}, 14
        s_lshr_b32 {sT3}, {sST}, 3
        s_lshl_b32 {sT3}, {sT3}, 7
        s_add_u32 {sPO}, {sPO}, {sT3}
        s_add_u32 {sPO}, {sPO}, {FL_Y}
        """)

    def ep_loads(self):
        return self.T(f"""
        v_lshrrev_b32 v18, 3, {V(vL)}
        v_lshlrev_b32 v18, 4, v18
        s_lshl_b32 {sT0}, {sST}, 10
        s_lshl_b32 {sT1}, {sW}, 8
        s_add_u32 {sT0}, {sT0}, {sT1}
        s_add_u32 {sST2}, {sT0}, {STAT}
        s_add_u32 {sU1}, {sEO}, 8192
        buffer_load_dwordx4 {V(self.ESR,4)}, v18, {SWS}, {sST2} offen sc1
        buffer_load_dwordx4 {V(self.ESR+4,4)}, v18, {SWS}, {sST2} offen offset:128 sc1
        buffer_load_dwordx4 {V(self.EXR,4)}, {V(vXO)}, {SX}, {sEO} offen
        buffer_load_dwordx4 {V(self.EXR+4,4)}, {V(vXO)}, {SX}, {sU1} offen
        """)

    def y_fetch_addr(self):
        return self.T(f"""
        v_lshrrev_b32 v27, 3, {V(vL)}
        v_and_b32 v28, 7, {V(vL)}
        v_lshrrev_b32 v29, 4, {V(vL)}
        v_xor_b32 v29, v28, v29                ; idx
        v_lshrrev_b32 v30, 2, v29
        v_lshl_add_u32 v30, v27, 1, v30
        v_and_b32 v29, 3, v29
        v_lshlrev_b32 v29, 4, v29
        v_lshl_add_u32 v34, v30, 13, v29
        v_xor_b32 v35, 0x2000, v34
        v_add_u32 v35, {16*8192 - 1024}, v35
        s_lshl_b32 {sT0}, {sDT}, 18
        s_lshl_b32 {sT1}, {sST}, 8
        s_lshl_b32 {sT2}, {sW}, 6
        s_add_u32 {sT0}, {sT0}, {sT1}
        s_add_u32 {sT0}, {sT0}, {sT2}
        s_add_u32 {sU2}, {sT0}, {YWS}
        s_lshr_b32 {sU0}, {sM0}, 1
        s_add_u32 {sU0}, {sU0}, {YB}
        s_mov_b32 m0, {sU0}
        v_lshrrev_b32 v27, 5, {V(vL)}
        v_xor_b32 v27, v27, v28
        v_lshlrev_b32 v27, 4, v27
        v_lshl_add_u32 v27, v28, 8, v27
        v_bfe_u32 v28, {V(vL)}, 3, 2
        v_lshl_add_u32 v27, v28, 2, v27
        v_add_u32 v27, {sU0}, v27
        v_xor_b32 v28, 64, v27
        v_xor_b32 v29, 32, v27
        v_xor_b32 v30, 0x60, v27
        """)

    def y_fetch(self):
        return self.T(f"""
        buffer_load_dwordx4 v34, {SWS}, {sU2} offen sc1 lds
        buffer_load_dwordx4 v35, {SWS}, {sU2} offen offset:1024 sc1 lds
        """, "y")

    def y_read(self):
        L = self.T("\n".join(f"ds_read_b32 {V(self.EYR+4*st+e)}, {V(27 + 2*st + (e & 1))} offset:{128*(e >> 1)}" for st in range(2) for e in range(4)))
        L[0] = self.join(self.W("y"), [L[0]])[0]
        return L

    def stat_check(self):
        def f():
            a = self.a
            S = self.ESR
            a(f"v_cmp_ne_u64 vcc, {sTAG}, {V(S+2,2)}")
            a(f"v_cmp_ne_u64 s[60:61], {sTAG}, {V(S+6,2)}")
            a("s_or_b64 vcc, vcc, s[60:61]")
            a("s_cbranch_vccnz L_slow_st")
            a.label("L_back_st")
            self.slow.append(f"""L_slow_st:
    s_mov_b32 {sCNT}, 0
L_spin_st:
    buffer_load_dwordx4 {V(S,4)}, v18, {SWS}, {sST2} offen sc1
    buffer_load_dwordx4 {V(S+4,4)}, v18, {SWS}, {sST2} offen offset:128 sc1
    s_add_u32 {sCNT}, {sCNT}, 1
    s_cmp_gt_u32 {sCNT}, 20000
    s_waitcnt vmcnt(0)
    s_cbranch_scc1 L_back_st
    v_cmp_ne_u64 vcc, {sTAG}, {V(S+2,2)}
    v_cmp_ne_u64 s[60:61], {sTAG}, {V(S+6,2)}
    s_or_b64 vcc, vcc, s[60:61]
    s_cbranch_vccnz L_spin_st
    s_branch L_back_st
""")
        return [f]

    def ep_pre(self, st, e):
        x, y = self.EXR + 4 * st + e, self.EYR + 4 * st + e
        xf, tf = self.XF + 8 * st + 2 * e, self.TF + 8 * st + 2 * e
        m = V(self.ESR + 4 * st)
        return self.T(f"""
        v_lshlrev_b32 {V(xf)}, 16, {V(x)}
        v_and_b32 {V(xf+1)}, 0xffff0000, {V(x)}
        v_lshlrev_b32 v32, 16, {V(y)}
        v_and_b32 v33, 0xffff0000, {V(y)}
        v_sub_f32 {V(tf)}, {V(xf)}, {m}
        v_sub_f32 {V(tf+1)}, {V(xf+1)}, {m}
        v_mul_f32 {V(tf)}, {V(tf)}, v32
        v_mul_f32 {V(tf+1)}, {V(tf+1)}, v33
        """)

    def ep_addr(self):
        return self.T(f"""
        v_and_b32 v36, 31, {V(vL)}
        v_mul_u32_u24 v36, 272, v36
        v_lshrrev_b32 v37, 5, {V(vL)}
        v_lshl_add_u32 v36, v37, 4, v36
        s_mul_i32 {sT0}, {sW}, 17408
        v_add_u32 v15, {sT0}, v36
        v_lshrrev_b32 v36, 3, {V(vL)}
        v_mul_u32_u24 v36, 272, v36
        v_and_b32 v37, 7, {V(vL)}
        v_lshl_add_u32 v36, v37, 5, v36
        s_mul_i32 {sT0}, {sW}, {8*272}
        v_add_u32 v16, {sT0}, v36
        """)

    def red_write(self, q):
        sb, nb = q >> 1, q & 1
        return self.T("\n".join(f"ds_write_b128 v15, {V(ACC2+16*q+4*g,4)} offset:{RED + sb*8704 + nb*128 + g*32}" for g in range(4)), f"red{sb}")

    def red_read(self, st):
        L = self.join(self.W(f"red{st}"), self.T("s_barrier"))
        L += self.T("\n".join(f"ds_read_b128 {V(self.RR+8*src+4*hh,4)}, v16 offset:{RED + src*17408 + st*8704 + hh*16}" for src in range(4) for hh in range(2)))
        return L

    def finish(self, st, packed):
        tf, xf, R = self.TF + 8 * st, self.XF + 8 * st, self.RR
        t = ""
        for src in range(4):
            if packed:
                for p in range(4):
                    t += f"v_pk_add_f32 {V(tf+2*p,2)}, {V(tf+2*p,2)}, {V(R+8*src+2*p,2)}\n"
            else:
                for p in range(8):
                    t += f"v_add_f32 {V(tf+p)}, {V(tf+p)}, {V(R+8*src+p)}\n"
        if packed:
            rr = V(self.ESR + 4 * st, 2)
            for p in range(4):
                t += f"v_pk_fma_f32 {V(tf+2*p,2)}, {V(tf+2*p,2)}, {rr}, {V(xf+2*p,2)} op_sel:[0,1,0] op_sel_hi:[1,1,1]\n"
        else:
            for p in range(8):
                t += f"v_fma_f32 {V(tf+p)}, {V(tf+p)}, {V(self.ESR+4*st+1)}, {V(xf+p)}\n"
        for p in range(4):
            t += f"v_cvt_pk_bf16_f32 {V(xf+p)}, {V(tf+2*p)}, {V(tf+2*p+1)}\n"
        t += f"buffer_store_dwordx4 {V(xf,4)}, {V(vXO)}, {SO}, {sU1 if st else sEO} offen{self.o['out_pol']}"
        return self.T(t)

    def stats_loads(self):
        a = self.a
        a(f"""
        s_mov_b32 s6, 0x200000
        s_and_b32 {sT1}, {sJ}, 3
        s_lshl2_add_u32 {sT1}, {sXCD}, {sT1}
        s_lshl2_add_u32 {sT1}, {sT1}, {sW}
        s_lshl_b32 {sXO[0]}, {sT1}, 14
        s_add_u32 {sXO[1]}, {sXO[0]}, 8192
        s_mov_b32 {sFH}, {WS_SIZE}
        """)
        for c in range(8):
            for i in range(2):
                a(f"buffer_load_dwordx4 {V(XR+16*c+4*i,4)}, {V(vXO)}, {SX}, {sXO[i]} offen offset:{128*c}")

    def stats(self):
        a = self.a
        a("v_mov_b32 v27, 0x3f803f80")
        def red8(r):
            a(f"v_add_f32_dpp {V(r)}, {V(r)}, {V(r)} quad_perm:[1,0,3,2] row_mask:0xf bank_mask:0xf")
            a(f"v_add_f32_dpp {V(r)}, {V(r)}, {V(r)} quad_perm:[2,3,0,1] row_mask:0xf bank_mask:0xf")
            a(f"v_add_f32_dpp {V(r)}, {V(r)}, {V(r)} row_half_mirror row_mask:0xf bank_mask:0xf")
        for i in range(2):
            a(f"v_mov_b32 {V(64+8*i)}, 0")
            a(f"v_mov_b32 {V(65+8*i)}, 0")
        for c in range(8):
            for j in range(4):
                for i in range(2):
                    a(f"v_dot2c_f32_bf16 {V(64+8*i+(j&1))}, {V(XR+16*c+4*i+j)}, v27")
        for i in range(2):
            a(f"v_add_f32 {V(64+8*i)}, {V(64+8*i)}, {V(65+8*i)}")
        for i in range(2):
            red8(64 + 8 * i)
        for i in range(2):
            a(f"v_mul_f32 {V(64+8*i)}, 0x3b000000, {V(64+8*i)}")
            a(f"v_mov_b32 {V(66+8*i)}, 0")
            a(f"v_mov_b32 {V(67+8*i)}, 0")
        for c in range(8):
            for j in range(4):
                for i in range(2):
                    x = V(XR + 16 * c + 4 * i + j)
                    t = 68 + 8 * i
                    a(f"v_lshlrev_b32 {V(t)}, 16, {x}")
                    a(f"v_and_b32 {V(t+1)}, 0xffff0000, {x}")
                    a(f"v_pk_add_f32 {V(t,2)}, {V(t,2)}, {V(64+8*i,2)} op_sel:[0,0] op_sel_hi:[1,0] neg_lo:[0,1] neg_hi:[0,1]")
                    a(f"v_pk_fma_f32 {V(66+8*i,2)}, {V(t,2)}, {V(t,2)}, {V(66+8*i,2)}")
        for i in range(2):
            a(f"v_add_f32 {V(66+8*i)}, {V(66+8*i)}, {V(67+8*i)}")
        for i in range(2):
            red8(66 + 8 * i)
        a(f"""
        v_lshrrev_b32 v28, 3, {V(vL)}
        v_lshlrev_b32 v28, 4, v28
        s_lshr_b32 {sT0}, {sXO[0]}, 6
        s_add_u32 {sT0}, {sT0}, {STAT}
        """)
        for i in range(2):
            m, v = 64 + 8 * i, 66 + 8 * i
            a(f"""
            v_mul_f32 {V(v)}, 0x3b000000, {V(v)}
            v_cvt_pk_bf16_f32 {V(v)}, {V(v)}, {V(m)}
            v_and_b32 {V(m)}, 0xffff0000, {V(v)}
            v_lshlrev_b32 {V(v)}, 16, {V(v)}
            v_add_f32 {V(v)}, 0x3727c5ac, {V(v)}
            v_cvt_pk_bf16_f32 {V(v)}, {V(v)}, {V(v)}
            v_lshlrev_b32 {V(v)}, 16, {V(v)}
            v_sqrt_f32 {V(v)}, {V(v)}
            v_cvt_pk_bf16_f32 {V(v)}, {V(v)}, {V(v)}
            v_lshlrev_b32 {V(v)}, 16, {V(v)}
            v_rcp_f32 {V(m+1)}, {V(v)}
            v_mov_b32 {V(m+2)}, {V(vTAG)}
            v_mov_b32 {V(m+3)}, {V(vTAG+1)}
            """)
        a("s_mov_b32 exec_lo, 0x01010101")
        a("s_mov_b32 exec_hi, 0x01010101")
        for i in range(2):
            a(f"buffer_store_dwordx4 {V(64+8*i,4)}, v28, {SWS}, {sT0} offen offset:{128*i} sc1")
        a("s_mov_b64 exec, -1")

    def gen_update(self):
        a = self.a
        a(f"s_cmp_lg_u32 s2, {28*8}")
        a("s_cbranch_scc1 L_nogen")
        a.wait_all()
        a.raw(f"""    v_lshlrev_b32 v28, 7, v0
    s_mov_b32 {sT1}, {FL_KV}
L_gen_next:
    s_mov_b32 {sCNT}, 0
L_gen_spin:
    buffer_load_dwordx2 v[30:31], v28, {SWS}, {sT1} offen sc1
    s_add_u32 {sCNT}, {sCNT}, 1
    s_cmp_gt_u32 {sCNT}, 20000
    s_waitcnt vmcnt(0)
    s_cbranch_scc1 L_gen_got
    v_cmp_ne_u64 vcc, {sTAG}, v[30:31]
    s_cbranch_vccnz L_gen_spin
L_gen_got:
    s_add_u32 {sT1}, {sT1}, 0x8000
    s_cmp_lt_u32 {sT1}, {FL_KV + 0x20000}
    s_cbranch_scc1 L_gen_next
    s_barrier
    s_cmp_lg_u32 {sW}, 0
    s_cbranch_scc1 L_nogen
    s_mov_b32 {sT1}, {GEN}
    s_mov_b64 exec, 1
    buffer_store_dwordx2 {V(vTAG,2)}, off, {SWS}, {sT1} sc1
    s_mov_b64 exec, -1
    s_waitcnt vmcnt(0)
L_nogen:""")

    def build(self):
        a, o, place, run = self.a, self.o, self.place, self.run
        rest = self.prologue()
        rest += self.addr_b1() + self.addr_a1()
        pre = self.ld_x(0) + self.ld_w1(0) + self.ld_x(1) + self.ld_w1(1) + self.ld_x(2)
        step = len(rest) / len(pre)
        k = 0
        for i, f in enumerate(pre):
            f()
            while k < len(rest) and k < (i + 1) * step:
                rest[k]()
                k += 1
        run(rest[k:])
        self.stamp("pro.issued")
        self.a1(self.ld_w1(2) + self.ld_x(3) + self.ld_w1(3) + self.ld_hk() + self.join(self.rd_x(0)) + self.ld_w1(4) + self.ld_x(4) + self.join(self.rd_x(1)))
        self.stamp("a1done")
        self.stamp("pro.a1done")
        a(f"s_cmp_ge_u32 {sJ}, 28")
        a("s_cbranch_scc1 L_spare")
        st_spare = a.state()
        a.wait("w0")
        a("s_barrier")
        for s in range(2):
            for fb in range(2):
                self.w_frag(s, fb)
        self.stamp("p1.start")
        fill = {}
        st = self.ld_x(5) + self.ld_w1(5) + self.ld_x(6) + self.ld_w1(6) + self.ld_x(7) + self.ld_w1(7)
        for n in range(8, 16):
            st += self.ld_w1(n)
        r1 = o.get("r1", 0.62)
        place(fill, self.rd_x(2), 1)
        place(fill, self.rd_x(3), 9)
        place(fill, self.rd_x(4), 17)
        place(fill, self.rd_x(5), 25)
        place(fill, self.rd_x(6), 33)
        place(fill, self.rd_x(7), 41)
        g = place(fill, st, 0, r1)
        place(fill, self.kv_flag(), 26)
        place(fill, self.p_head(), 5, 2)
        place(fill, self.kv_poll_addr(), 28, 2)
        place(fill, self.p_shift(0) + self.p_shift(1), 38, 2)
        pw = self.p_head2() + self.p_write(0, 0) + self.p_write(0, 1) + self.p_write(1, 1)
        place(fill, pw, 46, 1)
        place(fill, self.p_shift(2) + self.p_shift(3), 51, 2)
        place(fill, self.p_write(1, 0) + self.p_write(2, 0) + self.p_write(3, 0), 52, 0.5)
        place(fill, self.p_write(2, 1) + self.p_write(3, 1), 59, 0.5)
        gp = o.get("gp", 56)
        place(fill, self.poll_issue(), gp)
        place(fill, self.c_publish(0), 62, 2)
        place(fill, self.m_finish() + self.c_addr(), 66, 3)
        place(fill, self.W("cx0"), 69)
        place(fill, self.c_read(0), 71, 2)
        place(fill, self.c_apply(0, 0) + self.c_apply(0, 1), 74)
        hs = []
        for q in range(4):
            hs += self.h_store(0, q)
        place(fill, hs, 77, 3)
        gk = o.get("gk", 66)
        place(fill, self.join(self.poll_check("kv"), self.kv_fetch()), gk)
        w2 = self.ld_w2()
        n2 = o.get("n2", 27)
        place(fill, w2[:n2], gk + 1, n2 / (127 - gk))
        place(fill, self.conv_addr(), 90, 3)
        place(fill, self.W("kv", "pw"), 101)
        place(fill, self.h_flag(0), o.get("gh0", 104))
        place(fill, self.conv_reads(0), 103, 1.5)
        place(fill, self.c_publish(1), 122, 4)
        place(fill, self.join(self.W("cx1"), self.T("s_barrier"), self.c_read(1)), 126)
        self.b1(fill)
        self.stamp("pass2")
        run(self.c_apply(1, 0) + self.c_apply(1, 1))
        a("s_branch L_conv")
        st_join = a.state()
        a.restore(st_spare)
        a.label("L_spare")
        self.stats_loads()
        run(self.kv_flag())
        a("s_barrier")
        run(self.p_head() + self.p_head2())
        for i in range(4):
            run(self.p_shift(i) + self.p_write(i, 0) + self.p_write(i, 1))
        run(self.kv_poll_addr() + self.poll_issue())
        self.stats()
        run(self.poll_check("kv2") + self.kv_fetch())
        run(self.ld_w2()[:n2])
        run(self.conv_addr())
        a(f"s_mov_b32 {sHO}, {WS_SIZE}")
        self.gen_update()
        a.wait_all()
        a("s_barrier")
        run(self.conv_reads(0))
        a.wait_all()
        a.restore(st_join)
        a.label("L_conv")
        self.stamp("convstart")
        self.stamp("cv.start")
        fill = {}
        hs = []
        for q in range(4):
            hs += self.h_store(1, q)
        place(fill, hs, 3, 1)
        gw = place(fill, w2[n2:], 0, o.get("r3", 0.27))
        place(fill, self.h_poll_addr() + self.y_addr(), 40, 1)
        place(fill, self.h_flag(1), o.get("gh1", 76))
        place(fill, self.poll_issue(0), gw - 12)
        horder = [(k, sb) for k in range(20) for sb in range(2)] + [(k, sb) for sb in range(2) for k in range(20, 28)]
        hl = self.ld_h(horder)
        nh = o.get("nh", 9)
        place(fill, self.poll_check("h0", 0), gw + 2)
        place(fill, hl[:nh], gw + 3, nh / (143 - gw - 3))
        g = 108
        for t in range(7, 1, -1):
            g += t + 1
            place(fill, self.y_write(t), g + 1)
        self.conv(fill)
        self.stamp("convend")
        order = [(k, q) for k in range(20) for q in range(4)]
        order += [(k, q) for k in range(20, 28) for q in range(2)]
        order += [(k, 2) for k in range(20, 28)] + [(k, 3) for k in range(20, 28)]
        fill = {}
        place(fill, self.y_write(1) + self.y_write(0), 0, 2)
        place(fill, self.y_gather(), 2, 2)
        place(fill, self.y_sum(0) + self.y_sum(1), 7, 4)
        r4 = o.get("r4", 0.55)
        g1 = place(fill, hl[nh:28], 0, r4)
        place(fill, self.poll_issue(128), g1 - 10)
        place(fill, self.poll_check("h1", 128), g1 + 1)
        g2 = place(fill, hl[28:], g1 + 2, r4)
        self.h_sched = (g1, g2)
        place(fill, self.y_flag(), o.get("gy", 26))
        place(fill, self.ep_addr(), 16, 2)
        place(fill, self.y_fetch_addr(), 28, 2)
        place(fill, self.y_poll_addr(), g1 + 3, 2)
        place(fill, self.ep_loads(), 46, 2)
        place(fill, self.poll_issue(0), 52)
        place(fill, self.join(self.poll_check("y", 0), self.y_fetch()), 60)
        place(fill, self.stat_check(), 66)
        place(fill, self.y_read(), 72, 4)
        ep = []
        for st_ in range(2):
            for e in range(4):
                ep += self.ep_pre(st_, e)
        place(fill, ep, 76, 4)
        place(fill, self.red_write(0) + self.red_write(1), 97, 1)
        place(fill, self.red_read(0), 105, 4)
        place(fill, self.red_write(2), 106, 1)
        f0 = self.finish(0, False)
        place(fill, f0[:20], 108, 5)
        self.b2(order, fill)
        self.stamp("b2end")
        run(f0[20:32])
        run(self.red_write(3))
        run(f0[32:])
        run(self.red_read(1))
        self.stamp("redbar")
        run(self.finish(1, True))
        if o["diag"]:
            a.wait_all()
            self.stamp("end")
            a.wait_all()
            a(f"""
            s_lshl2_add_u32 {sT0}, s2, {sW}
            s_lshl_b32 {sT0}, {sT0}, 6
            s_add_u32 {sT0}, {sT0}, {STAMP}
            s_mov_b64 exec, 1
            """)
            for i in range(self.nst):
                a(f"v_mov_b32 v27, s{sSTAMP+2*i}")
                a(f"buffer_store_dword v27, off, {SWS}, {sT0} offset:{4*i}")
        a.label("L_end")
        a("s_endpgm")
        for s in self.slow:
            a.raw(s)
        a.label("L_codeend")
        return self.wrap(a.text())

    def wrap(self, body):
        return f"""; Fused kernel: out = x + LN(x) * (longconv(shiftconv(k) * v) + D * kv) + relu(LN(x) @ w1) @ w2
; @launch grid=(256,1,1) block=(256,1,1) lds={LDS_SIZE}
.amdgcn_target "amdgcn-amd-amdhsa--gfx950"
.text
.globl {KN}
.p2align 8
.type {KN},@function
{KN}:
{body}
.section .rodata,"a"
.p2align 6
.amdhsa_kernel {KN}
  .amdhsa_next_free_vgpr 512
  .amdhsa_next_free_sgpr 102
  .amdhsa_accum_offset 256
  .amdhsa_group_segment_fixed_size 0
  .amdhsa_kernarg_size 96
  .amdhsa_user_sgpr_count 2
  .amdhsa_user_sgpr_kernarg_segment_ptr 1
  .amdhsa_system_sgpr_workgroup_id_x 1
  .amdhsa_float_denorm_mode_32 3
.end_amdhsa_kernel
"""


if __name__ == "__main__":
    opts = {}
    out = None
    for arg in sys.argv[1:]:
        if "=" in arg:
            k, v = arg.split("=", 1)
            opts[k] = eval(v)
        else:
            out = arg
    g = Gen(**opts)
    txt = g.build()
    if out:
        open(out, "w").write(txt)
        if g.names:
            open(out + ".names", "w").write(" ".join(g.names))
    if opts.get("show"):
        for l in g.load:
            print(l)
    print("nops inserted:", g.a.nops, "lines:", txt.count("\n"), "h sched", g.h_sched, file=sys.stderr)
```

```python
import sys, os
sys.path.insert(0, os.path.dirname(os.path.abspath(__file__)))
from emit import Asm

KN = "parallel_sum__ssm_conv_h3__dense_activation_relu__prompt_kernel"

KVT = 0x000000
YWS = 0x200000
HWS = 0x400000
FL_KV = 0xC00000
FL_Y = 0xC20000
FL_H = 0xC40000
STAT = 0xC80000
GEN = 0xC90000
STAMP = 0xD00000
W2T = 0xE00000
WS_SIZE = 0x1000000

R1 = 65536
W2R = 49152
KT = 131072
VT = KT + 9216
CX = 148480
YB = 152576
PB = 0
KV = 33280
EX = 90112
RED = 0
LDS_SIZE = 163840

SX, SK, SV, SSH, SHK, SW1, SW2, SO, SWS = [f"s[{4*i}:{4*i+3}]" for i in range(1, 10)]
sTAG = "s[42:43]"
sB = "s2"
sW, sXCD, sJ = "s44", "s45", "s46"
sST, sDT = "s47", "s48"
sXO = ["s49", "s50", "s51", "s52"]
sW1O, sM0 = "s53", "s54"
sHO = "s55"
sD, sCY, sH0, sH1 = "s56", "s57", "s58", "s59"
sT0, sT1, sT2, sT3 = "s60", "s61", "s62", "s63"
sW2O = "s64"
sFK = "s65"
sFH = "s66"
sCNT = "s67"
sHL = "s68"
sKF = "s69"
sEO = "s70"
sPO, sHL2 = "s40", "s41"
sU0, sU1, sU2 = "s71", "s3", "s72"
sHK, sST2 = "s73", "s74"
sSTAMP = 76


def V(i, n=1):
    return f"v{i}" if n == 1 else f"v[{i}:{i+n-1}]"


def A(i, n=1):
    return f"a{i}" if n == 1 else f"a[{i}:{i+n-1}]"


vL, vL16, vXO, vW0, vW1 = 1, 2, 3, 4, 5
vXA = [6, 7]
vXR = [8, 9, 10, 11]
vA = [[12, 13], [14, 15], [16, 17], [18, 19]]
vCA, vH2 = 20, 21
vTAG = 22
vP = 24
vPO = 26
RING = 40
ACC = 64
XR = 128
HK = 96
aSEL, aM, aC = 224, 228, 232
aY = 224
ACC2 = 192


def hslot(k, sb):
    return 40 + 8 * (k % 19) + 4 * sb


class Gen:
    def __init__(self, **o):
        self.o = dict(diag=False, codepf=True, nt="k v w2r hk")
        self.o.update(o)
        self.a = Asm()
        self.slow = []
        self.nst = 0
        self.names = []
        self.load = []

    def pol(self, name, base=""):
        p = self.o.get("pol_" + name)
        if p is None:
            p = base + (" nt" if name in self.o["nt"].split() else "")
        p = p.strip()
        return " " + p if p else ""

    def stamp(self, name):
        if not self.o["diag"]:
            return
        grp = name.split(".")[0] if "." in name else "main"
        if name not in ("start", "end") and grp not in self.o["diag"]:
            return
        r = sSTAMP + 2 * self.nst
        assert r + 1 < 102, name
        self.a(f"s_memrealtime s[{r}:{r+1}]")
        self.names.append(name)
        self.nst += 1

    def T(self, text, tag=None):
        groups = []
        for line in text.strip().split("\n"):
            line = line.strip()
            if not line or line.startswith(";"):
                continue
            if line.startswith("+"):
                groups[-1].append(line[1:].strip())
            else:
                groups.append([line])
        return [(lambda g=g: [self.a(x, tag) for x in g]) for g in groups]

    def W(self, *tags):
        return [lambda: self.a.wait(*tags)]

    @staticmethod
    def join(*lists):
        fs = [f for l in lists for f in l]
        return [lambda: [f() for f in fs]]

    @staticmethod
    def run(items):
        for f in items:
            f()

    @staticmethod
    def place(fill, items, g0, per=1.0):
        g = g0
        for i, f in enumerate(items):
            g = g0 + int(i / per)
            fill.setdefault(g, []).append(f)
        return g

    def gap(self, fill, g, phase):
        n0 = len(self.a.out)
        for f in fill.pop(g, []):
            f()
        return len(self.a.out) - n0

    def flag_store(self, soff):
        return self.T(f"""
        s_mov_b64 exec, 1
        +buffer_store_dwordx2 {V(vTAG,2)}, off, {SWS}, {soff} sc1
        +s_mov_b64 exec, -1""")

    def poll_issue(self, imm=0):
        return self.T(f"buffer_load_dwordx2 {V(vP,2)}, {V(vPO)}, {SWS}, {sPO} offen offset:{imm} sc1")

    def poll_check(self, name, imm=0):
        def f():
            a = self.a
            a(f"v_cmp_ne_u64 vcc, {sTAG}, {V(vP,2)}")
            a(f"s_cbranch_vccnz L_slow_{name}")
            a.label(f"L_back_{name}")
            self.slow.append(f"""L_slow_{name}:
    s_mov_b32 {sCNT}, 0
L_spin_{name}:
    buffer_load_dwordx2 {V(vP,2)}, {V(vPO)}, {SWS}, {sPO} offen offset:{imm} sc1
    s_add_u32 {sCNT}, {sCNT}, 1
    s_cmp_gt_u32 {sCNT}, 20000
    s_waitcnt vmcnt(0)
    s_cbranch_scc1 L_back_{name}
    v_cmp_ne_u64 vcc, {sTAG}, {V(vP,2)}
    s_cbranch_vccnz L_spin_{name}
    s_branch L_back_{name}
""")
        return [f]

    def prologue(self):
        a = self.a
        a(f"""
        s_cmp_ge_u32 s2, 0x100
        s_cbranch_scc1 L_end
        s_load_dwordx2 s[8:9], s[0:1], 8
        s_load_dwordx2 s[12:13], s[0:1], 16
        s_load_dwordx2 s[16:17], s[0:1], 24
        s_load_dwordx2 s[4:5], s[0:1], 0
        s_load_dwordx2 s[24:25], s[0:1], 56
        s_load_dwordx2 s[36:37], s[0:1], 88
        s_load_dwordx2 s[20:21], s[0:1], 32
        s_load_dwordx2 s[40:41], s[0:1], 40
        s_load_dwordx2 s[28:29], s[0:1], 64
        s_load_dwordx2 s[32:33], s[0:1], 72
        """)
        self.stamp("start")
        if self.o["codepf"]:
            a(f"""
            s_getpc_b64 s[60:61]
            L_pc:
            v_lshlrev_b32 v28, 7, v0
            v_min_u32 v28, L_codeend-L_pc-4, v28
            v_mov_b32 v29, s61
            v_add_co_u32 v28, vcc, s60, v28
            v_lshrrev_b32 v27, 6, v0
            v_and_b32 {V(vL)}, 63, v0
            v_addc_co_u32 v29, vcc, 0, v29, vcc
            global_load_dword v39, v[28:29], off
            """)
        else:
            a(f"""
            v_lshrrev_b32 v27, 6, v0
            v_and_b32 {V(vL)}, 63, v0
            """)
        a(f"""
        s_and_b32 {sXCD}, s2, 7
        s_lshr_b32 {sJ}, s2, 3
        v_readfirstlane_b32 {sW}, v27
        s_mov_b32 s10, 0x200000
        s_mov_b32 s11, 0x20000
        s_mov_b64 s[14:15], s[10:11]
        s_mov_b64 s[22:23], s[10:11]
        s_mov_b64 s[34:35], s[10:11]
        s_mov_b32 s18, 0x1000
        s_mov_b32 s19, s11
        s_mov_b32 s7, s11
        s_mov_b32 s31, s11
        s_mov_b32 s27, s11
        s_mov_b32 s38, {WS_SIZE}
        s_mov_b32 s39, s11
        s_cmp_lt_u32 {sJ}, 28
        s_cselect_b32 s26, 0x1c0000, 0
        s_cselect_b32 s6, s10, 0
        s_mov_b32 s30, s26
        s_lshr_b32 {sT0}, {sJ}, 3
        s_lshl2_add_u32 {sST}, {sXCD}, {sT0}
        s_and_b32 {sDT}, {sJ}, 7
        v_lshrrev_b32 v27, 3, {V(vL)}          ; l>>3
        v_and_b32 v28, 7, {V(vL)}              ; l&7
        v_lshrrev_b32 v29, 4, {V(vL)}          ; l>>4
        v_lshrrev_b32 v30, 5, {V(vL)}          ; l>>5
        v_lshlrev_b32 v31, 10, v27             ; (l>>3)*1024
        v_lshl_or_b32 {V(vXO)}, v28, 4, v31
        v_lshlrev_b32 v32, 5, v30
        v_xor_b32 v32, {V(vXO)}, v32
        v_xor_b32 v33, 64, v32
        v_add_u32 v33, 7168, v33
        s_lshl_b32 {sT0}, {sST}, 16
        s_lshl_b32 {sT1}, {sW}, 14
        s_lshl_b32 {sT2}, {sDT}, 7
        s_add_u32 {sT0}, {sT0}, {sT2}
        s_add_u32 {sEO}, {sT0}, {sT1}
        s_lshl_b32 {sT1}, {sW}, 10
        s_add_u32 {sT0}, {sT0}, {sT1}
        s_sub_u32 {sT0}, {sT0}, 4096
        v_xor_b32 v34, 6, v28
        v_lshlrev_b32 v34, 4, v34
        v_add_u32 v34, {sT0}, v34
        s_lshl_b32 {sT1}, {sW}, 11
        s_add_u32 m0, {sT1}, {KT + 1024}
        s_lshl_b32 {sT2}, {sW}, 7
        s_lshl_b32 {sT3}, {sDT}, 9
        s_add_u32 {sT3}, {sT3}, {sT2}
        v_and_b32 v35, 15, {V(vL)}             ; l&15
        v_lshlrev_b32 v36, 3, v35
        v_and_b32 v37, 1, v29
        v_lshlrev_b32 v37, 6, v37
        v_xor_b32 v20, {V(vXO)}, v37
        v_add_u32 v21, 7168, v20
        s_lshl_b32 {sM0}, {sW}, 12
        s_cmp_ge_u32 {sJ}, 14
        s_cselect_b32 {sU0}, {27*65536}, 0
        s_lshl_b32 {sU1}, {sJ}, 17
        s_sub_u32 {sU1}, {sU1}, {sU0}
        s_lshl2_add_u32 {sU1}, {sM0}, {sU1}
        s_lshl_b32 {sU0}, {sXCD}, 7
        s_add_u32 {sU1}, {sU1}, {sU0}
        """)
        nt = self.pol("k")
        a(f"buffer_load_dwordx4 v32, {SK}, {sEO} offen{nt} lds", "a1")
        self.stamp("pro.args")
        a(f"buffer_load_dwordx4 v33, {SK}, {sEO} offen offset:1024{nt} lds", "a1")
        a(f"s_add_u32 m0, {sT1}, {VT}")
        a(f"buffer_load_dwordx2 {V(RING,2)}, v36, {SSH}, {sT3} offen", "a1")
        nt = self.pol("v")
        a(f"buffer_load_dwordx4 v32, {SV}, {sEO} offen{nt} lds", "a1")
        a(f"buffer_load_dwordx4 v33, {SV}, {sEO} offen offset:1024{nt} lds", "a1")
        a(f"s_add_u32 m0, {sT2}, {KT + 512}")
        a("s_mov_b64 exec, 0xff")
        a(f"buffer_load_dwordx4 v34, {SK}, 0 offen lds", "a1")
        a("s_mov_b64 exec, -1")
        a(f"s_add_u32 m0, {sM0}, {W2R}")
        a(f"""
        s_lshr_b32 {sT0}, {sXCD}, 1
        """)
        nt = self.pol("w2r")
        a(f"buffer_load_dwordx4 v20, {SW2}, {sU1} offen{nt} lds", "w2r")
        a(f"buffer_load_dwordx4 v21, {SW2}, {sU1} offen offset:1024{nt} lds", "w2r")
        a(f"""
        s_and_b32 {sT1}, {sJ}, 3
        s_lshl2_add_u32 {sT0}, {sT0}, {sT1}         ; rb
        s_lshl2_add_u32 {sT0}, {sT0}, {sW}
        s_lshr_b32 {sT1}, {sT0}, 1
        s_lshl_b32 {sT1}, {sT1}, 16
        s_and_b32 {sT2}, {sW}, 1
        s_lshl_b32 {sT2}, {sT2}, 13
        s_add_u32 {sXO[0]}, {sT1}, {sT2}
        s_add_u32 {sXO[1]}, {sXO[0]}, {16384-1024}
        s_add_u32 {sXO[2]}, {sXO[1]}, {16384-1024}
        s_add_u32 {sXO[3]}, {sXO[2]}, {16384-1024}
        v_lshlrev_b32 v37, 4, v29
        v_xor_b32 {V(vXA[0])}, {V(vXO)}, v37
        v_xor_b32 {V(vXA[1])}, 64, {V(vXA[0])}
        s_and_b32 {sT2}, {sXCD}, 1
        s_mul_i32 {sT2}, {sT2}, 7
        s_lshr_b32 {sT3}, {sJ}, 2
        s_add_u32 {sT2}, {sT2}, {sT3}               ; ft
        s_mul_i32 {sW1O}, {sW}, {16*3584}
        s_lshl_b32 {sT3}, {sT2}, 8
        s_add_u32 {sW1O}, {sW1O}, {sT3}
        v_mul_u32_u24 v38, 2560, v27
        v_add_u32 {V(vW0)}, v20, v38
        v_add_u32 {V(vW1)}, {8*3584-1024}, {V(vW0)}
        """)
        return self.T(f"""
        s_mul_i32 {sFH}, {sT0}, 14
        s_add_u32 {sFH}, {sFH}, {sT2}
        s_lshl_b32 {sFH}, {sFH}, 8
        s_add_u32 {sFH}, {sFH}, {FL_H}
        s_mul_i32 {sHO}, {sT0}, 112
        s_add_u32 {sHO}, {sHO}, {sT2}
        s_lshl_b32 {sHO}, {sHO}, 10
        s_add_u32 {sHO}, {sHO}, {HWS}
        s_lshr_b32 {sT0}, {sW}, 1
        s_lshl1_add_u32 {sT0}, s2, {sT0}
        s_lshl_b32 {sHK}, {sT0}, 12
        s_lshl_b32 {sT1}, s2, 2
        s_mov_b32 {sT2}, {GEN}
        s_load_dwordx2 s[58:59], s[20:21], {sHK}
        s_load_dword {sD}, s[40:41], {sT1}
        s_load_dwordx2 {sTAG}, s[36:37], {sT2}
        s_and_b32 {sT1}, {sW}, 1
        s_lshl_b32 {sT1}, {sT1}, 2
        s_sub_u32 {sHK}, {sHK}, {sT1}
        s_add_u32 {sHK}, {sHK}, 8
        s_lshl2_add_u32 {sFK}, s2, {sW}
        s_lshl_b32 {sKF}, {sFK}, 11
        s_lshl_b32 {sFK}, {sFK}, 7
        s_add_u32 {sFK}, {sFK}, {FL_KV}
        v_lshlrev_b32 {V(vL16)}, 4, {V(vL)}
        """)

    def ld_x(self, c):
        L = []
        for i in range(4):
            t = f"buffer_load_dwordx4 {V(vXA[i&1])}, {SX}, {sXO[i]} offen offset:{1024*i + 128*c}{self.pol('x')} lds"
            if i == 0:
                t = f"s_add_u32 m0, {sM0}, {R1 + (c & 3)*16384 - 128*c}\n+" + t
            L += self.T(t, f"x{c}")
        if c >= 4:
            L[0] = self.join(self.W(f"xr{c-4}"), [L[0]])[0]
        return L

    def ld_w1(self, n):
        c = n & 7
        adv = (128 - 7*64*3584) if n == 7 else 64*3584
        L = self.T(f"""
        s_add_u32 m0, {sM0}, {(n >> 3)*R1 + (c >> 1)*16384 + (c & 1)*2048}
        +buffer_load_dwordx4 {V(vW0)}, {SW1}, {sW1O} offen{self.pol('w1')} lds
        buffer_load_dwordx4 {V(vW1)}, {SW1}, {sW1O} offen offset:1024{self.pol('w1')} lds
        """ + (f"+s_add_u32 {sW1O}, {sW1O}, {adv & 0xffffffff}" if n < 15 else ""), f"w{n}")
        if n >= 8 and n % 2 == 0:
            L[0] = self.join(self.W(f"xr{4 + (n-8)//2}"), [L[0]])[0]
        if n == 6:
            L[0] = self.join(self.W("bounce"), [L[0]])[0]
        return L

    def rd_x(self, c):
        L = self.T("\n".join(f"ds_read_b128 {V(XR+16*c+4*tt,4)}, {V(vXR[tt])} offset:{(c & 3)*16384}" for tt in range(4)), f"xr{c}")
        L[0] = self.join(self.W(f"x{c}"), [L[0]])[0]
        return L

    def addr_b1(self):
        t = f"""
        v_lshrrev_b32 v29, 4, {V(vL)}
        v_lshrrev_b32 v30, 5, {V(vL)}
        v_bfe_u32 v31, {V(vL)}, 1, 3
        v_xor_b32 v31, v31, v30
        v_lshlrev_b32 v31, 4, v31
        v_and_b32 v32, 31, {V(vL)}
        v_lshl_add_u32 v31, v32, 7, v31
        s_add_u32 {sT0}, {sM0}, {R1}
        v_add_u32 v31, {sT0}, v31
        v_bfe_u32 v32, {V(vL)}, 2, 2          ; r
        v_and_b32 v33, 3, {V(vL)}             ; c
        v_bfe_u32 v35, {V(vL)}, 3, 1          ; (r>>1)&1
        v_lshlrev_b32 v35, 6, v35
        v_lshl_add_u32 v35, v32, 7, v35
        v_and_b32 v34, 1, v29
        v_lshl_add_u32 v35, v34, 5, v35
        v_lshl_add_u32 v35, v33, 3, v35
        v_lshl_add_u32 v34, v30, 10, v35
        v_lshl_add_u32 v38, v30, 9, v35
        s_add_u32 {sT0}, {sM0}, {W2R}
        v_add_u32 v38, {sT0}, v38
        """
        for tt in range(4):
            t += f"""
            s_add_u32 {sT0}, {sW}, {tt}
            s_and_b32 {sT0}, {sT0}, 3
            s_lshl_b32 {sT1}, {sT0}, 5
            s_lshl_b32 {sT0}, {sT0}, 12
            v_xor_b32 {V(vXR[tt])}, {sT1}, v31
            v_add_u32 {V(vA[tt][0])}, {sT0}, v34
            v_xor_b32 {V(vA[tt][1])}, 64, {V(vA[tt][0])}
            """
        t += f"""
        v_lshrrev_b32 v31, 2, {V(vL)}
        v_xor_b32 v31, v31, v29
        v_and_b32 v31, 1, v31
        v_add_u32 v31, -1, v31
        v_and_b32 v31, 0x3f803f80, v31
        v_accvgpr_write_b32 {A(aSEL)}, v31
        v_accvgpr_write_b32 {A(aSEL+1)}, v31
        v_accvgpr_write_b32 {A(aSEL+2)}, v31
        v_accvgpr_write_b32 {A(aSEL+3)}, v31
        """
        return self.T(t)

    def addr_a1(self):
        return self.T(f"""
        v_lshrrev_b32 v27, 4, {V(vL)}         ; G
        v_bfe_u32 v28, {V(vL)}, 2, 2          ; r
        v_and_b32 v29, 3, {V(vL)}             ; c
        v_lshrrev_b32 v30, 2, {V(vL)}         ; 4G + r
        v_lshlrev_b32 v30, 9, v30
        v_lshl_add_u32 v30, v29, 3, v30
        v_xor_b32 v31, {sW}, v28
        v_lshl_add_u32 v31, v31, 5, v30
        v_add_u32 v31, {KT + 1024}, v31
        v_add_u32 v32, 3, v28
        v_and_b32 v32, 3, v32
        v_xor_b32 v32, {sW}, v32
        v_lshl_add_u32 v32, v32, 5, v30
        v_add_u32 v32, {KT + 512}, v32
        s_add_u32 {sT1}, {sM0}, {W2R}
        v_bfe_u32 v33, {V(vL)}, 1, 3          ; i>>1
        v_mul_u32_u24 v33, 272, v33
        v_lshl_add_u32 v33, v27, 4, v33
        v_add_u32 v33, {sT1}, v33
        v_and_b32 v34, 1, {V(vL)}
        v_lshlrev_b32 v34, 1, v34
        s_and_b32 {sT0}, {sST}, 3
        v_xor_b32 v34, {sT0}, v34
        v_xor_b32 v35, 1, v34
        v_lshl_add_u32 v34, v34, 6, v33
        v_lshl_add_u32 v35, v35, 6, v33
        v_and_b32 v36, 15, {V(vL)}
        v_lshlrev_b32 v36, 4, v36
        v_mul_u32_u24 v37, 272, v27
        v_add3_u32 v37, v37, v36, {sT1}
        v_lshl_add_u32 v36, v27, 13, v36
        v_xor_b32 v33, 64, v38
        s_lshl2_add_u32 {sT0}, {sXCD}, {sW}
        s_mul_i32 {sT0}, {sT0}, 28
        s_add_u32 {sT0}, {sT0}, {sJ}
        s_lshl_b32 {sT0}, {sT0}, 11
        s_add_u32 {sT0}, {sT0}, {W2T}
        s_cmp_lt_u32 {sJ}, 28
        +s_cselect_b32 {sU0}, {sT0}, {WS_SIZE}      ; w2 fragment store (spare workgroups have none)
        s_lshl2_add_u32 {sT0}, {sDT}, {sW}
        s_lshl_b32 {sT1}, {sT0}, 16
        s_lshl_b32 {sT2}, {sST}, 8
        s_add_u32 {sU1}, {sT1}, {sT2}
        s_add_u32 {sU2}, {sU1}, {4*8192}
        s_mul_i32 {sW2O}, {sT0}, {28*2048}
        s_add_u32 {sW2O}, {sW2O}, {W2T}
        """)

    def a1(self, fill):
        a = self.a
        a.wait("a1")
        a("s_barrier")
        self.stamp("a1data")
        self.stamp("pro.a1data")
        KR, VR, KF, VF, acc, WF, U, WT = 192, 206, 214, 242, 250, 44, 48, 56
        for s in range(-3, 4):
            base, imm = ("v31", s * 128) if s >= 0 else ("v32", (s + 4) * 128)
            a(f"ds_read_b64_tr_b16 {V(KR+2*(s+3),2)}, {base} offset:{imm}")
        for r in range(4):
            a(f"ds_read_b64_tr_b16 {V(VR+2*r,2)}, v31 offset:{VT-KT-1024+r*128}")
        a.wait("w2r")
        for nb in range(2):
            for jj in range(2):
                a(f"ds_read_b64_tr_b16 {V(WT+4*nb+2*jj,2)}, {'v33' if nb else 'v38'} offset:{1024*jj}")
        ops = []
        def unpack(dst, src):
            return [f"v_lshlrev_b32 {V(dst)}, 16, {V(src)}", f"v_and_b32 {V(dst+1)}, 0xffff0000, {V(src)}",
                    f"v_lshlrev_b32 {V(dst+2)}, 16, {V(src+1)}", f"v_and_b32 {V(dst+3)}, 0xffff0000, {V(src+1)}"]
        ops += unpack(WF, RING)
        done = set()
        for rho in range(4):
            for j in range(3, -1, -1):
                s = rho - j
                if s not in done:
                    ops += unpack(KF + 4 * (s + 3), KR + 2 * (s + 3))
                    done.add(s)
            if rho == 0:
                for nb in range(2):
                    ops.append(f"buffer_store_dwordx4 {V(WT+4*nb,4)}, {V(vL16)}, {SWS}, {sU0} offen offset:{1024*nb}{self.pol('w2st', 'sc1')}")
            vf = VF + 4 * (rho & 1)
            ops += unpack(vf, VR + 2 * rho)
            for j in range(3, -1, -1):
                s = rho - j
                wp = V(WF + (j & 2), 2)
                lo = j & 1
                for h in range(2):
                    k = V(KF + 4 * (s + 3) + 2 * h, 2)
                    d = V(acc + 2 * h, 2)
                    if j == 3:
                        ops.append(f"v_pk_mul_f32 {d}, {k}, {wp} op_sel:[0,{lo}] op_sel_hi:[1,{lo}]")
                    else:
                        ops.append(f"v_pk_fma_f32 {d}, {k}, {wp}, {d} op_sel:[0,{lo},0] op_sel_hi:[1,{lo},1]")
            for h in range(2):
                ops.append(f"v_pk_mul_f32 {V(acc+2*h,2)}, {V(acc+2*h,2)}, {V(vf+2*h,2)}")
            for h in range(2):
                ops.append(f"v_cvt_pk_bf16_f32 {V(U+2*rho+h)}, {V(acc+2*h)}, {V(acc+2*h+1)}")
            if rho & 1:
                ops.append(f"ds_write_b128 {'v34' if rho == 1 else 'v35'}, {V(U+4*(rho>>1),4)}")
        nf = len(fill)
        k = 0
        for n, op in enumerate(ops):
            a(op, "kvst")
            while k < nf and (k + 1) * len(ops) <= (n + 1) * (nf + 1):
                fill[k]()
                k += 1
        a(f"ds_read_b128 {V(U,4)}, v37", "bounce")
        a(f"ds_read_b128 {V(U+4,4)}, v37 offset:1088", "bounce")
        for f in fill[k:]:
            f()
        a(f"""
        s_add_u32 s42, s42, 0x7f4a7c15
        s_addc_u32 s43, s43, 0x9e3779b9
        v_mov_b32 {V(vTAG)}, s42
        v_mov_b32 {V(vTAG+1)}, s43
        """)
        a(f"buffer_store_dwordx4 {V(U,4)}, v36, {SWS}, {sU1} offen{self.pol('kvst', 'sc1')}", "kvst")
        a(f"buffer_store_dwordx4 {V(U+4,4)}, v36, {SWS}, {sU2} offen{self.pol('kvst', 'sc1')}", "kvst")

    def kv_flag(self):
        return self.join(self.W("kvst"), self.flag_store(sFK))

    def w_frag(self, s, fb):
        c, tt = (s >> 2) & 7, s & 3
        r = RING + 8 * (s % 3) + 4 * fb
        for jj in range(2):
            self.a(f"ds_read_b64_tr_b16 {V(r+2*jj,2)}, {V(vA[tt][fb])} offset:{(c>>1)*16384 + (c&1)*2048 + jj*512}", f"f{s}")

    def b1(self, fill):
        a = self.a
        for s in range(64):
            hf, c, tt = s >> 5, (s >> 2) & 7, s & 3
            x = V(XR + 16 * c + 4 * tt, 4)
            n2 = s + 2
            cnt = []
            for fb in range(2):
                n0 = len(a.out)
                acc = V(ACC + 32 * hf + 16 * fb, 16)
                fr = V(RING + 8 * (s % 3) + 4 * fb, 4)
                first = (c == 0 and tt == 0)
                if fb == 0:
                    a.wait(f"f{s}")
                a(f"v_mfma_f32_32x32x16_bf16 {acc}, {fr}, {x}, {'0' if first else acc}")
                if n2 < 64:
                    if fb == 0 and tt == 2:
                        a.wait(f"w{n2 >> 2}")
                    if fb == 0 and tt == 3:
                        a("s_barrier")
                    if 32 <= n2 < 36:
                        a(f"v_add_u32 {V(vA[n2&3][fb])}, 0x10000, {V(vA[n2&3][fb])}")
                    self.w_frag(n2, fb)
                self.gap(fill, 2 * s + fb, "b1")
                if tt == 0:
                    cc = A(aC + 8 * hf + 4 * fb, 4)
                    a(f"v_mfma_f32_16x16x32_bf16 {cc}, {A(aSEL,4)}, {fr}, {'0' if c == 0 else cc}")
                if hf == 0 and fb == 1:
                    mm = A(aM, 4)
                    a(f"v_mfma_f32_16x16x32_bf16 {mm}, {A(aSEL,4)}, {x}, {'0' if first else mm}")
                cnt.append(len(a.out) - n0)
            self.load.append(("b1", s, cnt))
            if tt == 3:
                self.stamp(f"p{hf+1}.c{c}")
            if s == 31:
                self.stamp("pass1")
        assert not fill, fill.keys()

    def c_publish(self, hf):
        return self.T(f"""
        v_accvgpr_read_b32 v27, {A(aC+8*hf)}
        v_accvgpr_read_b32 v28, {A(aC+8*hf+4)}
        s_lshl_b32 {sT0}, {sW}, 3
        s_add_u32 {sT0}, {sT0}, {CX + 2048*hf}
        v_cmp_gt_u32 vcc, 32, {V(vL)}
        +v_lshlrev_b32 v30, 5, {V(vL)}
        +v_add_u32 v30, {sT0}, v30
        +v_cndmask_b32 v27, v28, v27, vcc
        v_and_b32 v28, 0xffff0000, v27
        v_sub_f32 v27, v27, v28
        v_and_b32 v29, 0xffff0000, v27
        v_sub_f32 v27, v27, v29
        v_lshrrev_b32 v28, 16, v28
        v_or_b32 v28, v28, v29
        v_lshrrev_b32 v29, 16, v27
        ds_write_b64 v30, v[28:29]
        """, f"cx{hf}")

    def m_finish(self):
        return self.T(f"""
        v_accvgpr_read_b32 v36, {A(aM)}
        v_mul_f32 v36, 0xbb000000, v36
        v_cvt_pk_bf16_f32 v36, v36, v36
        v_accvgpr_write_b32 {A(aM)}, v36
        v_accvgpr_write_b32 {A(aM+1)}, v36
        v_accvgpr_write_b32 {A(aM+2)}, v36
        v_accvgpr_write_b32 {A(aM+3)}, v36
        """)

    def c_addr(self):
        return self.T(f"""
        v_and_b32 v37, 31, {V(vL)}
        v_lshrrev_b32 v36, 5, {V(vL)}
        v_lshlrev_b32 v37, 5, v37
        v_lshl_add_u32 v37, v36, 4, v37
        v_add_u32 v37, {CX}, v37
        """)

    def c_read(self, hf):
        return self.T(f"""
        ds_read_b128 v[28:31], v37 offset:{2048*hf}
        ds_read_b128 v[32:35], v37 offset:{2048*hf + 1024}
        """)

    def c_apply(self, hf, fb):
        acc = V(ACC + 32 * hf + 16 * fb, 16)
        return self.T(f"v_mfma_f32_32x32x16_bf16 {acc}, {V(28+4*fb,4)}, {A(aM,4)}, {acc}")

    def h_store(self, hf, q):
        r = ACC + 32 * hf + 8 * q
        t = "\n".join(f"v_cvt_pk_bf16_f32 {V(r+i)}, {V(r+2*i)}, {V(r+2*i+1)}" for i in range(4)) + "\n"
        t += "\n".join(f"v_pk_max_i16 {V(r+i)}, {V(r+i)}, 0" for i in range(4)) + "\n"
        t += f"s_add_u32 {sT0}, {sHO}, {(hf*56 + q*14)*1024}\n"
        t += f"+buffer_store_dwordx4 {V(r,4)}, {V(vL16)}, {SWS}, {sT0} offen{self.pol('hst', 'sc1')}"
        return self.T(t, f"hst{hf}")

    def h_flag(self, hf):
        if hf == 0:
            return self.join(self.W("hst0"), self.flag_store(sFH))
        return self.join(self.T(f"s_add_u32 {sT0}, {sFH}, 128"), self.W("hst1"), self.flag_store(sT0))

    def ld_w2(self):
        L = []
        for i in range(56):
            t = f"buffer_load_dwordx4 {A(4*i,4)}, {V(vL16)}, {SWS}, {sW2O} offen offset:{1024*(i&3)}{self.pol('w2t', 'sc1')}"
            if i % 4 == 3 and i < 55:
                t += f"\n+s_add_u32 {sW2O}, {sW2O}, 4096"
            L += self.T(t)
        return L

    def ld_hk(self):
        nt = self.pol("hk")
        return self.T("\n".join(f"buffer_load_dwordx4 {V(HK+4*i,4)}, {V(vL16)}, {SHK}, {sHK} offen offset:{1024*i}{nt}" for i in range(4)))

    def p_head(self):
        x = HK + 16
        return self.T(f"""
        s_lshr_b32 {sT0}, {sW}, 1
        s_lshl_b32 {sT0}, {sT0}, 4
        s_lshr_b32 {sT0}, {sD}, {sT0}
        s_lshl_b32 {sT0}, {sT0}, 16
        s_lshl_b32 {sT1}, {sH0}, 16
        v_mov_b32 {V(x)}, {sT0}
        v_add_f32 {V(x)}, {sT1}, {V(x)}
        v_cvt_pk_bf16_f32 {V(x)}, {V(x)}, {V(x)}
        s_mul_i32 {sT2}, {sW}, 8256
        v_mov_b32 {V(x+4)}, 0
        v_readfirstlane_b32 {sT0}, {V(x)}
        v_mov_b32 {V(x+5)}, 0
        v_mov_b32 {V(x+6)}, 0
        v_mov_b32 {V(x+7)}, 0
        s_and_b32 {sT0}, {sT0}, 0xffff
        s_and_b32 {sT1}, {sH0}, 0xffff0000
        s_or_b32 {sT0}, {sT0}, {sT1}            ; (h0 + D, h1)
        s_bitcmp1_b32 {sW}, 0
        +s_cselect_b32 {sCY}, {sT0}, {sH1}      ; dword 3 of chunk 1
        +s_cselect_b32 {sT0}, 0, {sT0}          ; dword 2 of chunk 1
        s_lshl_b32 {sT1}, {sT0}, 16
        s_lshl_b32 {sT3}, {sCY}, 16
        v_writelane_b32 {V(x+6)}, {sT0}, 1
        s_lshr_b32 {sT0}, {sT0}, 16
        v_writelane_b32 {V(x+7)}, {sCY}, 1
        s_or_b32 {sT3}, {sT3}, {sT0}
        v_writelane_b32 {V(x+6)}, {sT1}, 3
        v_writelane_b32 {V(x+7)}, {sT3}, 3
        v_and_b32 {V(x)}, 1, {V(vL)}
        v_lshrrev_b32 {V(x+1)}, 1, {V(vL)}
        v_mul_u32_u24 {V(x+1)}, 4128, {V(x+1)}
        v_lshl_add_u32 {V(x)}, {V(x)}, 4, {V(x+1)}
        v_add_u32 {V(x)}, {sT2}, {V(x)}
        v_add_u32 {V(x+2)}, {sT2}, {V(vL16)}
        v_lshlrev_b32 {V(x+1)}, 2, v0
        """)

    def p_head2(self):
        x = HK + 16
        return self.T(f"""
        s_mov_b64 exec, 15
        +ds_write_b128 {V(x)}, {V(x+4,4)} offset:{PB}
        +s_mov_b64 exec, -1
        ds_write_b32 {V(x+1)}, {V(x+4)} offset:{KV}
        """, "pw")

    def p_shift(self, i):
        r = HK + 4 * i
        x = HK + 16
        d = HK + 24 + 4 * (i & 1)
        return self.T(f"""
        v_mov_b32 {V(x+3)}, {sCY}
        v_readlane_b32 {sCY}, {V(r+3)}, 63
        v_alignbyte_b32 {V(d+1)}, {V(r+1)}, {V(r)}, 2
        v_mov_b32_dpp {V(x+3)}, {V(r+3)} wave_shr:1 row_mask:0xf bank_mask:0xf
        v_alignbyte_b32 {V(d+2)}, {V(r+2)}, {V(r+1)}, 2
        v_alignbyte_b32 {V(d+3)}, {V(r+3)}, {V(r+2)}, 2
        v_alignbyte_b32 {V(d)}, {V(r)}, {V(x+3)}, 2
        """)

    def p_write(self, i, ph):
        x = HK + 16
        src = HK + 24 + 4 * (i & 1) if ph else HK + 4 * i
        return self.T(f"ds_write_b128 {V(x+2)}, {V(src,4)} offset:{PB + 4128*ph + 32 + 1024*i}", "pw")

    def kv_poll_addr(self):
        return self.T(f"""
        v_min_u32 v27, 27, {V(vL)}
        v_lshlrev_b32 v27, 12, v27
        s_lshl2_add_u32 {sT0}, {sDT}, {sW}
        s_lshl_b32 {sT0}, {sT0}, 7
        v_add_u32 v27, {sT0}, v27
        v_and_b32 v28, 3, {V(vL)}
        v_bfe_u32 v29, {V(vL)}, 2, 1
        v_lshlrev_b32 v28, 15, v28
        v_lshl_add_u32 v28, v29, 9, v28
        s_lshr_b32 {sT0}, {sJ}, 2
        s_lshl_b32 {sT0}, {sT0}, 12
        s_and_b32 {sT1}, {sJ}, 3
        s_lshl_b32 {sT1}, {sT1}, 7
        s_add_u32 {sT0}, {sT0}, {sT1}
        s_lshl_b32 {sT1}, {sW}, 10
        s_add_u32 {sT0}, {sT0}, {sT1}
        v_cmp_gt_u32 vcc, 32, {V(vL)}
        +v_add_u32 v28, {sT0}, v28
        +s_mov_b32 {sPO}, {FL_KV}
        +v_cndmask_b32 {V(vPO)}, v28, v27, vcc
        """)

    def kv_fetch(self):
        return self.T(f"""
        s_lshr_b32 {sU0}, {sM0}, 1
        +s_add_u32 m0, {sU0}, {KV + 1024}
        +buffer_load_dwordx4 {V(vL16)}, {SWS}, {sKF} offen{self.pol('kv', 'sc1')} lds
        +buffer_load_dwordx4 {V(vL16)}, {SWS}, {sKF} offen offset:1024{self.pol('kv', 'sc1')} lds
        """, "kv")

    def conv_addr(self):
        t = f"""
        v_lshrrev_b32 v27, 4, {V(vL)}          ; G
        v_bfe_u32 v28, {V(vL)}, 2, 2           ; r
        v_and_b32 v29, 3, {V(vL)}              ; c
        v_lshl_add_u32 v29, v27, 2, v29
        v_sub_u32 v29, v29, v28
        s_mul_i32 {sT0}, {sW}, 8256
        s_add_u32 {sT0}, {sT0}, {PB + 24}
        v_lshlrev_b32 v29, 3, v29
        v_add_u32 {V(vCA)}, {sT0}, v29
        v_and_b32 v28, 15, {V(vL)}
        v_sub_u32 v28, v28, v27                ; a - G
        v_add_u32 v28, 16, v28
        v_lshrrev_b32 v27, 2, v28
        v_and_b32 v28, 3, v28
        v_lshlrev_b32 v28, 4, v28
        v_lshl_add_u32 v28, v27, 8, v28
        """
        for e in range(4):
            t += f"""
            v_add_u32 v29, {-e}, v27
            v_xor_b32 v29, {sW}, v29
            v_and_b32 v29, 3, v29
            v_lshl_add_u32 v29, v29, 6, v28
            v_add_u32 {V(vXR[e])}, {KV - 256*e}, v29
            """
        return self.T(t)

    def conv_reads(self, e):
        base = XR + 64 * (e & 1)
        L = []
        for n in range(8):
            L.append(f"ds_read_b128 {V(base+32+4*n,4)}, {V(vXR[e])} offset:{1024*n}")
            for ph in range(2):
                L.append(f"ds_read_b64_tr_b16 {V(base+4*n+2*ph,2)}, {V(vCA)} offset:{ph*4128 + 128*(4*n+e)}")
        return self.T("\n".join(L), f"cv{e}")

    def conv(self, fill):
        a = self.a
        k = 0
        for e in range(4):
            base = XR + 64 * (e & 1)
            if e < 3:
                self.place(fill, self.conv_reads(e + 1), 36 * e + 2, 0.75)
                prs = sorted([(n, d) for n in range(8) for d in range(8) if n + d < 8], key=lambda p: (max(p), p[0] + p[1]))
            else:
                prs = sorted([(n, d) for n in range(8) for d in range(8) if n + d < 8], key=lambda p: (-(p[0] + p[1]), max(p)))
            seen = set()
            cnt = []
            for i, (n, d) in enumerate(prs):
                n0 = len(a.out)
                acc = A(aY + 4 * (n + d), 4)
                first = (e == 0 and (n + d) not in seen)
                seen.add(n + d)
                a(f"v_mfma_f32_16x16x32_bf16 {acc}, {V(base+4*n,4)}, {V(base+32+4*d,4)}, {'0' if first else acc}")
                self.gap(fill, k, "cv")
                cnt.append(len(a.out) - n0)
                k += 1
            self.load.append(("cv", e, cnt))
            self.stamp(f"cv.e{e}")
        assert not fill, fill.keys()

    def y_addr(self):
        return self.T(f"""
        v_lshrrev_b32 v27, 4, {V(vL)}
        v_and_b32 v28, 15, {V(vL)}
        v_mul_u32_u24 v27, 20, v27
        v_add_lshl_u32 v27, v27, v28, 4
        s_mul_i32 {sT0}, {sW}, 10240
        s_add_u32 {sT0}, {sT0}, {EX}
        v_add_u32 v12, {sT0}, v27
        v_and_b32 v28, 3, {V(vL)}
        v_lshrrev_b32 v29, 2, {V(vL)}
        v_mul_u32_u24 v28, 20, v28
        v_add_lshl_u32 v28, v28, v29, 4
        s_mul_i32 {sT0}, {sW}, 2560
        s_add_u32 {sT0}, {sT0}, {EX}
        v_add_u32 v13, {sT0}, v28
        """)

    def y_write(self, t):
        return self.T(f"ds_write_b128 v12, {A(aY+4*t,4)} offset:{1280*t}", "ex")

    YT = 160
    def y_gather(self):
        R = self.YT
        L = self.join(self.W("ex"), self.T("s_barrier"))
        L += self.T("\n".join(f"ds_read_b128 {V(R+16*t+4*src,4)}, v13 offset:{10240*src + 1280*t}" for t in range(2) for src in range(4)))
        return L

    def y_sum(self, t):
        b = self.YT + 16 * t
        x = ""
        for i in range(4):
            x += f"v_add_f32 {V(b+i)}, {V(b+i)}, {V(b+4+i)}\n"
        for i in range(4):
            x += f"v_add_f32 {V(b+8+i)}, {V(b+8+i)}, {V(b+12+i)}\n"
        for i in range(4):
            x += f"v_cvt_pk_bf16_f32 {V(b+4+i)}, {V(b+i)}, {V(b+8+i)}\n"
        x += f"s_add_u32 {sT0}, {sKF}, {YWS}\n"
        x += f"+buffer_store_dwordx4 {V(b+4,4)}, {V(vL16)}, {SWS}, {sT0} offen offset:{1024*t}{self.pol('yst', 'sc1')}"
        return self.T(x, "yst")

    def y_flag(self):
        return self.join(self.T(f"s_add_u32 {sT0}, {sFK}, {FL_Y - FL_KV}"), self.W("yst"), self.flag_store(sT0))

    def h_poll_addr(self):
        return self.T(f"""
        v_and_b32 v27, 1, {V(vL)}
        v_lshrrev_b32 v28, 1, {V(vL)}
        v_min_u32 v28, 13, v28
        v_mul_u32_u24 v27, 14, v27
        v_add_lshl_u32 {V(vPO)}, v27, v28, 8
        s_mul_i32 {sPO}, {sST}, {28*256}
        s_add_u32 {sPO}, {sPO}, {FL_H}
        s_mul_i32 {sHL}, {sST}, 224
        s_mul_i32 {sT0}, {sW}, 14
        s_add_u32 {sHL}, {sHL}, {sT0}
        s_lshl_b32 {sHL}, {sHL}, 10
        s_add_u32 {sHL}, {sHL}, {HWS}
        v_add_u32 {V(vH2)}, {112*1024}, {V(vL16)}
        """)

    def ld_h(self, order):
        L = []
        cur = None
        for k, sb in order:
            hf, T = divmod(k, 14)
            t = f"buffer_load_dwordx4 {V(hslot(k,sb),4)}, {V(vH2 if sb else vL16)}, {SWS}, {sHL2} offen offset:{1024*(T%4)}{self.pol('h', 'sc1')}"
            if cur != (hf, T // 4):
                cur = (hf, T // 4)
                t = f"s_add_u32 {sHL2}, {sHL}, {(hf*56 + T//4*4)*1024}\n+" + t
            L += self.T(t)
        return L

    def b2(self, order, fill):
        a = self.a
        seen = set()
        cnt = []
        for g, (k, q) in enumerate(order):
            n0 = len(a.out)
            sb, nb = q >> 1, q & 1
            acc = V(ACC2 + 16 * q, 16)
            a(f"v_mfma_f32_32x32x16_bf16 {acc}, {A(8*k+4*nb,4)}, {V(hslot(k,sb),4)}, {acc if q in seen else '0'}")
            seen.add(q)
            self.gap(fill, g, "b2")
            cnt.append(len(a.out) - n0)
            if g % 16 == 15:
                self.load.append(("b2", g, cnt))
                cnt = []
            if g % 12 == 11:
                self.stamp(f"b2.g{g}")
        assert not fill, fill.keys()

    EXR, ESR, EYR = 112, 120, 160
    XF, TF, RR = 128, 144, 160

    def y_poll_addr(self):
        return self.T(f"""
        v_and_b32 {V(vPO)}, 31, {V(vL)}
        v_lshlrev_b32 {V(vPO)}, 9, {V(vPO)}
        s_lshl_b32 {sPO}, {sDT}, 14
        s_lshr_b32 {sT3}, {sST}, 3
        s_lshl_b32 {sT3}, {sT3}, 7
        s_add_u32 {sPO}, {sPO}, {sT3}
        s_add_u32 {sPO}, {sPO}, {FL_Y}
        """)

    def ep_loads(self):
        return self.T(f"""
        v_lshrrev_b32 v18, 3, {V(vL)}
        v_lshlrev_b32 v18, 4, v18
        s_lshl_b32 {sT0}, {sST}, 10
        s_lshl_b32 {sT1}, {sW}, 8
        s_add_u32 {sT0}, {sT0}, {sT1}
        s_add_u32 {sST2}, {sT0}, {STAT}
        s_add_u32 {sU1}, {sEO}, 8192
        buffer_load_dwordx4 {V(self.ESR,4)}, v18, {SWS}, {sST2} offen sc1
        buffer_load_dwordx4 {V(self.ESR+4,4)}, v18, {SWS}, {sST2} offen offset:128 sc1
        buffer_load_dwordx4 {V(self.EXR,4)}, {V(vXO)}, {SX}, {sEO} offen{self.pol('xe')}
        buffer_load_dwordx4 {V(self.EXR+4,4)}, {V(vXO)}, {SX}, {sU1} offen{self.pol('xe')}
        """)

    def y_fetch_addr(self):
        return self.T(f"""
        v_lshrrev_b32 v27, 3, {V(vL)}
        v_and_b32 v28, 7, {V(vL)}
        v_lshrrev_b32 v29, 4, {V(vL)}
        v_xor_b32 v29, v28, v29                ; idx
        v_lshrrev_b32 v30, 2, v29
        v_lshl_add_u32 v30, v27, 1, v30
        v_and_b32 v29, 3, v29
        v_lshlrev_b32 v29, 4, v29
        v_lshl_add_u32 v34, v30, 13, v29
        v_xor_b32 v35, 0x2000, v34
        v_add_u32 v35, {16*8192 - 1024}, v35
        s_lshl_b32 {sT0}, {sDT}, 18
        s_lshl_b32 {sT1}, {sST}, 8
        s_lshl_b32 {sT2}, {sW}, 6
        s_add_u32 {sT0}, {sT0}, {sT1}
        s_add_u32 {sT0}, {sT0}, {sT2}
        s_add_u32 {sU2}, {sT0}, {YWS}
        s_lshr_b32 {sU0}, {sM0}, 1
        s_add_u32 {sU0}, {sU0}, {YB}
        s_mov_b32 m0, {sU0}
        v_lshrrev_b32 v27, 5, {V(vL)}
        v_xor_b32 v27, v27, v28
        v_lshlrev_b32 v27, 4, v27
        v_lshl_add_u32 v27, v28, 8, v27
        v_bfe_u32 v28, {V(vL)}, 3, 2
        v_lshl_add_u32 v27, v28, 2, v27
        v_add_u32 v27, {sU0}, v27
        v_xor_b32 v28, 64, v27
        v_xor_b32 v29, 32, v27
        v_xor_b32 v30, 0x60, v27
        """)

    def y_fetch(self):
        return self.T(f"""
        buffer_load_dwordx4 v34, {SWS}, {sU2} offen{self.pol('y', 'sc1')} lds
        buffer_load_dwordx4 v35, {SWS}, {sU2} offen offset:1024{self.pol('y', 'sc1')} lds
        """, "y")

    def y_read(self):
        L = self.T("\n".join(f"ds_read_b32 {V(self.EYR+4*st+e)}, {V(27 + 2*st + (e & 1))} offset:{128*(e >> 1)}" for st in range(2) for e in range(4)))
        L[0] = self.join(self.W("y"), [L[0]])[0]
        return L

    def stat_check(self):
        def f():
            a = self.a
            S = self.ESR
            a(f"v_cmp_ne_u64 vcc, {sTAG}, {V(S+2,2)}")
            a(f"v_cmp_ne_u64 s[60:61], {sTAG}, {V(S+6,2)}")
            a("s_or_b64 vcc, vcc, s[60:61]")
            a("s_cbranch_vccnz L_slow_st")
            a.label("L_back_st")
            self.slow.append(f"""L_slow_st:
    s_mov_b32 {sCNT}, 0
L_spin_st:
    buffer_load_dwordx4 {V(S,4)}, v18, {SWS}, {sST2} offen sc1
    buffer_load_dwordx4 {V(S+4,4)}, v18, {SWS}, {sST2} offen offset:128 sc1
    s_add_u32 {sCNT}, {sCNT}, 1
    s_cmp_gt_u32 {sCNT}, 20000
    s_waitcnt vmcnt(0)
    s_cbranch_scc1 L_back_st
    v_cmp_ne_u64 vcc, {sTAG}, {V(S+2,2)}
    v_cmp_ne_u64 s[60:61], {sTAG}, {V(S+6,2)}
    s_or_b64 vcc, vcc, s[60:61]
    s_cbranch_vccnz L_spin_st
    s_branch L_back_st
""")
        return [f]

    def ep_pre(self, st, e):
        x, y = self.EXR + 4 * st + e, self.EYR + 4 * st + e
        xf, tf = self.XF + 8 * st + 2 * e, self.TF + 8 * st + 2 * e
        m = V(self.ESR + 4 * st)
        return self.T(f"""
        v_lshlrev_b32 {V(xf)}, 16, {V(x)}
        v_and_b32 {V(xf+1)}, 0xffff0000, {V(x)}
        v_lshlrev_b32 v32, 16, {V(y)}
        v_and_b32 v33, 0xffff0000, {V(y)}
        v_sub_f32 {V(tf)}, {V(xf)}, {m}
        v_sub_f32 {V(tf+1)}, {V(xf+1)}, {m}
        v_mul_f32 {V(tf)}, {V(tf)}, v32
        v_mul_f32 {V(tf+1)}, {V(tf+1)}, v33
        """)

    def ep_addr(self):
        return self.T(f"""
        v_and_b32 v36, 31, {V(vL)}
        v_mul_u32_u24 v36, 272, v36
        v_lshrrev_b32 v37, 5, {V(vL)}
        v_lshl_add_u32 v36, v37, 4, v36
        s_mul_i32 {sT0}, {sW}, 17408
        v_add_u32 v15, {sT0}, v36
        v_lshrrev_b32 v36, 3, {V(vL)}
        v_mul_u32_u24 v36, 272, v36
        v_and_b32 v37, 7, {V(vL)}
        v_lshl_add_u32 v36, v37, 5, v36
        s_mul_i32 {sT0}, {sW}, {8*272}
        v_add_u32 v16, {sT0}, v36
        """)

    def red_write(self, q):
        sb, nb = q >> 1, q & 1
        return self.T("\n".join(f"ds_write_b128 v15, {V(ACC2+16*q+4*g,4)} offset:{RED + sb*8704 + nb*128 + g*32}" for g in range(4)), f"red{sb}")

    def red_read(self, st):
        L = self.join(self.W(f"red{st}"), self.T("s_barrier"))
        L += self.T("\n".join(f"ds_read_b128 {V(self.RR+8*src+4*hh,4)}, v16 offset:{RED + src*17408 + st*8704 + hh*16}" for src in range(4) for hh in range(2)))
        return L

    def finish(self, st, packed):
        tf, xf, R = self.TF + 8 * st, self.XF + 8 * st, self.RR
        t = ""
        for src in range(4):
            if packed:
                for p in range(4):
                    t += f"v_pk_add_f32 {V(tf+2*p,2)}, {V(tf+2*p,2)}, {V(R+8*src+2*p,2)}\n"
            else:
                for p in range(8):
                    t += f"v_add_f32 {V(tf+p)}, {V(tf+p)}, {V(R+8*src+p)}\n"
        if packed:
            rr = V(self.ESR + 4 * st, 2)
            for p in range(4):
                t += f"v_pk_fma_f32 {V(tf+2*p,2)}, {V(tf+2*p,2)}, {rr}, {V(xf+2*p,2)} op_sel:[0,1,0] op_sel_hi:[1,1,1]\n"
        else:
            for p in range(8):
                t += f"v_fma_f32 {V(tf+p)}, {V(tf+p)}, {V(self.ESR+4*st+1)}, {V(xf+p)}\n"
        for p in range(4):
            t += f"v_cvt_pk_bf16_f32 {V(xf+p)}, {V(tf+2*p)}, {V(tf+2*p+1)}\n"
        t += f"buffer_store_dwordx4 {V(xf,4)}, {V(vXO)}, {SO}, {sU1 if st else sEO} offen{self.pol('out')}"
        return self.T(t)

    def stats_loads(self):
        a = self.a
        a(f"""
        s_mov_b32 s6, 0x200000
        s_and_b32 {sT1}, {sJ}, 3
        s_lshl2_add_u32 {sT1}, {sXCD}, {sT1}
        s_lshl2_add_u32 {sT1}, {sT1}, {sW}
        s_lshl_b32 {sXO[0]}, {sT1}, 14
        s_add_u32 {sXO[1]}, {sXO[0]}, 8192
        s_mov_b32 {sFH}, {WS_SIZE}
        """)
        for c in range(8):
            for i in range(2):
                a(f"buffer_load_dwordx4 {V(XR+16*c+4*i,4)}, {V(vXO)}, {SX}, {sXO[i]} offen offset:{128*c}{self.pol('xs')}")

    def stats(self):
        a = self.a
        a("v_mov_b32 v27, 0x3f803f80")
        def red8(r):
            a(f"v_add_f32_dpp {V(r)}, {V(r)}, {V(r)} quad_perm:[1,0,3,2] row_mask:0xf bank_mask:0xf")
            a(f"v_add_f32_dpp {V(r)}, {V(r)}, {V(r)} quad_perm:[2,3,0,1] row_mask:0xf bank_mask:0xf")
            a(f"v_add_f32_dpp {V(r)}, {V(r)}, {V(r)} row_half_mirror row_mask:0xf bank_mask:0xf")
        for i in range(2):
            a(f"v_mov_b32 {V(64+8*i)}, 0")
            a(f"v_mov_b32 {V(65+8*i)}, 0")
        for c in range(8):
            for j in range(4):
                for i in range(2):
                    a(f"v_dot2c_f32_bf16 {V(64+8*i+(j&1))}, {V(XR+16*c+4*i+j)}, v27")
        for i in range(2):
            a(f"v_add_f32 {V(64+8*i)}, {V(64+8*i)}, {V(65+8*i)}")
        for i in range(2):
            red8(64 + 8 * i)
        for i in range(2):
            a(f"v_mul_f32 {V(64+8*i)}, 0x3b000000, {V(64+8*i)}")
            a(f"v_mov_b32 {V(66+8*i)}, 0")
            a(f"v_mov_b32 {V(67+8*i)}, 0")
        for c in range(8):
            for j in range(4):
                for i in range(2):
                    x = V(XR + 16 * c + 4 * i + j)
                    t = 68 + 8 * i
                    a(f"v_lshlrev_b32 {V(t)}, 16, {x}")
                    a(f"v_and_b32 {V(t+1)}, 0xffff0000, {x}")
                    a(f"v_pk_add_f32 {V(t,2)}, {V(t,2)}, {V(64+8*i,2)} op_sel:[0,0] op_sel_hi:[1,0] neg_lo:[0,1] neg_hi:[0,1]")
                    a(f"v_pk_fma_f32 {V(66+8*i,2)}, {V(t,2)}, {V(t,2)}, {V(66+8*i,2)}")
        for i in range(2):
            a(f"v_add_f32 {V(66+8*i)}, {V(66+8*i)}, {V(67+8*i)}")
        for i in range(2):
            red8(66 + 8 * i)
        a(f"""
        v_lshrrev_b32 v28, 3, {V(vL)}
        v_lshlrev_b32 v28, 4, v28
        s_lshr_b32 {sT0}, {sXO[0]}, 6
        s_add_u32 {sT0}, {sT0}, {STAT}
        """)
        for i in range(2):
            m, v = 64 + 8 * i, 66 + 8 * i
            a(f"""
            v_mul_f32 {V(v)}, 0x3b000000, {V(v)}
            v_cvt_pk_bf16_f32 {V(v)}, {V(v)}, {V(m)}
            v_and_b32 {V(m)}, 0xffff0000, {V(v)}
            v_lshlrev_b32 {V(v)}, 16, {V(v)}
            v_add_f32 {V(v)}, 0x3727c5ac, {V(v)}
            v_cvt_pk_bf16_f32 {V(v)}, {V(v)}, {V(v)}
            v_lshlrev_b32 {V(v)}, 16, {V(v)}
            v_sqrt_f32 {V(v)}, {V(v)}
            v_cvt_pk_bf16_f32 {V(v)}, {V(v)}, {V(v)}
            v_lshlrev_b32 {V(v)}, 16, {V(v)}
            v_rcp_f32 {V(m+1)}, {V(v)}
            v_mov_b32 {V(m+2)}, {V(vTAG)}
            v_mov_b32 {V(m+3)}, {V(vTAG+1)}
            """)
        a("s_mov_b32 exec_lo, 0x01010101")
        a("s_mov_b32 exec_hi, 0x01010101")
        for i in range(2):
            a(f"buffer_store_dwordx4 {V(64+8*i,4)}, v28, {SWS}, {sT0} offen offset:{128*i} sc1")
        a("s_mov_b64 exec, -1")

    def gen_update(self):
        a = self.a
        a(f"s_cmp_lg_u32 s2, {28*8}")
        a("s_cbranch_scc1 L_nogen")
        a.wait_all()
        a.raw(f"""    v_lshlrev_b32 v28, 7, v0
    s_mov_b32 {sT1}, {FL_KV}
L_gen_next:
    s_mov_b32 {sCNT}, 0
L_gen_spin:
    buffer_load_dwordx2 v[30:31], v28, {SWS}, {sT1} offen sc1
    s_add_u32 {sCNT}, {sCNT}, 1
    s_cmp_gt_u32 {sCNT}, 20000
    s_waitcnt vmcnt(0)
    s_cbranch_scc1 L_gen_got
    v_cmp_ne_u64 vcc, {sTAG}, v[30:31]
    s_cbranch_vccnz L_gen_spin
L_gen_got:
    s_add_u32 {sT1}, {sT1}, 0x8000
    s_cmp_lt_u32 {sT1}, {FL_KV + 0x20000}
    s_cbranch_scc1 L_gen_next
    s_barrier
    s_cmp_lg_u32 {sW}, 0
    s_cbranch_scc1 L_nogen
    s_mov_b32 {sT1}, {GEN}
    s_mov_b64 exec, 1
    buffer_store_dwordx2 {V(vTAG,2)}, off, {SWS}, {sT1} sc1
    s_mov_b64 exec, -1
    s_waitcnt vmcnt(0)
L_nogen:""")

    def build(self):
        a, o, place, run = self.a, self.o, self.place, self.run
        rest = self.prologue()
        rest += self.addr_b1() + self.addr_a1()
        pre = self.ld_x(0) + self.ld_w1(0) + self.ld_x(1) + self.ld_w1(1) + self.ld_x(2)
        step = len(rest) / len(pre)
        k = 0
        for i, f in enumerate(pre):
            f()
            while k < len(rest) and k < (i + 1) * step:
                rest[k]()
                k += 1
        run(rest[k:])
        self.stamp("pro.issued")
        self.a1(self.ld_w1(2) + self.ld_x(3) + self.ld_w1(3) + self.ld_hk() + self.join(self.rd_x(0)) + self.ld_w1(4) + self.ld_x(4) + self.join(self.rd_x(1)))
        self.stamp("a1done")
        self.stamp("pro.a1done")
        a(f"s_cmp_ge_u32 {sJ}, 28")
        a("s_cbranch_scc1 L_spare")
        st_spare = a.state()
        a.wait("w0")
        a("s_barrier")
        for s in range(2):
            for fb in range(2):
                self.w_frag(s, fb)
        self.stamp("p1.start")
        fill = {}
        st = self.ld_x(5) + self.ld_w1(5) + self.ld_x(6) + self.ld_w1(6) + self.ld_x(7) + self.ld_w1(7)
        for n in range(8, 16):
            st += self.ld_w1(n)
        r1 = o.get("r1", 0.62)
        place(fill, self.rd_x(2), 1)
        place(fill, self.rd_x(3), 9)
        place(fill, self.rd_x(4), 17)
        place(fill, self.rd_x(5), 25)
        place(fill, self.rd_x(6), 33)
        place(fill, self.rd_x(7), 41)
        g = place(fill, st, 0, r1)
        place(fill, self.kv_flag(), 26)
        place(fill, self.p_head(), 5, 2)
        place(fill, self.kv_poll_addr(), 28, 2)
        place(fill, self.p_shift(0) + self.p_shift(1), 38, 2)
        pw = self.p_head2() + self.p_write(0, 0) + self.p_write(0, 1) + self.p_write(1, 1)
        place(fill, pw, 46, 1)
        place(fill, self.p_shift(2) + self.p_shift(3), 51, 2)
        place(fill, self.p_write(1, 0) + self.p_write(2, 0) + self.p_write(3, 0), 52, 0.5)
        place(fill, self.p_write(2, 1) + self.p_write(3, 1), 59, 0.5)
        gp = o.get("gp", 56)
        place(fill, self.poll_issue(), gp)
        place(fill, self.c_publish(0), 62, 2)
        place(fill, self.m_finish() + self.c_addr(), 66, 3)
        place(fill, self.W("cx0"), 69)
        place(fill, self.c_read(0), 71, 2)
        place(fill, self.c_apply(0, 0) + self.c_apply(0, 1), 74)
        hs = []
        for q in range(4):
            hs += self.h_store(0, q)
        place(fill, hs, 77, 3)
        gk = o.get("gk", 66)
        place(fill, self.join(self.poll_check("kv"), self.kv_fetch()), gk)
        w2 = self.ld_w2()
        n2 = o.get("n2", 27)
        place(fill, w2[:n2], gk + 1, n2 / (127 - gk))
        place(fill, self.conv_addr(), 90, 3)
        place(fill, self.W("kv", "pw"), 101)
        place(fill, self.h_flag(0), o.get("gh0", 104))
        place(fill, self.conv_reads(0), 103, 1.5)
        place(fill, self.c_publish(1), 122, 4)
        place(fill, self.join(self.W("cx1"), self.T("s_barrier"), self.c_read(1)), 126)
        self.b1(fill)
        self.stamp("pass2")
        run(self.c_apply(1, 0) + self.c_apply(1, 1))
        a("s_branch L_conv")
        st_join = a.state()
        a.restore(st_spare)
        a.label("L_spare")
        self.stats_loads()
        run(self.kv_flag())
        a("s_barrier")
        run(self.p_head() + self.p_head2())
        for i in range(4):
            run(self.p_shift(i) + self.p_write(i, 0) + self.p_write(i, 1))
        run(self.kv_poll_addr() + self.poll_issue())
        self.stats()
        run(self.poll_check("kv2") + self.kv_fetch())
        run(self.ld_w2()[:n2])
        run(self.conv_addr())
        a(f"s_mov_b32 {sHO}, {WS_SIZE}")
        self.gen_update()
        a.wait_all()
        a("s_barrier")
        run(self.conv_reads(0))
        a.wait_all()
        a.restore(st_join)
        a.label("L_conv")
        self.stamp("convstart")
        self.stamp("cv.start")
        fill = {}
        hs = []
        for q in range(4):
            hs += self.h_store(1, q)
        place(fill, hs, 3, 1)
        gw = place(fill, w2[n2:], 0, o.get("r3", 0.27))
        place(fill, self.h_poll_addr() + self.y_addr(), 40, 1)
        place(fill, self.h_flag(1), o.get("gh1", 76))
        place(fill, self.poll_issue(0), gw - 12)
        horder = [(k, sb) for k in range(20) for sb in range(2)] + [(k, sb) for sb in range(2) for k in range(20, 28)]
        hl = self.ld_h(horder)
        nh = o.get("nh", 9)
        place(fill, self.poll_check("h0", 0), gw + 2)
        place(fill, hl[:nh], gw + 3, nh / (143 - gw - 3))
        g = 108
        for t in range(7, 1, -1):
            g += t + 1
            place(fill, self.y_write(t), g + 1)
        self.conv(fill)
        self.stamp("convend")
        order = [(k, q) for k in range(20) for q in range(4)]
        order += [(k, q) for k in range(20, 28) for q in range(2)]
        order += [(k, 2) for k in range(20, 28)] + [(k, 3) for k in range(20, 28)]
        fill = {}
        place(fill, self.y_write(1) + self.y_write(0), 0, 2)
        place(fill, self.y_gather(), 2, 2)
        place(fill, self.y_sum(0) + self.y_sum(1), 7, 4)
        r4 = o.get("r4", 0.55)
        g1 = place(fill, hl[nh:28], 0, r4)
        place(fill, self.poll_issue(128), g1 - 10)
        place(fill, self.poll_check("h1", 128), g1 + 1)
        g2 = place(fill, hl[28:], g1 + 2, r4)
        self.h_sched = (g1, g2)
        place(fill, self.y_flag(), o.get("gy", 26))
        place(fill, self.ep_addr(), 16, 2)
        place(fill, self.y_fetch_addr(), 28, 2)
        place(fill, self.y_poll_addr(), g1 + 3, 2)
        place(fill, self.ep_loads(), 46, 2)
        place(fill, self.poll_issue(0), 52)
        place(fill, self.join(self.poll_check("y", 0), self.y_fetch()), 60)
        place(fill, self.stat_check(), 66)
        place(fill, self.y_read(), 72, 4)
        ep = []
        for st_ in range(2):
            for e in range(4):
                ep += self.ep_pre(st_, e)
        place(fill, ep, 76, 4)
        place(fill, self.red_write(0) + self.red_write(1), 97, 1)
        place(fill, self.red_read(0), 105, 4)
        place(fill, self.red_write(2), 106, 1)
        f0 = self.finish(0, False)
        place(fill, f0[:20], 108, 5)
        self.b2(order, fill)
        self.stamp("b2end")
        run(f0[20:32])
        run(self.red_write(3))
        run(f0[32:])
        run(self.red_read(1))
        self.stamp("redbar")
        run(self.finish(1, True))
        if o["diag"]:
            a.wait_all()
            self.stamp("end")
            a.wait_all()
            a(f"""
            s_lshl2_add_u32 {sT0}, s2, {sW}
            s_lshl_b32 {sT0}, {sT0}, 6
            s_add_u32 {sT0}, {sT0}, {STAMP}
            s_mov_b64 exec, 1
            """)
            for i in range(self.nst):
                a(f"v_mov_b32 v27, s{sSTAMP+2*i}")
                a(f"buffer_store_dword v27, off, {SWS}, {sT0} offset:{4*i}")
        a.label("L_end")
        a("s_endpgm")
        for s in self.slow:
            a.raw(s)
        a.label("L_codeend")
        return self.wrap(a.text())

    def wrap(self, body):
        return f"""; Fused kernel: out = x + LN(x) * (longconv(shiftconv(k) * v) + D * kv) + relu(LN(x) @ w1) @ w2
; One persistent launch, one workgroup per CU; phases hand data over through d_ws with tagged flags.
; @launch grid=(256,1,1) block=(256,1,1) lds={LDS_SIZE}
.amdgcn_target "amdgcn-amd-amdhsa--gfx950"
.text
.globl {KN}
.p2align 8
.type {KN},@function
{KN}:
{body}
.section .rodata,"a"
.p2align 6
.amdhsa_kernel {KN}
  .amdhsa_next_free_vgpr 512
  .amdhsa_next_free_sgpr 102
  .amdhsa_accum_offset 256
  .amdhsa_group_segment_fixed_size 0
  .amdhsa_kernarg_size 96
  .amdhsa_user_sgpr_count 2
  .amdhsa_user_sgpr_kernarg_segment_ptr 1
  .amdhsa_system_sgpr_workgroup_id_x 1
  .amdhsa_float_denorm_mode_32 3
.end_amdhsa_kernel
"""


if __name__ == "__main__":
    opts = {}
    out = None
    for arg in sys.argv[1:]:
        if "=" in arg:
            k, v = arg.split("=", 1)
            opts[k] = eval(v)
        else:
            out = arg
    g = Gen(**opts)
    txt = g.build()
    if out:
        open(out, "w").write(txt)
        if g.names:
            open(out + ".names", "w").write(" ".join(g.names))
    if opts.get("show"):
        for l in g.load:
            print(l)
    print("nops inserted:", g.a.nops, "lines:", txt.count("\n"), "h sched", g.h_sched, file=sys.stderr)
```

```python
import re

REG_RE = re.compile(r"^(v|a|s)(\d+)$")
RNG_RE = re.compile(r"^(v|a|s)\[(\d+):(\d+)\]$")
TRANS = ("v_exp_", "v_log_", "v_rcp_", "v_rsq_", "v_sqrt_", "v_sin_", "v_cos_")


def regs_of(tok):
    tok = tok.strip()
    if tok.startswith("-"):
        tok = tok[1:]
    if tok.startswith("|"):
        tok = tok.strip("|")
    m = REG_RE.match(tok)
    if m:
        return [(m.group(1), int(m.group(2)))]
    m = RNG_RE.match(tok)
    if m:
        return [(m.group(1), i) for i in range(int(m.group(2)), int(m.group(3)) + 1)]
    if tok == "vcc":
        return [("s", "vcc")]
    if tok == "exec":
        return [("s", "exec")]
    if tok == "m0":
        return [("s", "m0")]
    return []


class Ins:
    __slots__ = ("text", "mn", "cls", "R", "W", "A", "B", "C", "passes", "cnt", "dpp", "wide", "lds")

    def __init__(self, text):
        self.text = text
        t = text.split(";")[0].strip()
        parts = t.split(None, 1)
        mn = self.mn = parts[0]
        rest = parts[1] if len(parts) > 1 else ""
        ops = [o.strip() for o in rest.split(",")] if rest else []
        mods = ""
        if ops:
            j = None
            for i, o in enumerate(ops):
                if " " in o:
                    j = i
                    break
            if j is not None:
                first, tail = ops[j].split(None, 1)
                mods = tail + "," + ",".join(ops[j + 1:])
                ops = ops[:j] + [first]
        self.R, self.W = set(), set()
        self.A = self.B = self.C = None
        self.passes = 0
        self.cnt = 1
        self.dpp = any(k in mods for k in ("quad_perm", "row_", "wave_"))
        self.wide = False
        self.lds = False
        rr = lambda toks: set(r for tk in toks for r in regs_of(tk))
        if mn.startswith("v_mfma"):
            self.cls = "mfma"
            self.passes = 8 if "32x32x16" in mn else 4 if "16x16x32" in mn else 16
            self.W = rr(ops[0:1])
            self.A, self.B, self.C = rr(ops[1:2]), rr(ops[2:3]), rr(ops[3:4])
            self.R = self.A | self.B | self.C
        elif mn.startswith("v_"):
            self.cls = "valu"
            if mn.startswith("v_permlane") or mn.startswith("v_swap"):
                self.W = rr(ops[0:2])
                self.R = rr(ops[0:2])
            elif mn.startswith(("v_add_co", "v_addc_co", "v_sub_co", "v_subb_co")):
                self.W = rr(ops[0:2])
                self.R = rr(ops[2:])
            elif mn == "v_nop":
                pass
            else:
                self.W = rr(ops[0:1])
                self.R = rr(ops[1:])
                if mn.startswith(("v_fmac", "v_dot2c", "v_writelane", "v_pk_fmac")) or self.dpp or "sdwa" in mn:
                    self.R |= self.W
                if mn.startswith("v_cndmask") and len(ops) == 3:
                    self.R.add(("s", "vcc"))
        elif mn.startswith("ds_"):
            self.cls = "ds"
            if mn.startswith("ds_read"):
                self.W = rr(ops[0:1])
                self.R = rr(ops[1:])
            else:
                self.R = rr(ops)
        elif mn.startswith(("buffer_", "global_")):
            self.cls = "vmem"
            self.lds = bool(re.search(r"\blds\b", mods))
            if "load" in mn and not self.lds:
                self.W = rr(ops[0:1])
                self.R = rr(ops[1:])
            else:
                self.R = rr(ops)
                if self.lds:
                    self.R.add(("s", "m0"))
                if "store" in mn and ("x3" in mn or "x4" in mn):
                    self.wide = True
                    self.A = rr(ops[0:1])
        elif mn.startswith("s_load") or mn.startswith("s_memtime") or mn.startswith("s_memrealtime"):
            self.cls = "smem"
            self.W = rr(ops[0:1])
            self.R = rr(ops[1:])
        elif mn == "s_nop":
            self.cls = "nop"
            self.cnt = int(ops[0]) + 1
        elif mn.startswith(("s_waitcnt", "s_barrier", "s_branch", "s_cbranch", "s_endpgm", "s_setprio", "s_sleep")):
            self.cls = "ctl"
        elif mn.startswith("s_cmp") or mn.startswith("s_bitcmp"):
            self.cls = "salu"
            self.R = rr(ops)
        elif mn.startswith("s_"):
            self.cls = "salu"
            self.W = rr(ops[0:1])
            self.R = rr(ops[1:])
            if "saveexec" in mn:
                self.W.add(("s", "exec"))
        else:
            raise ValueError("unknown mnemonic: " + text)


def need_states(p, c):
    n = 0
    vw = set(r for r in p.W if r[0] != "s")
    sw = set(r for r in p.W if r[0] == "s")
    if p.cls == "valu":
        if c.cls == "mfma" and vw & c.R:
            n = max(n, 3 if p.mn.startswith("v_dot") else 2)
        if c.cls == "valu":
            if vw & c.R:
                if c.mn.startswith(("v_readlane", "v_readfirstlane")):
                    n = max(n, 1)
                if c.dpp or c.mn.startswith("v_permlane"):
                    n = max(n, 2)
                if p.mn.startswith(TRANS) and not c.mn.startswith(TRANS):
                    n = max(n, 1)
                if "sdwa" in p.mn or ("op_sel" in p.text and not p.mn.startswith("v_pk")):
                    n = max(n, 1)
            if p.mn.startswith("v_dot") and vw & (c.R | c.W):
                if not (c.mn == p.mn and c.mn.startswith("v_dot2c") and not (vw & (c.R - c.W))):
                    n = max(n, 3)
            if sw & c.R:
                n = max(n, 4 if c.mn.startswith(("v_readlane", "v_writelane")) else 2)
        if c.cls in ("vmem", "ds") and p.mn.startswith("v_dot") and vw & c.R:
            n = max(n, 3)
        if c.cls == "vmem" and sw & c.R:
            n = max(n, 5)
    elif p.cls == "mfma":
        big = {4: 8, 8: 12, 16: 20}[p.passes]
        if c.cls == "mfma":
            if p.W & (c.A | c.B):
                n = max(n, big)
            if p.W & c.C and not (p.W == c.C and p.passes == c.passes):
                n = max(n, big - 2)
            if p.W & c.W and not (p.W & c.C):
                n = max(n, big)
        elif c.cls == "valu":
            if p.W & (c.R | c.W):
                n = max(n, big)
            if p.C & c.W:
                n = max(n, {4: 3, 8: 7, 16: 15}[p.passes])
        elif c.cls in ("vmem", "ds"):
            if p.W & (c.R | c.W):
                n = max(n, big)
            if p.C & c.W:
                n = max(n, {4: 3, 8: 7, 16: 15}[p.passes])
    elif p.cls == "salu":
        if c.cls == "vmem" and c.lds and ("s", "m0") in p.W:
            n = max(n, 1)
    elif p.cls == "vmem" and p.wide:
        if p.A & c.W:
            n = max(n, 2 if c.cls == "valu" else 1)
    return n


class Asm:
    def __init__(self):
        self.out = []
        self.hist = []
        self.vm = []
        self.lg = []
        self.sm = set()
        self.nops = 0
        self.seen = set()
        self.phase = ""
        self.drop = []

    def raw(self, s):
        self.out.append(s)

    def comment(self, s):
        self.out.append("    ; " + s)

    def label(self, name, reset=False):
        self.out.append(name + ":")
        if reset:
            self.hist = []

    def state(self):
        return (list(self.hist), list(self.vm), list(self.lg), set(self.sm))

    def restore(self, st):
        self.hist, self.vm, self.lg, self.sm = list(st[0]), list(st[1]), list(st[2]), set(st[3])

    def _push(self, ins):
        self.out.append("    " + ins.text)
        self.hist.append(ins)
        if len(self.hist) > 24:
            self.hist.pop(0)

    def _wait(self, vm=None, lg=None):
        parts = []
        if vm is not None:
            assert vm <= 63
            parts.append(f"vmcnt({vm})")
            self.vm = self.vm[len(self.vm) - vm:] if vm else []
        if lg is not None:
            assert lg <= 15
            parts.append(f"lgkmcnt({lg})")
            self.lg = self.lg[len(self.lg) - lg:] if lg else []
            if lg == 0:
                self.sm = set()
        if parts:
            self._push(Ins("s_waitcnt " + " ".join(parts)))

    @staticmethod
    def _need(q, pred, cap):
        idx = -1
        for i, e in enumerate(q):
            if pred(e):
                idx = i
        if idx < 0:
            return None
        return min(len(q) - 1 - idx, cap)

    def wait(self, *tags):
        ts = set(tags)
        assert ts <= self.seen, ts - self.seen
        vm = self._need(self.vm, lambda e: e[0] in ts, 63)
        lg = self._need(self.lg, lambda e: e[0] in ts, 15)
        self._wait(vm, lg)

    def wait_all(self, vm=True, lg=True):
        self._wait(0 if vm else None, 0 if lg else None)

    def __call__(self, text, tag=None):
        for line in text.strip().split("\n"):
            line = line.strip()
            if not line or line.startswith(";"):
                continue
            if line.endswith(":"):
                self.label(line[:-1])
                continue
            self.one(line, tag)

    def one(self, text, tag=None):
        self.seen.add(tag)
        if any(ph == self.phase and re.search(rx, text) for ph, rx in self.drop):
            return
        ins = Ins(text)
        touch = ins.R | ins.W
        vm = self._need(self.vm, lambda e: e[1] & touch, 63)
        lg = self._need(self.lg, lambda e: e[1] & touch, 15)
        if ins.cls == "ds" and lg is not None:
            lg = self._need(self.lg, lambda e: e[1] & ins.R, 15)
        if ins.cls == "vmem" and vm is not None:
            vm = self._need(self.vm, lambda e: e[1] & ins.R, 63)
        if self.sm & touch:
            lg = 0
        if vm is not None or lg is not None:
            self._wait(vm, lg)
        dist = 0
        need = 0
        for p in reversed(self.hist):
            n = need_states(p, ins)
            if n > dist:
                need = max(need, n - dist)
            dist += p.cnt
            if dist >= 20:
                break
        while need > 0:
            k = min(need, 16)
            self._push(Ins(f"s_nop {k-1}"))
            self.nops += k
            need -= k
        if ins.mn == "s_waitcnt":
            raise ValueError("use wait()/wait_all()")
        self._push(ins)
        if ins.cls == "vmem":
            self.vm.append((tag, set(ins.W)))
            assert len(self.vm) <= 63, "too many vector memory ops in flight"
        elif ins.cls == "ds":
            self.lg.append((tag, set(ins.W)))
        elif ins.cls == "smem":
            self.sm |= ins.W

    def text(self):
        return "\n".join(self.out) + "\n"
```

```python
import sys, os
sys.path.insert(0, os.path.dirname(os.path.abspath(__file__)))
from emit import Asm

KN = "parallel_sum__ssm_conv_h3__dense_activation_relu__prompt_kernel"

KVT = 0x000000
YWS = 0x200000
HWS = 0x400000
FL_KV = 0xC00000
FL_Y = 0xC20000
FL_H = 0xC40000
STAT = 0xC80000
GEN = 0xC90000
STAMP = 0xD00000
W2T = 0xE00000
WS_SIZE = 0x1000000

R1 = 65536
W2R = 49152
KT = 131072
VT = KT + 9216
CX = 148480
YB = 152576
PB = 0
KV = 33280
EX = 90112
RED = 0
LDS_SIZE = 163840

SX, SK, SV, SSH, SHK, SW1, SW2, SO, SWS = [f"s[{4*i}:{4*i+3}]" for i in range(1, 10)]
sTAG = "s[42:43]"
sB = "s2"
sW, sXCD, sJ = "s44", "s45", "s46"
sST, sDT = "s47", "s48"
sXO = ["s49", "s50", "s51", "s52"]
sW1O, sM0 = "s53", "s54"
sHO = "s55"
sD, sCY, sH0, sH1 = "s56", "s57", "s58", "s59"
sT0, sT1, sT2, sT3 = "s60", "s61", "s62", "s63"
sW2O = "s64"
sFK = "s65"
sFH = "s66"
sCNT = "s67"
sHL = "s68"
sKF = "s69"
sEO = "s70"
sPO, sHL2 = "s40", "s41"
sU0, sU1, sU2 = "s71", "s3", "s72"
sHK, sST2 = "s73", "s74"
sSTAMP = 76


def V(i, n=1):
    return f"v{i}" if n == 1 else f"v[{i}:{i+n-1}]"


def A(i, n=1):
    return f"a{i}" if n == 1 else f"a[{i}:{i+n-1}]"


vL, vL16, vXO, vW0, vW1 = 1, 2, 3, 4, 5
vXA = [6, 7]
vXR = [8, 9, 10, 11]
vA = [[12, 13], [14, 15], [16, 17], [18, 19]]
vCA, vH2 = 20, 21
vTAG = 22
vP = 24
vPO = 26
RING = 40
ACC = 64
XR = 128
HK = 96
aSEL, aM, aC = 224, 228, 232
aY = 224
ACC2 = 192


def hslot(k, sb):
    return 40 + 8 * (k % 19) + 4 * sb


class Gen:
    def __init__(self, **o):
        self.o = dict(diag=False, codepf=True, nt="k v w2r hk")
        self.o.update(o)
        self.a = Asm()
        self.a.drop = self.o.get("drop", [])
        self.slow = []
        self.nst = 0
        self.names = []
        self.load = []

    def pol(self, name, base=""):
        p = self.o.get("pol_" + name)
        if p is None:
            p = base + (" nt" if name in self.o["nt"].split() else "")
        p = p.strip()
        return " " + p if p else ""

    def stamp(self, name):
        if not self.o["diag"]:
            return
        grp = name.split(".")[0] if "." in name else "main"
        if name not in ("start", "end") and grp not in self.o["diag"]:
            return
        i = self.nst
        assert i < 64, name
        r = sSTAMP + 2 * (i % 8)
        if i >= 6:
            self.a.raw(f"    v_writelane_b32 v39, s{sSTAMP + 2*((i-6) % 8)}, {i-6}")
        self.a.raw(f"    {'s_memtime' if self.o.get('clk') else 's_memrealtime'} s[{r}:{r+1}]")
        self.names.append(name)
        self.nst += 1

    def T(self, text, tag=None):
        groups = []
        for line in text.strip().split("\n"):
            line = line.strip()
            if not line or line.startswith(";"):
                continue
            if line.startswith("+"):
                groups[-1].append(line[1:].strip())
            else:
                groups.append([line])
        return [(lambda g=g: [self.a(x, tag) for x in g]) for g in groups]

    def W(self, *tags):
        return [lambda: self.a.wait(*tags)]

    @staticmethod
    def join(*lists):
        fs = [f for l in lists for f in l]
        return [lambda: [f() for f in fs]]

    @staticmethod
    def run(items):
        for f in items:
            f()

    @staticmethod
    def place(fill, items, g0, per=1.0):
        g = g0
        for i, f in enumerate(items):
            g = g0 + int(i / per)
            fill.setdefault(g, []).append(f)
        return g

    def gap(self, fill, g, phase):
        n0 = len(self.a.out)
        for f in fill.pop(g, []):
            f()
        return len(self.a.out) - n0

    def flag_store(self, soff):
        return self.T(f"""
        s_mov_b64 exec, 1
        +buffer_store_dwordx2 {V(vTAG,2)}, off, {SWS}, {soff} sc1
        +s_mov_b64 exec, -1""")

    def poll_issue(self, imm=0):
        return self.T(f"buffer_load_dwordx2 {V(vP,2)}, {V(vPO)}, {SWS}, {sPO} offen offset:{imm} sc1")

    def poll_check(self, name, imm=0):
        def f():
            a = self.a
            a(f"v_cmp_ne_u64 vcc, {sTAG}, {V(vP,2)}")
            a(f"s_cbranch_vccnz L_slow_{name}")
            a.label(f"L_back_{name}")
            self.slow.append(f"""L_slow_{name}:
    s_mov_b32 {sCNT}, 0
L_spin_{name}:
    buffer_load_dwordx2 {V(vP,2)}, {V(vPO)}, {SWS}, {sPO} offen offset:{imm} sc1
    s_add_u32 {sCNT}, {sCNT}, 1
    s_cmp_gt_u32 {sCNT}, 20000
    s_waitcnt vmcnt(0)
    s_cbranch_scc1 L_back_{name}
    v_cmp_ne_u64 vcc, {sTAG}, {V(vP,2)}
    s_cbranch_vccnz L_spin_{name}
    s_branch L_back_{name}
""")
        return [f]

    def prologue(self):
        a = self.a
        a(f"""
        s_cmp_ge_u32 s2, 0x100
        s_cbranch_scc1 L_end
        s_load_dwordx2 s[8:9], s[0:1], 8
        s_load_dwordx2 s[12:13], s[0:1], 16
        s_load_dwordx2 s[16:17], s[0:1], 24
        s_load_dwordx2 s[4:5], s[0:1], 0
        s_load_dwordx2 s[24:25], s[0:1], 56
        s_load_dwordx2 s[36:37], s[0:1], 88
        s_load_dwordx2 s[20:21], s[0:1], 32
        s_load_dwordx2 s[40:41], s[0:1], 40
        s_load_dwordx2 s[28:29], s[0:1], 64
        s_load_dwordx2 s[32:33], s[0:1], 72
        """)
        self.stamp("start")
        if self.o["codepf"]:
            a(f"""
            s_getpc_b64 s[60:61]
            L_pc:
            v_lshlrev_b32 v28, 7, v0
            v_min_u32 v28, L_codeend-L_pc-4, v28
            v_mov_b32 v29, s61
            v_add_co_u32 v28, vcc, s60, v28
            v_lshrrev_b32 v27, 6, v0
            v_and_b32 {V(vL)}, 63, v0
            v_addc_co_u32 v29, vcc, 0, v29, vcc
            global_load_dword a255, v[28:29], off
            """)
        else:
            a(f"""
            v_lshrrev_b32 v27, 6, v0
            v_and_b32 {V(vL)}, 63, v0
            """)
        a(f"""
        s_and_b32 {sXCD}, s2, 7
        s_lshr_b32 {sJ}, s2, 3
        v_readfirstlane_b32 {sW}, v27
        s_mov_b32 s10, 0x200000
        s_mov_b32 s11, 0x20000
        s_mov_b64 s[14:15], s[10:11]
        s_mov_b64 s[22:23], s[10:11]
        s_mov_b64 s[34:35], s[10:11]
        s_mov_b32 s18, 0x1000
        s_mov_b32 s19, s11
        s_mov_b32 s7, s11
        s_mov_b32 s31, s11
        s_mov_b32 s27, s11
        s_mov_b32 s38, {WS_SIZE}
        s_mov_b32 s39, s11
        s_cmp_lt_u32 {sJ}, 28
        s_cselect_b32 s26, 0x1c0000, 0
        s_cselect_b32 s6, s10, 0
        s_mov_b32 s30, s26
        s_lshr_b32 {sT0}, {sJ}, 3
        s_lshl2_add_u32 {sST}, {sXCD}, {sT0}
        s_and_b32 {sDT}, {sJ}, 7
        v_lshrrev_b32 v27, 3, {V(vL)}          ; l>>3
        v_and_b32 v28, 7, {V(vL)}              ; l&7
        v_lshrrev_b32 v29, 4, {V(vL)}          ; l>>4
        v_lshrrev_b32 v30, 5, {V(vL)}          ; l>>5
        v_lshlrev_b32 v31, 10, v27             ; (l>>3)*1024
        v_lshl_or_b32 {V(vXO)}, v28, 4, v31
        v_lshlrev_b32 v32, 5, v30
        v_xor_b32 v32, {V(vXO)}, v32
        v_xor_b32 v33, 64, v32
        v_add_u32 v33, 7168, v33
        s_lshl_b32 {sT0}, {sST}, 16
        s_lshl_b32 {sT1}, {sW}, 14
        s_lshl_b32 {sT2}, {sDT}, 7
        s_add_u32 {sT0}, {sT0}, {sT2}
        s_add_u32 {sEO}, {sT0}, {sT1}
        s_lshl_b32 {sT1}, {sW}, 10
        s_add_u32 {sT0}, {sT0}, {sT1}
        s_sub_u32 {sT0}, {sT0}, 4096
        v_xor_b32 v34, 6, v28
        v_lshlrev_b32 v34, 4, v34
        v_add_u32 v34, {sT0}, v34
        s_lshl_b32 {sT1}, {sW}, 11
        s_add_u32 m0, {sT1}, {KT + 1024}
        s_lshl_b32 {sT2}, {sW}, 7
        s_lshl_b32 {sT3}, {sDT}, 9
        s_add_u32 {sT3}, {sT3}, {sT2}
        v_and_b32 v35, 15, {V(vL)}             ; l&15
        v_lshlrev_b32 v36, 3, v35
        v_and_b32 v37, 1, v29
        v_lshlrev_b32 v37, 6, v37
        v_xor_b32 v20, {V(vXO)}, v37
        v_add_u32 v21, 7168, v20
        s_lshl_b32 {sM0}, {sW}, 12
        s_cmp_ge_u32 {sJ}, 14
        s_cselect_b32 {sU0}, {27*65536}, 0
        s_lshl_b32 {sU1}, {sJ}, 17
        s_sub_u32 {sU1}, {sU1}, {sU0}
        s_lshl2_add_u32 {sU1}, {sM0}, {sU1}
        s_lshl_b32 {sU0}, {sXCD}, 7
        s_add_u32 {sU1}, {sU1}, {sU0}
        """)
        nt = self.pol("k")
        a(f"buffer_load_dwordx4 v32, {SK}, {sEO} offen{nt} lds", "a1")
        self.stamp("pro.args")
        a(f"buffer_load_dwordx4 v33, {SK}, {sEO} offen offset:1024{nt} lds", "a1")
        a(f"s_add_u32 m0, {sT1}, {VT}")
        a(f"buffer_load_dwordx2 {V(RING,2)}, v36, {SSH}, {sT3} offen", "a1")
        nt = self.pol("v")
        a(f"buffer_load_dwordx4 v32, {SV}, {sEO} offen{nt} lds", "a1")
        a(f"buffer_load_dwordx4 v33, {SV}, {sEO} offen offset:1024{nt} lds", "a1")
        a(f"s_add_u32 m0, {sT2}, {KT + 512}")
        a("s_mov_b64 exec, 0xff")
        a(f"buffer_load_dwordx4 v34, {SK}, 0 offen lds", "a1")
        a("s_mov_b64 exec, -1")
        a(f"s_add_u32 m0, {sM0}, {W2R}")
        a(f"""
        s_lshr_b32 {sT0}, {sXCD}, 1
        """)
        nt = self.pol("w2r")
        a(f"buffer_load_dwordx4 v20, {SW2}, {sU1} offen{nt} lds", "w2r")
        a(f"buffer_load_dwordx4 v21, {SW2}, {sU1} offen offset:1024{nt} lds", "w2r")
        a(f"""
        s_and_b32 {sT1}, {sJ}, 3
        s_lshl2_add_u32 {sT0}, {sT0}, {sT1}         ; rb
        s_lshl2_add_u32 {sT0}, {sT0}, {sW}
        s_lshr_b32 {sT1}, {sT0}, 1
        s_lshl_b32 {sT1}, {sT1}, 16
        s_and_b32 {sT2}, {sW}, 1
        s_lshl_b32 {sT2}, {sT2}, 13
        s_add_u32 {sXO[0]}, {sT1}, {sT2}
        s_add_u32 {sXO[1]}, {sXO[0]}, {16384-1024}
        s_add_u32 {sXO[2]}, {sXO[1]}, {16384-1024}
        s_add_u32 {sXO[3]}, {sXO[2]}, {16384-1024}
        v_lshlrev_b32 v37, 4, v29
        v_xor_b32 {V(vXA[0])}, {V(vXO)}, v37
        v_xor_b32 {V(vXA[1])}, 64, {V(vXA[0])}
        s_and_b32 {sT2}, {sXCD}, 1
        s_mul_i32 {sT2}, {sT2}, 7
        s_lshr_b32 {sT3}, {sJ}, 2
        s_add_u32 {sT2}, {sT2}, {sT3}               ; ft
        s_mul_i32 {sW1O}, {sW}, {16*3584}
        s_lshl_b32 {sT3}, {sT2}, 8
        s_add_u32 {sW1O}, {sW1O}, {sT3}
        v_mul_u32_u24 v38, 2560, v27
        v_add_u32 {V(vW0)}, v20, v38
        v_add_u32 {V(vW1)}, {8*3584-1024}, {V(vW0)}
        """)
        return self.T(f"""
        s_mul_i32 {sFH}, {sT0}, 14
        s_add_u32 {sFH}, {sFH}, {sT2}
        s_lshl_b32 {sFH}, {sFH}, 8
        s_add_u32 {sFH}, {sFH}, {FL_H}
        s_mul_i32 {sHO}, {sT0}, 112
        s_add_u32 {sHO}, {sHO}, {sT2}
        s_lshl_b32 {sHO}, {sHO}, 10
        s_add_u32 {sHO}, {sHO}, {HWS}
        s_lshr_b32 {sT0}, {sW}, 1
        s_lshl1_add_u32 {sT0}, s2, {sT0}
        s_lshl_b32 {sHK}, {sT0}, 12
        s_lshl_b32 {sT1}, s2, 2
        s_mov_b32 {sT2}, {GEN}
        s_load_dwordx2 s[58:59], s[20:21], {sHK}
        s_load_dword {sD}, s[40:41], {sT1}
        s_load_dwordx2 {sTAG}, s[36:37], {sT2}
        s_and_b32 {sT1}, {sW}, 1
        s_lshl_b32 {sT1}, {sT1}, 2
        s_sub_u32 {sHK}, {sHK}, {sT1}
        s_add_u32 {sHK}, {sHK}, 8
        s_lshl2_add_u32 {sFK}, s2, {sW}
        s_lshl_b32 {sKF}, {sFK}, 11
        s_lshl_b32 {sFK}, {sFK}, 7
        s_add_u32 {sFK}, {sFK}, {FL_KV}
        v_lshlrev_b32 {V(vL16)}, 4, {V(vL)}
        """)

    def ld_x(self, c):
        L = []
        for i in range(4):
            t = f"buffer_load_dwordx4 {V(vXA[i&1])}, {SX}, {sXO[i]} offen offset:{1024*i + 128*c}{self.pol('x')} lds"
            if i == 0:
                t = f"s_add_u32 m0, {sM0}, {R1 + (c & 3)*16384 - 128*c}\n+" + t
            L += self.T(t, f"x{c}")
        if c >= 4:
            L[0] = self.join(self.W(f"xr{c-4}"), [L[0]])[0]
        return L

    def ld_w1(self, n):
        c = n & 7
        adv = (128 - 7*64*3584) if n == 7 else 64*3584
        L = self.T(f"""
        s_add_u32 m0, {sM0}, {(n >> 3)*R1 + (c >> 1)*16384 + (c & 1)*2048}
        +buffer_load_dwordx4 {V(vW0)}, {SW1}, {sW1O} offen{self.pol('w1')} lds
        buffer_load_dwordx4 {V(vW1)}, {SW1}, {sW1O} offen offset:1024{self.pol('w1')} lds
        """ + (f"+s_add_u32 {sW1O}, {sW1O}, {adv & 0xffffffff}" if n < 15 else ""), f"w{n}")
        if n >= 8 and n % 2 == 0:
            L[0] = self.join(self.W(f"xr{4 + (n-8)//2}"), [L[0]])[0]
        if n == 6:
            L[0] = self.join(self.W("bounce"), [L[0]])[0]
        return L

    def rd_x(self, c):
        L = self.T("\n".join(f"ds_read_b128 {V(XR+16*c+4*tt,4)}, {V(vXR[tt])} offset:{(c & 3)*16384}" for tt in range(4)), f"xr{c}")
        L[0] = self.join(self.W(f"x{c}"), [L[0]])[0]
        return L

    def addr_b1(self):
        t = f"""
        v_lshrrev_b32 v29, 4, {V(vL)}
        v_lshrrev_b32 v30, 5, {V(vL)}
        v_bfe_u32 v31, {V(vL)}, 1, 3
        v_xor_b32 v31, v31, v30
        v_lshlrev_b32 v31, 4, v31
        v_and_b32 v32, 31, {V(vL)}
        v_lshl_add_u32 v31, v32, 7, v31
        s_add_u32 {sT0}, {sM0}, {R1}
        v_add_u32 v31, {sT0}, v31
        v_bfe_u32 v32, {V(vL)}, 2, 2          ; r
        v_and_b32 v33, 3, {V(vL)}             ; c
        v_bfe_u32 v35, {V(vL)}, 3, 1          ; (r>>1)&1
        v_lshlrev_b32 v35, 6, v35
        v_lshl_add_u32 v35, v32, 7, v35
        v_and_b32 v34, 1, v29
        v_lshl_add_u32 v35, v34, 5, v35
        v_lshl_add_u32 v35, v33, 3, v35
        v_lshl_add_u32 v34, v30, 10, v35
        v_lshl_add_u32 v38, v30, 9, v35
        s_add_u32 {sT0}, {sM0}, {W2R}
        v_add_u32 v38, {sT0}, v38
        """
        for tt in range(4):
            t += f"""
            s_add_u32 {sT0}, {sW}, {tt}
            s_and_b32 {sT0}, {sT0}, 3
            s_lshl_b32 {sT1}, {sT0}, 5
            s_lshl_b32 {sT0}, {sT0}, 12
            v_xor_b32 {V(vXR[tt])}, {sT1}, v31
            v_add_u32 {V(vA[tt][0])}, {sT0}, v34
            v_xor_b32 {V(vA[tt][1])}, 64, {V(vA[tt][0])}
            """
        t += f"""
        v_lshrrev_b32 v31, 2, {V(vL)}
        v_xor_b32 v31, v31, v29
        v_and_b32 v31, 1, v31
        v_add_u32 v31, -1, v31
        v_and_b32 v31, 0x3f803f80, v31
        v_accvgpr_write_b32 {A(aSEL)}, v31
        v_accvgpr_write_b32 {A(aSEL+1)}, v31
        v_accvgpr_write_b32 {A(aSEL+2)}, v31
        v_accvgpr_write_b32 {A(aSEL+3)}, v31
        """
        return self.T(t)

    def addr_a1(self):
        return self.T(f"""
        v_lshrrev_b32 v27, 4, {V(vL)}         ; G
        v_bfe_u32 v28, {V(vL)}, 2, 2          ; r
        v_and_b32 v29, 3, {V(vL)}             ; c
        v_lshrrev_b32 v30, 2, {V(vL)}         ; 4G + r
        v_lshlrev_b32 v30, 9, v30
        v_lshl_add_u32 v30, v29, 3, v30
        v_xor_b32 v31, {sW}, v28
        v_lshl_add_u32 v31, v31, 5, v30
        v_add_u32 v31, {KT + 1024}, v31
        v_add_u32 v32, 3, v28
        v_and_b32 v32, 3, v32
        v_xor_b32 v32, {sW}, v32
        v_lshl_add_u32 v32, v32, 5, v30
        v_add_u32 v32, {KT + 512}, v32
        s_add_u32 {sT1}, {sM0}, {W2R}
        v_bfe_u32 v33, {V(vL)}, 1, 3          ; i>>1
        v_mul_u32_u24 v33, 272, v33
        v_lshl_add_u32 v33, v27, 4, v33
        v_add_u32 v33, {sT1}, v33
        v_and_b32 v34, 1, {V(vL)}
        v_lshlrev_b32 v34, 1, v34
        s_and_b32 {sT0}, {sST}, 3
        v_xor_b32 v34, {sT0}, v34
        v_xor_b32 v35, 1, v34
        v_lshl_add_u32 v34, v34, 6, v33
        v_lshl_add_u32 v35, v35, 6, v33
        v_and_b32 v36, 15, {V(vL)}
        v_lshlrev_b32 v36, 4, v36
        v_mul_u32_u24 v37, 272, v27
        v_add3_u32 v37, v37, v36, {sT1}
        v_lshl_add_u32 v36, v27, 13, v36
        v_xor_b32 v33, 64, v38
        s_lshl2_add_u32 {sT0}, {sXCD}, {sW}
        s_mul_i32 {sT0}, {sT0}, 28
        s_add_u32 {sT0}, {sT0}, {sJ}
        s_lshl_b32 {sT0}, {sT0}, 11
        s_add_u32 {sT0}, {sT0}, {W2T}
        s_cmp_lt_u32 {sJ}, 28
        +s_cselect_b32 {sU0}, {sT0}, {WS_SIZE}      ; w2 fragment store (spare workgroups have none)
        s_lshl2_add_u32 {sT0}, {sDT}, {sW}
        s_lshl_b32 {sT1}, {sT0}, 16
        s_lshl_b32 {sT2}, {sST}, 8
        s_add_u32 {sU1}, {sT1}, {sT2}
        s_add_u32 {sU2}, {sU1}, {4*8192}
        s_mul_i32 {sW2O}, {sT0}, {28*2048}
        s_add_u32 {sW2O}, {sW2O}, {W2T}
        """)

    def a1(self, fill):
        a = self.a
        a.wait("a1")
        a("s_barrier")
        self.stamp("a1data")
        self.stamp("pro.a1data")
        KR, VR, KF, VF, acc, WF, U, WT = 192, 206, 214, 242, 250, 44, 48, 56
        for s in range(-3, 4):
            base, imm = ("v31", s * 128) if s >= 0 else ("v32", (s + 4) * 128)
            a(f"ds_read_b64_tr_b16 {V(KR+2*(s+3),2)}, {base} offset:{imm}")
        for r in range(4):
            a(f"ds_read_b64_tr_b16 {V(VR+2*r,2)}, v31 offset:{VT-KT-1024+r*128}")
        a.wait("w2r")
        for nb in range(2):
            for jj in range(2):
                a(f"ds_read_b64_tr_b16 {V(WT+4*nb+2*jj,2)}, {'v33' if nb else 'v38'} offset:{1024*jj}")
        ops = []
        def unpack(dst, src):
            return [f"v_lshlrev_b32 {V(dst)}, 16, {V(src)}", f"v_and_b32 {V(dst+1)}, 0xffff0000, {V(src)}",
                    f"v_lshlrev_b32 {V(dst+2)}, 16, {V(src+1)}", f"v_and_b32 {V(dst+3)}, 0xffff0000, {V(src+1)}"]
        ops += unpack(WF, RING)
        done = set()
        for rho in range(4):
            for j in range(3, -1, -1):
                s = rho - j
                if s not in done:
                    ops += unpack(KF + 4 * (s + 3), KR + 2 * (s + 3))
                    done.add(s)
            if rho == 0:
                for nb in range(2):
                    ops.append(f"buffer_store_dwordx4 {V(WT+4*nb,4)}, {V(vL16)}, {SWS}, {sU0} offen offset:{1024*nb}{self.pol('w2st', 'sc1')}")
            vf = VF + 4 * (rho & 1)
            ops += unpack(vf, VR + 2 * rho)
            for j in range(3, -1, -1):
                s = rho - j
                wp = V(WF + (j & 2), 2)
                lo = j & 1
                for h in range(2):
                    k = V(KF + 4 * (s + 3) + 2 * h, 2)
                    d = V(acc + 2 * h, 2)
                    if j == 3:
                        ops.append(f"v_pk_mul_f32 {d}, {k}, {wp} op_sel:[0,{lo}] op_sel_hi:[1,{lo}]")
                    else:
                        ops.append(f"v_pk_fma_f32 {d}, {k}, {wp}, {d} op_sel:[0,{lo},0] op_sel_hi:[1,{lo},1]")
            for h in range(2):
                ops.append(f"v_pk_mul_f32 {V(acc+2*h,2)}, {V(acc+2*h,2)}, {V(vf+2*h,2)}")
            for h in range(2):
                ops.append(f"v_cvt_pk_bf16_f32 {V(U+2*rho+h)}, {V(acc+2*h)}, {V(acc+2*h+1)}")
            if rho & 1:
                ops.append(f"ds_write_b128 {'v34' if rho == 1 else 'v35'}, {V(U+4*(rho>>1),4)}")
        nf = len(fill)
        k = 0
        for n, op in enumerate(ops):
            a(op, "kvst")
            while k < nf and (k + 1) * len(ops) <= (n + 1) * (nf + 1):
                fill[k]()
                k += 1
        a(f"ds_read_b128 {V(U,4)}, v37", "bounce")
        a(f"ds_read_b128 {V(U+4,4)}, v37 offset:1088", "bounce")
        for f in fill[k:]:
            f()
        a(f"""
        s_add_u32 s42, s42, 0x7f4a7c15
        s_addc_u32 s43, s43, 0x9e3779b9
        v_mov_b32 {V(vTAG)}, s42
        v_mov_b32 {V(vTAG+1)}, s43
        """)
        a(f"buffer_store_dwordx4 {V(U,4)}, v36, {SWS}, {sU1} offen{self.pol('kvst', 'sc1')}", "kvst")
        a(f"buffer_store_dwordx4 {V(U+4,4)}, v36, {SWS}, {sU2} offen{self.pol('kvst', 'sc1')}", "kvst")

    def kv_flag(self):
        return self.join(self.W("kvst"), self.flag_store(sFK))

    def w_frag(self, s, fb):
        c, tt = (s >> 2) & 7, s & 3
        r = RING + 8 * (s % 3) + 4 * fb
        for jj in range(2):
            self.a(f"ds_read_b64_tr_b16 {V(r+2*jj,2)}, {V(vA[tt][fb])} offset:{(c>>1)*16384 + (c&1)*2048 + jj*512}", f"f{s}")

    def b1(self, fill):
        a = self.a
        for s in range(64):
            hf, c, tt = s >> 5, (s >> 2) & 7, s & 3
            a.phase = f"p{hf+1}"
            x = V(XR + 16 * c + 4 * tt, 4)
            n2 = s + 2
            cnt = []
            for fb in range(2):
                n0 = len(a.out)
                acc = V(ACC + 32 * hf + 16 * fb, 16)
                fr = V(RING + 8 * (s % 3) + 4 * fb, 4)
                first = (c == 0 and tt == 0)
                if fb == 0:
                    a.wait(f"f{s}")
                a(f"v_mfma_f32_32x32x16_bf16 {acc}, {fr}, {x}, {'0' if first else acc}")
                if n2 < 64:
                    if fb == 0 and tt == 2:
                        a.wait(f"w{n2 >> 2}")
                    if fb == 0 and tt == 3:
                        a("s_barrier")
                    if 32 <= n2 < 36:
                        a(f"v_add_u32 {V(vA[n2&3][fb])}, 0x10000, {V(vA[n2&3][fb])}")
                    self.w_frag(n2, fb)
                self.gap(fill, 2 * s + fb, "b1")
                if tt == 0:
                    cc = A(aC + 8 * hf + 4 * fb, 4)
                    a(f"v_mfma_f32_16x16x32_bf16 {cc}, {A(aSEL,4)}, {fr}, {'0' if c == 0 else cc}")
                if hf == 0 and fb == 1:
                    mm = A(aM, 4)
                    a(f"v_mfma_f32_16x16x32_bf16 {mm}, {A(aSEL,4)}, {x}, {'0' if first else mm}")
                cnt.append(len(a.out) - n0)
            self.load.append(("b1", s, cnt))
            self.stamp(f"s{hf+1}.{s}")
            if tt == 3:
                self.stamp(f"p{hf+1}.c{c}")
            if s == 31:
                self.stamp("pass1")
        assert not fill, fill.keys()

    def c_publish(self, hf):
        return self.T(f"""
        v_accvgpr_read_b32 v27, {A(aC+8*hf)}
        v_accvgpr_read_b32 v28, {A(aC+8*hf+4)}
        s_lshl_b32 {sT0}, {sW}, 3
        s_add_u32 {sT0}, {sT0}, {CX + 2048*hf}
        v_cmp_gt_u32 vcc, 32, {V(vL)}
        +v_lshlrev_b32 v30, 5, {V(vL)}
        +v_add_u32 v30, {sT0}, v30
        +v_cndmask_b32 v27, v28, v27, vcc
        v_and_b32 v28, 0xffff0000, v27
        v_sub_f32 v27, v27, v28
        v_and_b32 v29, 0xffff0000, v27
        v_sub_f32 v27, v27, v29
        v_lshrrev_b32 v28, 16, v28
        v_or_b32 v28, v28, v29
        v_lshrrev_b32 v29, 16, v27
        ds_write_b64 v30, v[28:29]
        """, f"cx{hf}")

    def m_finish(self):
        return self.T(f"""
        v_accvgpr_read_b32 v36, {A(aM)}
        v_mul_f32 v36, 0xbb000000, v36
        v_cvt_pk_bf16_f32 v36, v36, v36
        v_accvgpr_write_b32 {A(aM)}, v36
        v_accvgpr_write_b32 {A(aM+1)}, v36
        v_accvgpr_write_b32 {A(aM+2)}, v36
        v_accvgpr_write_b32 {A(aM+3)}, v36
        """)

    def c_addr(self):
        return self.T(f"""
        v_and_b32 v37, 31, {V(vL)}
        v_lshrrev_b32 v36, 5, {V(vL)}
        v_lshlrev_b32 v37, 5, v37
        v_lshl_add_u32 v37, v36, 4, v37
        v_add_u32 v37, {CX}, v37
        """)

    def c_read(self, hf):
        return self.T(f"""
        ds_read_b128 v[28:31], v37 offset:{2048*hf}
        ds_read_b128 v[32:35], v37 offset:{2048*hf + 1024}
        """)

    def c_apply(self, hf, fb):
        acc = V(ACC + 32 * hf + 16 * fb, 16)
        return self.T(f"v_mfma_f32_32x32x16_bf16 {acc}, {V(28+4*fb,4)}, {A(aM,4)}, {acc}")

    def h_store(self, hf, q):
        r = ACC + 32 * hf + 8 * q
        t = "\n".join(f"v_cvt_pk_bf16_f32 {V(r+i)}, {V(r+2*i)}, {V(r+2*i+1)}" for i in range(4)) + "\n"
        t += "\n".join(f"v_pk_max_i16 {V(r+i)}, {V(r+i)}, 0" for i in range(4)) + "\n"
        t += f"s_add_u32 {sT0}, {sHO}, {(hf*56 + q*14)*1024}\n"
        t += f"+buffer_store_dwordx4 {V(r,4)}, {V(vL16)}, {SWS}, {sT0} offen{self.pol('hst', 'sc1')}"
        return self.T(t, f"hst{hf}")

    def h_flag(self, hf):
        if hf == 0:
            return self.join(self.W("hst0"), self.flag_store(sFH))
        return self.join(self.T(f"s_add_u32 {sT0}, {sFH}, 128"), self.W("hst1"), self.flag_store(sT0))

    def ld_w2(self):
        L = []
        for i in range(56):
            t = f"buffer_load_dwordx4 {A(4*i,4)}, {V(vL16)}, {SWS}, {sW2O} offen offset:{1024*(i&3)}{self.pol('w2t', 'sc1')}"
            if i % 4 == 3 and i < 55:
                t += f"\n+s_add_u32 {sW2O}, {sW2O}, 4096"
            L += self.T(t)
        return L

    def ld_hk(self):
        nt = self.pol("hk")
        return self.T("\n".join(f"buffer_load_dwordx4 {V(HK+4*i,4)}, {V(vL16)}, {SHK}, {sHK} offen offset:{1024*i}{nt}" for i in range(4)))

    def p_head(self):
        x = HK + 16
        return self.T(f"""
        s_lshr_b32 {sT0}, {sW}, 1
        s_lshl_b32 {sT0}, {sT0}, 4
        s_lshr_b32 {sT0}, {sD}, {sT0}
        s_lshl_b32 {sT0}, {sT0}, 16
        s_lshl_b32 {sT1}, {sH0}, 16
        v_mov_b32 {V(x)}, {sT0}
        v_add_f32 {V(x)}, {sT1}, {V(x)}
        v_cvt_pk_bf16_f32 {V(x)}, {V(x)}, {V(x)}
        s_mul_i32 {sT2}, {sW}, 8256
        v_mov_b32 {V(x+4)}, 0
        v_readfirstlane_b32 {sT0}, {V(x)}
        v_mov_b32 {V(x+5)}, 0
        v_mov_b32 {V(x+6)}, 0
        v_mov_b32 {V(x+7)}, 0
        s_and_b32 {sT0}, {sT0}, 0xffff
        s_and_b32 {sT1}, {sH0}, 0xffff0000
        s_or_b32 {sT0}, {sT0}, {sT1}            ; (h0 + D, h1)
        s_bitcmp1_b32 {sW}, 0
        +s_cselect_b32 {sCY}, {sT0}, {sH1}      ; dword 3 of chunk 1
        +s_cselect_b32 {sT0}, 0, {sT0}          ; dword 2 of chunk 1
        s_lshl_b32 {sT1}, {sT0}, 16
        s_lshl_b32 {sT3}, {sCY}, 16
        v_writelane_b32 {V(x+6)}, {sT0}, 1
        s_lshr_b32 {sT0}, {sT0}, 16
        v_writelane_b32 {V(x+7)}, {sCY}, 1
        s_or_b32 {sT3}, {sT3}, {sT0}
        v_writelane_b32 {V(x+6)}, {sT1}, 3
        v_writelane_b32 {V(x+7)}, {sT3}, 3
        v_and_b32 {V(x)}, 1, {V(vL)}
        v_lshrrev_b32 {V(x+1)}, 1, {V(vL)}
        v_mul_u32_u24 {V(x+1)}, 4128, {V(x+1)}
        v_lshl_add_u32 {V(x)}, {V(x)}, 4, {V(x+1)}
        v_add_u32 {V(x)}, {sT2}, {V(x)}
        v_add_u32 {V(x+2)}, {sT2}, {V(vL16)}
        v_lshlrev_b32 {V(x+1)}, 2, v0
        """)

    def p_head2(self):
        x = HK + 16
        return self.T(f"""
        s_mov_b64 exec, 15
        +ds_write_b128 {V(x)}, {V(x+4,4)} offset:{PB}
        +s_mov_b64 exec, -1
        ds_write_b32 {V(x+1)}, {V(x+4)} offset:{KV}
        """, "pw")

    def p_shift(self, i):
        r = HK + 4 * i
        x = HK + 16
        d = HK + 24 + 4 * (i & 1)
        return self.T(f"""
        v_mov_b32 {V(x+3)}, {sCY}
        v_readlane_b32 {sCY}, {V(r+3)}, 63
        v_alignbyte_b32 {V(d+1)}, {V(r+1)}, {V(r)}, 2
        v_mov_b32_dpp {V(x+3)}, {V(r+3)} wave_shr:1 row_mask:0xf bank_mask:0xf
        v_alignbyte_b32 {V(d+2)}, {V(r+2)}, {V(r+1)}, 2
        v_alignbyte_b32 {V(d+3)}, {V(r+3)}, {V(r+2)}, 2
        v_alignbyte_b32 {V(d)}, {V(r)}, {V(x+3)}, 2
        """)

    def p_write(self, i, ph):
        x = HK + 16
        src = HK + 24 + 4 * (i & 1) if ph else HK + 4 * i
        return self.T(f"ds_write_b128 {V(x+2)}, {V(src,4)} offset:{PB + 4128*ph + 32 + 1024*i}", "pw")

    def kv_poll_addr(self):
        return self.T(f"""
        v_min_u32 v27, 27, {V(vL)}
        v_lshlrev_b32 v27, 12, v27
        s_lshl2_add_u32 {sT0}, {sDT}, {sW}
        s_lshl_b32 {sT0}, {sT0}, 7
        v_add_u32 v27, {sT0}, v27
        v_and_b32 v28, 3, {V(vL)}
        v_bfe_u32 v29, {V(vL)}, 2, 1
        v_lshlrev_b32 v28, 15, v28
        v_lshl_add_u32 v28, v29, 9, v28
        s_lshr_b32 {sT0}, {sJ}, 2
        s_lshl_b32 {sT0}, {sT0}, 12
        s_and_b32 {sT1}, {sJ}, 3
        s_lshl_b32 {sT1}, {sT1}, 7
        s_add_u32 {sT0}, {sT0}, {sT1}
        s_lshl_b32 {sT1}, {sW}, 10
        s_add_u32 {sT0}, {sT0}, {sT1}
        v_cmp_gt_u32 vcc, 32, {V(vL)}
        +v_add_u32 v28, {sT0}, v28
        +s_mov_b32 {sPO}, {FL_KV}
        +v_cndmask_b32 {V(vPO)}, v28, v27, vcc
        """)

    def kv_fetch(self):
        return self.T(f"""
        s_lshr_b32 {sU0}, {sM0}, 1
        +s_add_u32 m0, {sU0}, {KV + 1024}
        +buffer_load_dwordx4 {V(vL16)}, {SWS}, {sKF} offen{self.pol('kv', 'sc1')} lds
        +buffer_load_dwordx4 {V(vL16)}, {SWS}, {sKF} offen offset:1024{self.pol('kv', 'sc1')} lds
        """, "kv")

    def conv_addr(self):
        t = f"""
        v_lshrrev_b32 v27, 4, {V(vL)}          ; G
        v_bfe_u32 v28, {V(vL)}, 2, 2           ; r
        v_and_b32 v29, 3, {V(vL)}              ; c
        v_lshl_add_u32 v29, v27, 2, v29
        v_sub_u32 v29, v29, v28
        s_mul_i32 {sT0}, {sW}, 8256
        s_add_u32 {sT0}, {sT0}, {PB + 24}
        v_lshlrev_b32 v29, 3, v29
        v_add_u32 {V(vCA)}, {sT0}, v29
        v_and_b32 v28, 15, {V(vL)}
        v_sub_u32 v28, v28, v27                ; a - G
        v_add_u32 v28, 16, v28
        v_lshrrev_b32 v27, 2, v28
        v_and_b32 v28, 3, v28
        v_lshlrev_b32 v28, 4, v28
        v_lshl_add_u32 v28, v27, 8, v28
        """
        for e in range(4):
            t += f"""
            v_add_u32 v29, {-e}, v27
            v_xor_b32 v29, {sW}, v29
            v_and_b32 v29, 3, v29
            v_lshl_add_u32 v29, v29, 6, v28
            v_add_u32 {V(vXR[e])}, {KV - 256*e}, v29
            """
        return self.T(t)

    def conv_reads(self, e):
        base = XR + 64 * (e & 1)
        L = []
        for n in range(8):
            L.append(f"ds_read_b128 {V(base+32+4*n,4)}, {V(vXR[e])} offset:{1024*n}")
            for ph in range(2):
                L.append(f"ds_read_b64_tr_b16 {V(base+4*n+2*ph,2)}, {V(vCA)} offset:{ph*4128 + 128*(4*n+e)}")
        return self.T("\n".join(L), f"cv{e}")

    def conv(self, fill):
        a = self.a
        k = 0
        for e in range(4):
            base = XR + 64 * (e & 1)
            if e < 3:
                self.place(fill, self.conv_reads(e + 1), 36 * e + 2, 0.75)
                prs = sorted([(n, d) for n in range(8) for d in range(8) if n + d < 8], key=lambda p: (max(p), p[0] + p[1]))
            else:
                prs = sorted([(n, d) for n in range(8) for d in range(8) if n + d < 8], key=lambda p: (-(p[0] + p[1]), max(p)))
            seen = set()
            cnt = []
            for i, (n, d) in enumerate(prs):
                n0 = len(a.out)
                acc = A(aY + 4 * (n + d), 4)
                first = (e == 0 and (n + d) not in seen)
                seen.add(n + d)
                a(f"v_mfma_f32_16x16x32_bf16 {acc}, {V(base+4*n,4)}, {V(base+32+4*d,4)}, {'0' if first else acc}")
                self.gap(fill, k, "cv")
                cnt.append(len(a.out) - n0)
                if k % 4 == 3:
                    self.stamp(f"cg.{k}")
                k += 1
            self.load.append(("cv", e, cnt))
            self.stamp(f"cv.e{e}")
        assert not fill, fill.keys()

    def y_addr(self):
        return self.T(f"""
        v_lshrrev_b32 v27, 4, {V(vL)}
        v_and_b32 v28, 15, {V(vL)}
        v_mul_u32_u24 v27, 20, v27
        v_add_lshl_u32 v27, v27, v28, 4
        s_mul_i32 {sT0}, {sW}, 10240
        s_add_u32 {sT0}, {sT0}, {EX}
        v_add_u32 v12, {sT0}, v27
        v_and_b32 v28, 3, {V(vL)}
        v_lshrrev_b32 v29, 2, {V(vL)}
        v_mul_u32_u24 v28, 20, v28
        v_add_lshl_u32 v28, v28, v29, 4
        s_mul_i32 {sT0}, {sW}, 2560
        s_add_u32 {sT0}, {sT0}, {EX}
        v_add_u32 v13, {sT0}, v28
        """)

    def y_write(self, t):
        return self.T(f"ds_write_b128 v12, {A(aY+4*t,4)} offset:{1280*t}", "ex")

    YT = 160
    def y_gather(self):
        R = self.YT
        L = self.join(self.W("ex"), self.T("s_barrier"))
        L += self.T("\n".join(f"ds_read_b128 {V(R+16*t+4*src,4)}, v13 offset:{10240*src + 1280*t}" for t in range(2) for src in range(4)))
        return L

    def y_sum(self, t):
        b = self.YT + 16 * t
        x = ""
        for i in range(4):
            x += f"v_add_f32 {V(b+i)}, {V(b+i)}, {V(b+4+i)}\n"
        for i in range(4):
            x += f"v_add_f32 {V(b+8+i)}, {V(b+8+i)}, {V(b+12+i)}\n"
        for i in range(4):
            x += f"v_cvt_pk_bf16_f32 {V(b+4+i)}, {V(b+i)}, {V(b+8+i)}\n"
        x += f"s_add_u32 {sT0}, {sKF}, {YWS}\n"
        x += f"+buffer_store_dwordx4 {V(b+4,4)}, {V(vL16)}, {SWS}, {sT0} offen offset:{1024*t}{self.pol('yst', 'sc1')}"
        return self.T(x, "yst")

    def y_flag(self):
        return self.join(self.T(f"s_add_u32 {sT0}, {sFK}, {FL_Y - FL_KV}"), self.W("yst"), self.flag_store(sT0))

    def h_poll_addr(self):
        return self.T(f"""
        v_and_b32 v27, 1, {V(vL)}
        v_lshrrev_b32 v28, 1, {V(vL)}
        v_min_u32 v28, 13, v28
        v_mul_u32_u24 v27, 14, v27
        v_add_lshl_u32 {V(vPO)}, v27, v28, 8
        s_mul_i32 {sPO}, {sST}, {28*256}
        s_add_u32 {sPO}, {sPO}, {FL_H}
        s_mul_i32 {sHL}, {sST}, 224
        s_mul_i32 {sT0}, {sW}, 14
        s_add_u32 {sHL}, {sHL}, {sT0}
        s_lshl_b32 {sHL}, {sHL}, 10
        s_add_u32 {sHL}, {sHL}, {HWS}
        v_add_u32 {V(vH2)}, {112*1024}, {V(vL16)}
        """)

    def ld_h(self, order):
        L = []
        cur = None
        for k, sb in order:
            hf, T = divmod(k, 14)
            t = f"buffer_load_dwordx4 {V(hslot(k,sb),4)}, {V(vH2 if sb else vL16)}, {SWS}, {sHL2} offen offset:{1024*(T%4)}{self.pol('h', 'sc1')}"
            if cur != (hf, T // 4):
                cur = (hf, T // 4)
                t = f"s_add_u32 {sHL2}, {sHL}, {(hf*56 + T//4*4)*1024}\n+" + t
            L += self.T(t)
        return L

    def b2(self, order, fill):
        a = self.a
        seen = set()
        cnt = []
        for g, (k, q) in enumerate(order):
            n0 = len(a.out)
            sb, nb = q >> 1, q & 1
            acc = V(ACC2 + 16 * q, 16)
            a(f"v_mfma_f32_32x32x16_bf16 {acc}, {A(8*k+4*nb,4)}, {V(hslot(k,sb),4)}, {acc if q in seen else '0'}")
            seen.add(q)
            self.gap(fill, g, "b2")
            cnt.append(len(a.out) - n0)
            if g % 16 == 15:
                self.load.append(("b2", g, cnt))
                cnt = []
            if g % 2 == 1:
                self.stamp(f"bg.{g}")
            if g % 12 == 11:
                self.stamp(f"b2.g{g}")
        assert not fill, fill.keys()

    EXR, ESR, EYR = 112, 120, 160
    XF, TF, RR = 128, 144, 160

    def y_poll_addr(self):
        return self.T(f"""
        v_and_b32 {V(vPO)}, 31, {V(vL)}
        v_lshlrev_b32 {V(vPO)}, 9, {V(vPO)}
        s_lshl_b32 {sPO}, {sDT}, 14
        s_lshr_b32 {sT3}, {sST}, 3
        s_lshl_b32 {sT3}, {sT3}, 7
        s_add_u32 {sPO}, {sPO}, {sT3}
        s_add_u32 {sPO}, {sPO}, {FL_Y}
        """)

    def ep_loads(self):
        return self.T(f"""
        v_lshrrev_b32 v18, 3, {V(vL)}
        v_lshlrev_b32 v18, 4, v18
        s_lshl_b32 {sT0}, {sST}, 10
        s_lshl_b32 {sT1}, {sW}, 8
        s_add_u32 {sT0}, {sT0}, {sT1}
        s_add_u32 {sST2}, {sT0}, {STAT}
        s_add_u32 {sU1}, {sEO}, 8192
        buffer_load_dwordx4 {V(self.ESR,4)}, v18, {SWS}, {sST2} offen sc1
        buffer_load_dwordx4 {V(self.ESR+4,4)}, v18, {SWS}, {sST2} offen offset:128 sc1
        buffer_load_dwordx4 {V(self.EXR,4)}, {V(vXO)}, {SX}, {sEO} offen{self.pol('xe')}
        buffer_load_dwordx4 {V(self.EXR+4,4)}, {V(vXO)}, {SX}, {sU1} offen{self.pol('xe')}
        """)

    def y_fetch_addr(self):
        return self.T(f"""
        v_lshrrev_b32 v27, 3, {V(vL)}
        v_and_b32 v28, 7, {V(vL)}
        v_lshrrev_b32 v29, 4, {V(vL)}
        v_xor_b32 v29, v28, v29                ; idx
        v_lshrrev_b32 v30, 2, v29
        v_lshl_add_u32 v30, v27, 1, v30
        v_and_b32 v29, 3, v29
        v_lshlrev_b32 v29, 4, v29
        v_lshl_add_u32 v34, v30, 13, v29
        v_xor_b32 v35, 0x2000, v34
        v_add_u32 v35, {16*8192 - 1024}, v35
        s_lshl_b32 {sT0}, {sDT}, 18
        s_lshl_b32 {sT1}, {sST}, 8
        s_lshl_b32 {sT2}, {sW}, 6
        s_add_u32 {sT0}, {sT0}, {sT1}
        s_add_u32 {sT0}, {sT0}, {sT2}
        s_add_u32 {sU2}, {sT0}, {YWS}
        s_lshr_b32 {sU0}, {sM0}, 1
        s_add_u32 {sU0}, {sU0}, {YB}
        s_mov_b32 m0, {sU0}
        v_lshrrev_b32 v27, 5, {V(vL)}
        v_xor_b32 v27, v27, v28
        v_lshlrev_b32 v27, 4, v27
        v_lshl_add_u32 v27, v28, 8, v27
        v_bfe_u32 v28, {V(vL)}, 3, 2
        v_lshl_add_u32 v27, v28, 2, v27
        v_add_u32 v27, {sU0}, v27
        v_xor_b32 v28, 64, v27
        v_xor_b32 v29, 32, v27
        v_xor_b32 v30, 0x60, v27
        """)

    def y_fetch(self):
        return self.T(f"""
        buffer_load_dwordx4 v34, {SWS}, {sU2} offen{self.pol('y', 'sc1')} lds
        buffer_load_dwordx4 v35, {SWS}, {sU2} offen offset:1024{self.pol('y', 'sc1')} lds
        """, "y")

    def y_read(self):
        L = self.T("\n".join(f"ds_read_b32 {V(self.EYR+4*st+e)}, {V(27 + 2*st + (e & 1))} offset:{128*(e >> 1)}" for st in range(2) for e in range(4)))
        L[0] = self.join(self.W("y"), [L[0]])[0]
        return L

    def stat_check(self):
        def f():
            a = self.a
            S = self.ESR
            a(f"v_cmp_ne_u64 vcc, {sTAG}, {V(S+2,2)}")
            a(f"v_cmp_ne_u64 s[60:61], {sTAG}, {V(S+6,2)}")
            a("s_or_b64 vcc, vcc, s[60:61]")
            a("s_cbranch_vccnz L_slow_st")
            a.label("L_back_st")
            self.slow.append(f"""L_slow_st:
    s_mov_b32 {sCNT}, 0
L_spin_st:
    buffer_load_dwordx4 {V(S,4)}, v18, {SWS}, {sST2} offen sc1
    buffer_load_dwordx4 {V(S+4,4)}, v18, {SWS}, {sST2} offen offset:128 sc1
    s_add_u32 {sCNT}, {sCNT}, 1
    s_cmp_gt_u32 {sCNT}, 20000
    s_waitcnt vmcnt(0)
    s_cbranch_scc1 L_back_st
    v_cmp_ne_u64 vcc, {sTAG}, {V(S+2,2)}
    v_cmp_ne_u64 s[60:61], {sTAG}, {V(S+6,2)}
    s_or_b64 vcc, vcc, s[60:61]
    s_cbranch_vccnz L_spin_st
    s_branch L_back_st
""")
        return [f]

    def ep_pre(self, st, e):
        x, y = self.EXR + 4 * st + e, self.EYR + 4 * st + e
        xf, tf = self.XF + 8 * st + 2 * e, self.TF + 8 * st + 2 * e
        m = V(self.ESR + 4 * st)
        return self.T(f"""
        v_lshlrev_b32 {V(xf)}, 16, {V(x)}
        v_and_b32 {V(xf+1)}, 0xffff0000, {V(x)}
        v_lshlrev_b32 v32, 16, {V(y)}
        v_and_b32 v33, 0xffff0000, {V(y)}
        v_sub_f32 {V(tf)}, {V(xf)}, {m}
        v_sub_f32 {V(tf+1)}, {V(xf+1)}, {m}
        v_mul_f32 {V(tf)}, {V(tf)}, v32
        v_mul_f32 {V(tf+1)}, {V(tf+1)}, v33
        """)

    def ep_addr(self):
        return self.T(f"""
        v_and_b32 v36, 31, {V(vL)}
        v_mul_u32_u24 v36, 272, v36
        v_lshrrev_b32 v37, 5, {V(vL)}
        v_lshl_add_u32 v36, v37, 4, v36
        s_mul_i32 {sT0}, {sW}, 17408
        v_add_u32 v15, {sT0}, v36
        v_lshrrev_b32 v36, 3, {V(vL)}
        v_mul_u32_u24 v36, 272, v36
        v_and_b32 v37, 7, {V(vL)}
        v_lshl_add_u32 v36, v37, 5, v36
        s_mul_i32 {sT0}, {sW}, {8*272}
        v_add_u32 v16, {sT0}, v36
        """)

    def red_write(self, q):
        sb, nb = q >> 1, q & 1
        return self.T("\n".join(f"ds_write_b128 v15, {V(ACC2+16*q+4*g,4)} offset:{RED + sb*8704 + nb*128 + g*32}" for g in range(4)), f"red{sb}")

    def red_read(self, st):
        L = self.join(self.W(f"red{st}"), self.T("s_barrier"))
        L += self.T("\n".join(f"ds_read_b128 {V(self.RR+8*src+4*hh,4)}, v16 offset:{RED + src*17408 + st*8704 + hh*16}" for src in range(4) for hh in range(2)))
        return L

    def finish(self, st, packed):
        tf, xf, R = self.TF + 8 * st, self.XF + 8 * st, self.RR
        t = ""
        for src in range(4):
            if packed:
                for p in range(4):
                    t += f"v_pk_add_f32 {V(tf+2*p,2)}, {V(tf+2*p,2)}, {V(R+8*src+2*p,2)}\n"
            else:
                for p in range(8):
                    t += f"v_add_f32 {V(tf+p)}, {V(tf+p)}, {V(R+8*src+p)}\n"
        if packed:
            rr = V(self.ESR + 4 * st, 2)
            for p in range(4):
                t += f"v_pk_fma_f32 {V(tf+2*p,2)}, {V(tf+2*p,2)}, {rr}, {V(xf+2*p,2)} op_sel:[0,1,0] op_sel_hi:[1,1,1]\n"
        else:
            for p in range(8):
                t += f"v_fma_f32 {V(tf+p)}, {V(tf+p)}, {V(self.ESR+4*st+1)}, {V(xf+p)}\n"
        for p in range(4):
            t += f"v_cvt_pk_bf16_f32 {V(xf+p)}, {V(tf+2*p)}, {V(tf+2*p+1)}\n"
        t += f"buffer_store_dwordx4 {V(xf,4)}, {V(vXO)}, {SO}, {sU1 if st else sEO} offen{self.pol('out')}"
        return self.T(t)

    def stats_loads(self):
        a = self.a
        a(f"""
        s_mov_b32 s6, 0x200000
        s_and_b32 {sT1}, {sJ}, 3
        s_lshl2_add_u32 {sT1}, {sXCD}, {sT1}
        s_lshl2_add_u32 {sT1}, {sT1}, {sW}
        s_lshl_b32 {sXO[0]}, {sT1}, 14
        s_add_u32 {sXO[1]}, {sXO[0]}, 8192
        s_mov_b32 {sFH}, {WS_SIZE}
        """)
        for c in range(8):
            for i in range(2):
                a(f"buffer_load_dwordx4 {V(XR+16*c+4*i,4)}, {V(vXO)}, {SX}, {sXO[i]} offen offset:{128*c}{self.pol('xs')}")

    def stats(self):
        a = self.a
        a("v_mov_b32 v27, 0x3f803f80")
        def red8(r):
            a(f"v_add_f32_dpp {V(r)}, {V(r)}, {V(r)} quad_perm:[1,0,3,2] row_mask:0xf bank_mask:0xf")
            a(f"v_add_f32_dpp {V(r)}, {V(r)}, {V(r)} quad_perm:[2,3,0,1] row_mask:0xf bank_mask:0xf")
            a(f"v_add_f32_dpp {V(r)}, {V(r)}, {V(r)} row_half_mirror row_mask:0xf bank_mask:0xf")
        for i in range(2):
            a(f"v_mov_b32 {V(64+8*i)}, 0")
            a(f"v_mov_b32 {V(65+8*i)}, 0")
        for c in range(8):
            for j in range(4):
                for i in range(2):
                    a(f"v_dot2c_f32_bf16 {V(64+8*i+(j&1))}, {V(XR+16*c+4*i+j)}, v27")
        for i in range(2):
            a(f"v_add_f32 {V(64+8*i)}, {V(64+8*i)}, {V(65+8*i)}")
        for i in range(2):
            red8(64 + 8 * i)
        for i in range(2):
            a(f"v_mul_f32 {V(64+8*i)}, 0x3b000000, {V(64+8*i)}")
            a(f"v_mov_b32 {V(66+8*i)}, 0")
            a(f"v_mov_b32 {V(67+8*i)}, 0")
        for c in range(8):
            for j in range(4):
                for i in range(2):
                    x = V(XR + 16 * c + 4 * i + j)
                    t = 68 + 8 * i
                    a(f"v_lshlrev_b32 {V(t)}, 16, {x}")
                    a(f"v_and_b32 {V(t+1)}, 0xffff0000, {x}")
                    a(f"v_pk_add_f32 {V(t,2)}, {V(t,2)}, {V(64+8*i,2)} op_sel:[0,0] op_sel_hi:[1,0] neg_lo:[0,1] neg_hi:[0,1]")
                    a(f"v_pk_fma_f32 {V(66+8*i,2)}, {V(t,2)}, {V(t,2)}, {V(66+8*i,2)}")
        for i in range(2):
            a(f"v_add_f32 {V(66+8*i)}, {V(66+8*i)}, {V(67+8*i)}")
        for i in range(2):
            red8(66 + 8 * i)
        a(f"""
        v_lshrrev_b32 v28, 3, {V(vL)}
        v_lshlrev_b32 v28, 4, v28
        s_lshr_b32 {sT0}, {sXO[0]}, 6
        s_add_u32 {sT0}, {sT0}, {STAT}
        """)
        for i in range(2):
            m, v = 64 + 8 * i, 66 + 8 * i
            a(f"""
            v_mul_f32 {V(v)}, 0x3b000000, {V(v)}
            v_cvt_pk_bf16_f32 {V(v)}, {V(v)}, {V(m)}
            v_and_b32 {V(m)}, 0xffff0000, {V(v)}
            v_lshlrev_b32 {V(v)}, 16, {V(v)}
            v_add_f32 {V(v)}, 0x3727c5ac, {V(v)}
            v_cvt_pk_bf16_f32 {V(v)}, {V(v)}, {V(v)}
            v_lshlrev_b32 {V(v)}, 16, {V(v)}
            v_sqrt_f32 {V(v)}, {V(v)}
            v_cvt_pk_bf16_f32 {V(v)}, {V(v)}, {V(v)}
            v_lshlrev_b32 {V(v)}, 16, {V(v)}
            v_rcp_f32 {V(m+1)}, {V(v)}
            v_mov_b32 {V(m+2)}, {V(vTAG)}
            v_mov_b32 {V(m+3)}, {V(vTAG+1)}
            """)
        a("s_mov_b32 exec_lo, 0x01010101")
        a("s_mov_b32 exec_hi, 0x01010101")
        for i in range(2):
            a(f"buffer_store_dwordx4 {V(64+8*i,4)}, v28, {SWS}, {sT0} offen offset:{128*i} sc1")
        a("s_mov_b64 exec, -1")

    def gen_update(self):
        a = self.a
        a(f"s_cmp_lg_u32 s2, {28*8}")
        a("s_cbranch_scc1 L_nogen")
        a.wait_all()
        a.raw(f"""    v_lshlrev_b32 v28, 7, v0
    s_mov_b32 {sT1}, {FL_KV}
L_gen_next:
    s_mov_b32 {sCNT}, 0
L_gen_spin:
    buffer_load_dwordx2 v[30:31], v28, {SWS}, {sT1} offen sc1
    s_add_u32 {sCNT}, {sCNT}, 1
    s_cmp_gt_u32 {sCNT}, 20000
    s_waitcnt vmcnt(0)
    s_cbranch_scc1 L_gen_got
    v_cmp_ne_u64 vcc, {sTAG}, v[30:31]
    s_cbranch_vccnz L_gen_spin
L_gen_got:
    s_add_u32 {sT1}, {sT1}, 0x8000
    s_cmp_lt_u32 {sT1}, {FL_KV + 0x20000}
    s_cbranch_scc1 L_gen_next
    s_barrier
    s_cmp_lg_u32 {sW}, 0
    s_cbranch_scc1 L_nogen
    s_mov_b32 {sT1}, {GEN}
    s_mov_b64 exec, 1
    buffer_store_dwordx2 {V(vTAG,2)}, off, {SWS}, {sT1} sc1
    s_mov_b64 exec, -1
    s_waitcnt vmcnt(0)
L_nogen:""")

    def build(self):
        a, o, place, run = self.a, self.o, self.place, self.run
        rest = self.prologue()
        rest += self.addr_b1() + self.addr_a1()
        pre = self.ld_x(0) + self.ld_w1(0) + self.ld_x(1) + self.ld_w1(1) + self.ld_x(2)
        step = len(rest) / len(pre)
        k = 0
        for i, f in enumerate(pre):
            f()
            while k < len(rest) and k < (i + 1) * step:
                rest[k]()
                k += 1
        run(rest[k:])
        self.stamp("pro.issued")
        self.a1(self.ld_w1(2) + self.ld_x(3) + self.ld_w1(3) + self.ld_hk() + self.join(self.rd_x(0)) + self.ld_w1(4) + self.ld_x(4) + self.join(self.rd_x(1)))
        self.stamp("a1done")
        self.stamp("pro.a1done")
        a(f"s_cmp_ge_u32 {sJ}, 28")
        a("s_cbranch_scc1 L_spare")
        st_spare = a.state()
        a.wait("w0")
        a("s_barrier")
        for s in range(2):
            for fb in range(2):
                self.w_frag(s, fb)
        self.stamp("p1.start")
        fill = {}
        st = self.ld_x(5) + self.ld_w1(5) + self.ld_x(6) + self.ld_w1(6) + self.ld_x(7) + self.ld_w1(7)
        for n in range(8, 16):
            st += self.ld_w1(n)
        r1 = o.get("r1", 0.62)
        place(fill, self.rd_x(2), 1)
        place(fill, self.rd_x(3), 9)
        place(fill, self.rd_x(4), 17)
        place(fill, self.rd_x(5), 25)
        place(fill, self.rd_x(6), 33)
        place(fill, self.rd_x(7), 41)
        g = place(fill, st, 0, r1)
        place(fill, self.kv_flag(), 26)
        place(fill, self.p_head(), 5, 2)
        place(fill, self.kv_poll_addr(), 28, 2)
        place(fill, self.p_shift(0) + self.p_shift(1), 38, 2)
        pw = self.p_head2() + self.p_write(0, 0) + self.p_write(0, 1) + self.p_write(1, 1)
        place(fill, pw, 46, 1)
        place(fill, self.p_shift(2) + self.p_shift(3), 51, 2)
        place(fill, self.p_write(1, 0) + self.p_write(2, 0) + self.p_write(3, 0), 52, 0.5)
        place(fill, self.p_write(2, 1) + self.p_write(3, 1), 59, 0.5)
        gp = o.get("gp", 56)
        place(fill, self.poll_issue(), gp)
        place(fill, self.c_publish(0), 62, 2)
        place(fill, self.m_finish() + self.c_addr(), 66, 3)
        place(fill, self.W("cx0"), 69)
        place(fill, self.c_read(0), 71, 2)
        place(fill, self.c_apply(0, 0) + self.c_apply(0, 1), 74)
        hs = []
        for q in range(4):
            hs += self.h_store(0, q)
        place(fill, hs, 77, 3)
        gk = o.get("gk", 66)
        place(fill, self.join(self.poll_check("kv"), self.kv_fetch()), gk)
        w2 = self.ld_w2()
        n2 = o.get("n2", 27)
        place(fill, w2[:n2], gk + 1, n2 / (127 - gk))
        place(fill, self.conv_addr(), 90, 3)
        place(fill, self.W("kv", "pw"), 101)
        place(fill, self.h_flag(0), o.get("gh0", 104))
        place(fill, self.conv_reads(0), 103, 1.5)
        place(fill, self.c_publish(1), 122, 4)
        place(fill, self.join(self.W("cx1"), self.T("s_barrier"), self.c_read(1)), 126)
        self.b1(fill)
        self.stamp("pass2")
        a.phase = ""
        run(self.c_apply(1, 0) + self.c_apply(1, 1))
        a("s_branch L_conv")
        st_join = a.state()
        a.restore(st_spare)
        a.label("L_spare")
        self.stats_loads()
        run(self.kv_flag())
        a("s_barrier")
        run(self.p_head() + self.p_head2())
        for i in range(4):
            run(self.p_shift(i) + self.p_write(i, 0) + self.p_write(i, 1))
        run(self.kv_poll_addr() + self.poll_issue())
        self.stats()
        run(self.poll_check("kv2") + self.kv_fetch())
        run(self.ld_w2()[:n2])
        run(self.conv_addr())
        a(f"s_mov_b32 {sHO}, {WS_SIZE}")
        self.gen_update()
        a.wait_all()
        a("s_barrier")
        run(self.conv_reads(0))
        a.wait_all()
        a.restore(st_join)
        a.label("L_conv")
        self.stamp("convstart")
        self.stamp("cv.start")
        fill = {}
        hs = []
        for q in range(4):
            hs += self.h_store(1, q)
        place(fill, hs, 3, 1)
        gw = place(fill, w2[n2:], 0, o.get("r3", 0.27))
        place(fill, self.h_poll_addr() + self.y_addr(), 40, 1)
        place(fill, self.h_flag(1), o.get("gh1", 76))
        place(fill, self.poll_issue(0), gw - 12)
        horder = [(k, sb) for k in range(20) for sb in range(2)] + [(k, sb) for sb in range(2) for k in range(20, 28)]
        hl = self.ld_h(horder)
        nh = o.get("nh", 9)
        place(fill, self.poll_check("h0", 0), gw + 2)
        place(fill, hl[:nh], gw + 3, nh / (143 - gw - 3))
        g = 108
        for t in range(7, 1, -1):
            g += t + 1
            place(fill, self.y_write(t), g + 1)
        a.phase = "cv"
        self.conv(fill)
        a.phase = "b2"
        self.stamp("convend")
        order = [(k, q) for k in range(20) for q in range(4)]
        order += [(k, q) for k in range(20, 28) for q in range(2)]
        order += [(k, 2) for k in range(20, 28)] + [(k, 3) for k in range(20, 28)]
        fill = {}
        place(fill, self.y_write(1) + self.y_write(0), 0, 2)
        place(fill, self.y_gather(), 2, 2)
        place(fill, self.y_sum(0) + self.y_sum(1), 7, 4)
        r4 = o.get("r4", 0.55)
        g1 = place(fill, hl[nh:28], 0, r4)
        place(fill, self.poll_issue(128), g1 - 10)
        place(fill, self.poll_check("h1", 128), g1 + 1)
        g2 = place(fill, hl[28:], g1 + 2, r4)
        self.h_sched = (g1, g2)
        place(fill, self.y_flag(), o.get("gy", 26))
        place(fill, self.ep_addr(), 16, 2)
        place(fill, self.y_fetch_addr(), 28, 2)
        place(fill, self.y_poll_addr(), g1 + 3, 2)
        place(fill, self.ep_loads(), 46, 2)
        place(fill, self.poll_issue(0), 52)
        place(fill, self.join(self.poll_check("y", 0), self.y_fetch()), 60)
        place(fill, self.stat_check(), 66)
        place(fill, self.y_read(), 72, 4)
        ep = []
        for st_ in range(2):
            for e in range(4):
                ep += self.ep_pre(st_, e)
        place(fill, ep, 76, 4)
        place(fill, self.red_write(0) + self.red_write(1), 97, 1)
        place(fill, self.red_read(0), 105, 4)
        place(fill, self.red_write(2), 106, 1)
        f0 = self.finish(0, False)
        place(fill, f0[:20], 108, 5)
        self.b2(order, fill)
        self.stamp("b2end")
        run(f0[20:32])
        run(self.red_write(3))
        run(f0[32:])
        run(self.red_read(1))
        self.stamp("redbar")
        run(self.finish(1, True))
        if o["diag"]:
            a.wait_all()
            self.stamp("end")
            a.wait_all()
            for i in range(max(0, self.nst - 6), self.nst):
                a(f"v_writelane_b32 v39, s{sSTAMP + 2*(i % 8)}, {i}")
            a(f"""
            s_lshl2_add_u32 {sT0}, s2, {sW}
            s_lshl_b32 {sT0}, {sT0}, 8
            s_add_u32 {sT0}, {sT0}, {STAMP}
            v_lshlrev_b32 v27, 2, {V(vL)}
            buffer_store_dword v39, v27, {SWS}, {sT0} offen
            """)
        a.label("L_end")
        a("s_endpgm")
        for s in self.slow:
            a.raw(s)
        a.label("L_codeend")
        return self.wrap(a.text())

    def wrap(self, body):
        return f"""; Fused kernel: out = x + LN(x) * (longconv(shiftconv(k) * v) + D * kv) + relu(LN(x) @ w1) @ w2
; One persistent launch, one workgroup per CU; phases hand data over through d_ws with tagged flags.
; @launch grid=(256,1,1) block=(256,1,1) lds={LDS_SIZE}
.amdgcn_target "amdgcn-amd-amdhsa--gfx950"
.text
.globl {KN}
.p2align 8
.type {KN},@function
{KN}:
{body}
.section .rodata,"a"
.p2align 6
.amdhsa_kernel {KN}
  .amdhsa_next_free_vgpr 512
  .amdhsa_next_free_sgpr 102
  .amdhsa_accum_offset 256
  .amdhsa_group_segment_fixed_size 0
  .amdhsa_kernarg_size 96
  .amdhsa_user_sgpr_count 2
  .amdhsa_user_sgpr_kernarg_segment_ptr 1
  .amdhsa_system_sgpr_workgroup_id_x 1
  .amdhsa_float_denorm_mode_32 3
.end_amdhsa_kernel
"""


if __name__ == "__main__":
    opts = {}
    out = None
    for arg in sys.argv[1:]:
        if "=" in arg:
            k, v = arg.split("=", 1)
            opts[k] = eval(v)
        else:
            out = arg
    g = Gen(**opts)
    txt = g.build()
    if out:
        open(out, "w").write(txt)
        if g.names:
            open(out + ".names", "w").write(" ".join(g.names))
    if opts.get("show"):
        for l in g.load:
            print(l)
    print("nops inserted:", g.a.nops, "lines:", txt.count("\n"), "h sched", g.h_sched, file=sys.stderr)
```

```python
import sys, os
sys.path.insert(0, os.path.dirname(os.path.abspath(__file__)))
from emit import Asm

KN = "parallel_sum__ssm_conv_h3__dense_activation_relu__prompt_kernel"

KVT = 0x000000
YWS = 0x200000
HWS = 0x400000
FL_KV = 0xC00000
FL_Y = 0xC20000
FL_H = 0xC40000
STAT = 0xC80000
GEN = 0xC90000
STAMP = 0xD00000
W2T = 0xE00000
WS_SIZE = 0x2000000

R1 = 65536
W2R = 49152
KT = 131072
VT = KT + 9216
CX = 148480
YB = 152576
PB = 0
KV = 33280
EX = 90112
RED = 0
LDS_SIZE = 163840

SX, SK, SV, SSH, SHK, SW1, SW2, SO, SWS = [f"s[{4*i}:{4*i+3}]" for i in range(1, 10)]
sTAG = "s[42:43]"
sB = "s2"
sW, sXCD, sJ = "s44", "s45", "s46"
sST, sDT = "s47", "s48"
sXO = ["s49", "s50", "s51", "s52"]
sW1O, sM0 = "s53", "s54"
sHO = "s55"
sD, sCY, sH0, sH1 = "s56", "s57", "s58", "s59"
sT0, sT1, sT2, sT3 = "s60", "s61", "s62", "s63"
sW2O = "s64"
sFK = "s65"
sFH = "s66"
sCNT = "s67"
sHL = "s68"
sKF = "s69"
sEO = "s70"
sPO, sHL2 = "s40", "s41"
sU0, sU1, sU2 = "s71", "s3", "s72"
sHK, sST2 = "s73", "s74"
sSTAMP = 76


def V(i, n=1):
    return f"v{i}" if n == 1 else f"v[{i}:{i+n-1}]"


def A(i, n=1):
    return f"a{i}" if n == 1 else f"a[{i}:{i+n-1}]"


vL, vL16, vXO, vW0, vW1 = 1, 2, 3, 4, 5
vXA = [6, 7]
vXR = [8, 9, 10, 11]
vA = [[12, 13], [14, 15], [16, 17], [18, 19]]
vCA, vH2 = 20, 21
vTAG = 22
vP = 24
vPO = 26
RING = 40
ACC = 64
XR = 128
HK = 96
aSEL, aM, aC = 224, 228, 232
aY = 224
ACC2 = 192


def hslot(k, sb):
    return 40 + 8 * (k % 19) + 4 * sb


class Gen:
    def __init__(self, **o):
        self.o = dict(diag=False, codepf=True, nt="k v w2r hk")
        self.o.update(o)
        self.a = Asm()
        self.a.drop = self.o.get("drop", [])
        self.slow = []
        self.nst = 0
        self.names = []
        self.load = []

    def pol(self, name, base=""):
        p = self.o.get("pol_" + name)
        if p is None:
            p = base + (" nt" if name in self.o["nt"].split() else "")
        p = p.strip()
        return " " + p if p else ""

    def stamp(self, name):
        if not self.o["diag"]:
            return
        grp = name.split(".")[0] if "." in name else "main"
        if name not in ("start", "end") and grp not in self.o["diag"]:
            return
        i = self.nst
        assert i < 64, name
        r = sSTAMP + 2 * (i % 8)
        if i >= 6:
            self.a.raw(f"    v_writelane_b32 v39, s{sSTAMP + 2*((i-6) % 8)}, {i-6}")
        self.a.raw(f"    {'s_memtime' if self.o.get('clk') else 's_memrealtime'} s[{r}:{r+1}]")
        self.names.append(name)
        self.nst += 1

    def T(self, text, tag=None):
        groups = []
        for line in text.strip().split("\n"):
            line = line.strip()
            if not line or line.startswith(";"):
                continue
            if line.startswith("+"):
                groups[-1].append(line[1:].strip())
            else:
                groups.append([line])
        return [(lambda g=g: [self.a(x, tag) for x in g]) for g in groups]

    def W(self, *tags):
        return [lambda: self.a.wait(*tags)]

    @staticmethod
    def join(*lists):
        fs = [f for l in lists for f in l]
        return [lambda: [f() for f in fs]]

    @staticmethod
    def run(items):
        for f in items:
            f()

    @staticmethod
    def place(fill, items, g0, per=1.0):
        g = g0
        for i, f in enumerate(items):
            g = g0 + int(i / per)
            fill.setdefault(g, []).append(f)
        return g

    def gap(self, fill, g, phase):
        n0 = len(self.a.out)
        for f in fill.pop(g, []):
            f()
        return len(self.a.out) - n0

    def flag_store(self, soff):
        return self.T(f"""
        s_mov_b64 exec, 1
        +buffer_store_dwordx2 {V(vTAG,2)}, off, {SWS}, {soff} sc1
        +s_mov_b64 exec, -1""")

    def poll_issue(self, imm=0):
        return self.T(f"buffer_load_dwordx2 {V(vP,2)}, {V(vPO)}, {SWS}, {sPO} offen offset:{imm} sc1")

    def poll_check(self, name, imm=0):
        def f():
            a = self.a
            a(f"v_cmp_ne_u64 vcc, {sTAG}, {V(vP,2)}")
            a(f"s_cbranch_vccnz L_slow_{name}")
            a.label(f"L_back_{name}")
            self.slow.append(f"""L_slow_{name}:
    s_mov_b32 {sCNT}, 0
L_spin_{name}:
    buffer_load_dwordx2 {V(vP,2)}, {V(vPO)}, {SWS}, {sPO} offen offset:{imm} sc1
    s_add_u32 {sCNT}, {sCNT}, 1
    s_cmp_gt_u32 {sCNT}, 20000
    s_waitcnt vmcnt(0)
    s_cbranch_scc1 L_back_{name}
    v_cmp_ne_u64 vcc, {sTAG}, {V(vP,2)}
    s_cbranch_vccnz L_spin_{name}
    s_branch L_back_{name}
""")
        return [f]

    def prologue(self):
        a = self.a
        a(f"""
        s_cmp_ge_u32 s2, 0x100
        s_cbranch_scc1 L_end
        s_load_dwordx2 s[8:9], s[0:1], 8
        s_load_dwordx2 s[12:13], s[0:1], 16
        s_load_dwordx2 s[16:17], s[0:1], 24
        s_load_dwordx2 s[4:5], s[0:1], 0
        s_load_dwordx2 s[24:25], s[0:1], 56
        s_load_dwordx2 s[36:37], s[0:1], 88
        s_load_dwordx2 s[20:21], s[0:1], 32
        s_load_dwordx2 s[40:41], s[0:1], 40
        s_load_dwordx2 s[28:29], s[0:1], 64
        s_load_dwordx2 s[32:33], s[0:1], 72
        """)
        self.stamp("start")
        if self.o["codepf"]:
            a(f"""
            s_getpc_b64 s[60:61]
            L_pc:
            v_lshlrev_b32 v28, 7, v0
            v_min_u32 v28, L_codeend-L_pc-4, v28
            v_mov_b32 v29, s61
            v_add_co_u32 v28, vcc, s60, v28
            v_lshrrev_b32 v27, 6, v0
            v_and_b32 {V(vL)}, 63, v0
            v_addc_co_u32 v29, vcc, 0, v29, vcc
            global_load_dword a255, v[28:29], off
            """)
        else:
            a(f"""
            v_lshrrev_b32 v27, 6, v0
            v_and_b32 {V(vL)}, 63, v0
            """)
        a(f"""
        s_and_b32 {sXCD}, s2, 7
        s_lshr_b32 {sJ}, s2, 3
        v_readfirstlane_b32 {sW}, v27
        s_mov_b32 s10, 0x200000
        s_mov_b32 s11, 0x20000
        s_mov_b64 s[14:15], s[10:11]
        s_mov_b64 s[22:23], s[10:11]
        s_mov_b64 s[34:35], s[10:11]
        s_mov_b32 s18, 0x1000
        s_mov_b32 s19, s11
        s_mov_b32 s7, s11
        s_mov_b32 s31, s11
        s_mov_b32 s27, s11
        s_mov_b32 s38, {WS_SIZE}
        s_mov_b32 s39, s11
        s_cmp_lt_u32 {sJ}, 28
        s_cselect_b32 s26, 0x1c0000, 0
        s_cselect_b32 s6, s10, 0
        s_mov_b32 s30, s26
        s_lshr_b32 {sT0}, {sJ}, 3
        s_lshl2_add_u32 {sST}, {sXCD}, {sT0}
        s_and_b32 {sDT}, {sJ}, 7
        v_lshrrev_b32 v27, 3, {V(vL)}          ; l>>3
        v_and_b32 v28, 7, {V(vL)}              ; l&7
        v_lshrrev_b32 v29, 4, {V(vL)}          ; l>>4
        v_lshrrev_b32 v30, 5, {V(vL)}          ; l>>5
        v_lshlrev_b32 v31, 10, v27             ; (l>>3)*1024
        v_lshl_or_b32 {V(vXO)}, v28, 4, v31
        v_lshlrev_b32 v32, 5, v30
        v_xor_b32 v32, {V(vXO)}, v32
        v_xor_b32 v33, 64, v32
        v_add_u32 v33, 7168, v33
        s_lshl_b32 {sT0}, {sST}, 16
        s_lshl_b32 {sT1}, {sW}, 14
        s_lshl_b32 {sT2}, {sDT}, 7
        s_add_u32 {sT0}, {sT0}, {sT2}
        s_add_u32 {sEO}, {sT0}, {sT1}
        s_lshl_b32 {sT1}, {sW}, 10
        s_add_u32 {sT0}, {sT0}, {sT1}
        s_sub_u32 {sT0}, {sT0}, 4096
        v_xor_b32 v34, 6, v28
        v_lshlrev_b32 v34, 4, v34
        v_add_u32 v34, {sT0}, v34
        s_lshl_b32 {sT1}, {sW}, 11
        s_add_u32 m0, {sT1}, {KT + 1024}
        s_lshl_b32 {sT2}, {sW}, 7
        s_lshl_b32 {sT3}, {sDT}, 9
        s_add_u32 {sT3}, {sT3}, {sT2}
        v_and_b32 v35, 15, {V(vL)}             ; l&15
        v_lshlrev_b32 v36, 3, v35
        v_and_b32 v37, 1, v29
        v_lshlrev_b32 v37, 6, v37
        v_xor_b32 v20, {V(vXO)}, v37
        v_add_u32 v21, 7168, v20
        s_lshl_b32 {sM0}, {sW}, 12
        s_cmp_ge_u32 {sJ}, 14
        s_cselect_b32 {sU0}, {27*65536}, 0
        s_lshl_b32 {sU1}, {sJ}, 17
        s_sub_u32 {sU1}, {sU1}, {sU0}
        s_lshl2_add_u32 {sU1}, {sM0}, {sU1}
        s_lshl_b32 {sU0}, {sXCD}, 7
        s_add_u32 {sU1}, {sU1}, {sU0}
        """)
        nt = self.pol("k")
        a(f"buffer_load_dwordx4 v32, {SK}, {sEO} offen{nt} lds", "a1")
        self.stamp("pro.args")
        a(f"buffer_load_dwordx4 v33, {SK}, {sEO} offen offset:1024{nt} lds", "a1")
        a(f"s_add_u32 m0, {sT1}, {VT}")
        a(f"buffer_load_dwordx2 {V(RING,2)}, v36, {SSH}, {sT3} offen", "a1")
        nt = self.pol("v")
        a(f"buffer_load_dwordx4 v32, {SV}, {sEO} offen{nt} lds", "a1")
        a(f"buffer_load_dwordx4 v33, {SV}, {sEO} offen offset:1024{nt} lds", "a1")
        a(f"s_add_u32 m0, {sT2}, {KT + 512}")
        a("s_mov_b64 exec, 0xff")
        a(f"buffer_load_dwordx4 v34, {SK}, 0 offen lds", "a1")
        a("s_mov_b64 exec, -1")
        a(f"s_add_u32 m0, {sM0}, {W2R}")
        a(f"""
        s_lshr_b32 {sT0}, {sXCD}, 1
        """)
        nt = self.pol("w2r")
        a(f"buffer_load_dwordx4 v20, {SW2}, {sU1} offen{nt} lds", "w2r")
        a(f"buffer_load_dwordx4 v21, {SW2}, {sU1} offen offset:1024{nt} lds", "w2r")
        a(f"""
        s_and_b32 {sT1}, {sJ}, 3
        s_lshl2_add_u32 {sT0}, {sT0}, {sT1}         ; rb
        s_lshl2_add_u32 {sT0}, {sT0}, {sW}
        s_lshr_b32 {sT1}, {sT0}, 1
        s_lshl_b32 {sT1}, {sT1}, 16
        s_and_b32 {sT2}, {sW}, 1
        s_lshl_b32 {sT2}, {sT2}, 13
        s_add_u32 {sXO[0]}, {sT1}, {sT2}
        s_add_u32 {sXO[1]}, {sXO[0]}, {16384-1024}
        s_add_u32 {sXO[2]}, {sXO[1]}, {16384-1024}
        s_add_u32 {sXO[3]}, {sXO[2]}, {16384-1024}
        v_lshlrev_b32 v37, 4, v29
        v_xor_b32 {V(vXA[0])}, {V(vXO)}, v37
        v_xor_b32 {V(vXA[1])}, 64, {V(vXA[0])}
        s_and_b32 {sT2}, {sXCD}, 1
        s_mul_i32 {sT2}, {sT2}, 7
        s_lshr_b32 {sT3}, {sJ}, 2
        s_add_u32 {sT2}, {sT2}, {sT3}               ; ft
        s_mul_i32 {sW1O}, {sW}, {16*3584}
        s_lshl_b32 {sT3}, {sT2}, 8
        s_add_u32 {sW1O}, {sW1O}, {sT3}
        v_mul_u32_u24 v38, 2560, v27
        v_add_u32 {V(vW0)}, v20, v38
        v_add_u32 {V(vW1)}, {8*3584-1024}, {V(vW0)}
        """)
        return self.T(f"""
        s_mul_i32 {sFH}, {sT0}, 14
        s_add_u32 {sFH}, {sFH}, {sT2}
        s_lshl_b32 {sFH}, {sFH}, 8
        s_add_u32 {sFH}, {sFH}, {FL_H}
        s_mul_i32 {sHO}, {sT0}, 112
        s_add_u32 {sHO}, {sHO}, {sT2}
        s_lshl_b32 {sHO}, {sHO}, 10
        s_add_u32 {sHO}, {sHO}, {HWS}
        s_lshr_b32 {sT0}, {sW}, 1
        s_lshl1_add_u32 {sT0}, s2, {sT0}
        s_lshl_b32 {sHK}, {sT0}, 12
        s_lshl_b32 {sT1}, s2, 2
        s_mov_b32 {sT2}, {GEN}
        s_load_dwordx2 s[58:59], s[20:21], {sHK}
        s_load_dword {sD}, s[40:41], {sT1}
        s_load_dwordx2 {sTAG}, s[36:37], {sT2}
        s_and_b32 {sT1}, {sW}, 1
        s_lshl_b32 {sT1}, {sT1}, 2
        s_sub_u32 {sHK}, {sHK}, {sT1}
        s_add_u32 {sHK}, {sHK}, 8
        s_lshl2_add_u32 {sFK}, s2, {sW}
        s_lshl_b32 {sKF}, {sFK}, 11
        s_lshl_b32 {sFK}, {sFK}, 7
        s_add_u32 {sFK}, {sFK}, {FL_KV}
        v_lshlrev_b32 {V(vL16)}, 4, {V(vL)}
        """)

    def ld_x(self, c):
        L = []
        for i in range(4):
            t = f"buffer_load_dwordx4 {V(vXA[i&1])}, {SX}, {sXO[i]} offen offset:{1024*i + 128*c}{self.pol('x')} lds"
            if i == 0:
                t = f"s_add_u32 m0, {sM0}, {R1 + (c & 3)*16384 - 128*c}\n+" + t
            L += self.T(t, f"x{c}")
        if c >= 4:
            L[0] = self.join(self.W(f"xr{c-4}"), [L[0]])[0]
        return L

    def ld_w1(self, n):
        c = n & 7
        adv = (128 - 7*64*3584) if n == 7 else 64*3584
        L = self.T(f"""
        s_add_u32 m0, {sM0}, {(n >> 3)*R1 + (c >> 1)*16384 + (c & 1)*2048}
        +buffer_load_dwordx4 {V(vW0)}, {SW1}, {sW1O} offen{self.pol('w1')} lds
        buffer_load_dwordx4 {V(vW1)}, {SW1}, {sW1O} offen offset:1024{self.pol('w1')} lds
        """ + (f"+s_add_u32 {sW1O}, {sW1O}, {adv & 0xffffffff}" if n < 15 else ""), f"w{n}")
        if n >= 8 and n % 2 == 0:
            L[0] = self.join(self.W(f"xr{4 + (n-8)//2}"), [L[0]])[0]
        if n == 6:
            L[0] = self.join(self.W("bounce"), [L[0]])[0]
        return L

    def rd_x(self, c):
        L = self.T("\n".join(f"ds_read_b128 {V(XR+16*c+4*tt,4)}, {V(vXR[tt])} offset:{(c & 3)*16384}" for tt in range(4)), f"xr{c}")
        L[0] = self.join(self.W(f"x{c}"), [L[0]])[0]
        return L

    def addr_b1(self):
        t = f"""
        v_lshrrev_b32 v29, 4, {V(vL)}
        v_lshrrev_b32 v30, 5, {V(vL)}
        v_bfe_u32 v31, {V(vL)}, 1, 3
        v_xor_b32 v31, v31, v30
        v_lshlrev_b32 v31, 4, v31
        v_and_b32 v32, 31, {V(vL)}
        v_lshl_add_u32 v31, v32, 7, v31
        s_add_u32 {sT0}, {sM0}, {R1}
        v_add_u32 v31, {sT0}, v31
        v_bfe_u32 v32, {V(vL)}, 2, 2          ; r
        v_and_b32 v33, 3, {V(vL)}             ; c
        v_bfe_u32 v35, {V(vL)}, 3, 1          ; (r>>1)&1
        v_lshlrev_b32 v35, 6, v35
        v_lshl_add_u32 v35, v32, 7, v35
        v_and_b32 v34, 1, v29
        v_lshl_add_u32 v35, v34, 5, v35
        v_lshl_add_u32 v35, v33, 3, v35
        v_lshl_add_u32 v34, v30, 10, v35
        v_lshl_add_u32 v38, v30, 9, v35
        s_add_u32 {sT0}, {sM0}, {W2R}
        v_add_u32 v38, {sT0}, v38
        """
        for tt in range(4):
            t += f"""
            s_add_u32 {sT0}, {sW}, {tt}
            s_and_b32 {sT0}, {sT0}, 3
            s_lshl_b32 {sT1}, {sT0}, 5
            s_lshl_b32 {sT0}, {sT0}, 12
            v_xor_b32 {V(vXR[tt])}, {sT1}, v31
            v_add_u32 {V(vA[tt][0])}, {sT0}, v34
            v_xor_b32 {V(vA[tt][1])}, 64, {V(vA[tt][0])}
            """
        t += f"""
        v_lshrrev_b32 v31, 2, {V(vL)}
        v_xor_b32 v31, v31, v29
        v_and_b32 v31, 1, v31
        v_add_u32 v31, -1, v31
        v_and_b32 v31, 0x3f803f80, v31
        v_accvgpr_write_b32 {A(aSEL)}, v31
        v_accvgpr_write_b32 {A(aSEL+1)}, v31
        v_accvgpr_write_b32 {A(aSEL+2)}, v31
        v_accvgpr_write_b32 {A(aSEL+3)}, v31
        """
        return self.T(t)

    def addr_a1(self):
        return self.T(f"""
        v_lshrrev_b32 v27, 4, {V(vL)}         ; G
        v_bfe_u32 v28, {V(vL)}, 2, 2          ; r
        v_and_b32 v29, 3, {V(vL)}             ; c
        v_lshrrev_b32 v30, 2, {V(vL)}         ; 4G + r
        v_lshlrev_b32 v30, 9, v30
        v_lshl_add_u32 v30, v29, 3, v30
        v_xor_b32 v31, {sW}, v28
        v_lshl_add_u32 v31, v31, 5, v30
        v_add_u32 v31, {KT + 1024}, v31
        v_add_u32 v32, 3, v28
        v_and_b32 v32, 3, v32
        v_xor_b32 v32, {sW}, v32
        v_lshl_add_u32 v32, v32, 5, v30
        v_add_u32 v32, {KT + 512}, v32
        s_add_u32 {sT1}, {sM0}, {W2R}
        v_bfe_u32 v33, {V(vL)}, 1, 3          ; i>>1
        v_mul_u32_u24 v33, 272, v33
        v_lshl_add_u32 v33, v27, 4, v33
        v_add_u32 v33, {sT1}, v33
        v_and_b32 v34, 1, {V(vL)}
        v_lshlrev_b32 v34, 1, v34
        s_and_b32 {sT0}, {sST}, 3
        v_xor_b32 v34, {sT0}, v34
        v_xor_b32 v35, 1, v34
        v_lshl_add_u32 v34, v34, 6, v33
        v_lshl_add_u32 v35, v35, 6, v33
        v_and_b32 v36, 15, {V(vL)}
        v_lshlrev_b32 v36, 4, v36
        v_mul_u32_u24 v37, 272, v27
        v_add3_u32 v37, v37, v36, {sT1}
        v_lshl_add_u32 v36, v27, 13, v36
        v_xor_b32 v33, 64, v38
        s_lshl2_add_u32 {sT0}, {sXCD}, {sW}
        s_mul_i32 {sT0}, {sT0}, 28
        s_add_u32 {sT0}, {sT0}, {sJ}
        s_lshl_b32 {sT0}, {sT0}, 11
        s_add_u32 {sT0}, {sT0}, {W2T}
        s_cmp_lt_u32 {sJ}, 28
        +s_cselect_b32 {sU0}, {sT0}, {WS_SIZE}      ; w2 fragment store (spare workgroups have none)
        s_lshl2_add_u32 {sT0}, {sDT}, {sW}
        s_lshl_b32 {sT1}, {sT0}, 16
        s_lshl_b32 {sT2}, {sST}, 8
        s_add_u32 {sU1}, {sT1}, {sT2}
        s_add_u32 {sU2}, {sU1}, {4*8192}
        s_mul_i32 {sW2O}, {sT0}, {28*2048}
        s_add_u32 {sW2O}, {sW2O}, {W2T}
        """)

    def a1(self, fill):
        a = self.a
        a.wait("a1")
        a("s_barrier")
        self.stamp("a1data")
        self.stamp("pro.a1data")
        KR, VR, KF, VF, acc, WF, U, WT = 192, 206, 214, 242, 250, 44, 48, 56
        for s in range(-3, 4):
            base, imm = ("v31", s * 128) if s >= 0 else ("v32", (s + 4) * 128)
            a(f"ds_read_b64_tr_b16 {V(KR+2*(s+3),2)}, {base} offset:{imm}")
        for r in range(4):
            a(f"ds_read_b64_tr_b16 {V(VR+2*r,2)}, v31 offset:{VT-KT-1024+r*128}")
        a.wait("w2r")
        for nb in range(2):
            for jj in range(2):
                a(f"ds_read_b64_tr_b16 {V(WT+4*nb+2*jj,2)}, {'v33' if nb else 'v38'} offset:{1024*jj}")
        ops = []
        def unpack(dst, src):
            return [f"v_lshlrev_b32 {V(dst)}, 16, {V(src)}", f"v_and_b32 {V(dst+1)}, 0xffff0000, {V(src)}",
                    f"v_lshlrev_b32 {V(dst+2)}, 16, {V(src+1)}", f"v_and_b32 {V(dst+3)}, 0xffff0000, {V(src+1)}"]
        ops += unpack(WF, RING)
        done = set()
        for rho in range(4):
            for j in range(3, -1, -1):
                s = rho - j
                if s not in done:
                    ops += unpack(KF + 4 * (s + 3), KR + 2 * (s + 3))
                    done.add(s)
            if rho == 0:
                for nb in range(2):
                    ops.append(f"buffer_store_dwordx4 {V(WT+4*nb,4)}, {V(vL16)}, {SWS}, {sU0} offen offset:{1024*nb}{self.pol('w2st', 'sc1')}")
            vf = VF + 4 * (rho & 1)
            ops += unpack(vf, VR + 2 * rho)
            for j in range(3, -1, -1):
                s = rho - j
                wp = V(WF + (j & 2), 2)
                lo = j & 1
                for h in range(2):
                    k = V(KF + 4 * (s + 3) + 2 * h, 2)
                    d = V(acc + 2 * h, 2)
                    if j == 3:
                        ops.append(f"v_pk_mul_f32 {d}, {k}, {wp} op_sel:[0,{lo}] op_sel_hi:[1,{lo}]")
                    else:
                        ops.append(f"v_pk_fma_f32 {d}, {k}, {wp}, {d} op_sel:[0,{lo},0] op_sel_hi:[1,{lo},1]")
            for h in range(2):
                ops.append(f"v_pk_mul_f32 {V(acc+2*h,2)}, {V(acc+2*h,2)}, {V(vf+2*h,2)}")
            for h in range(2):
                ops.append(f"v_cvt_pk_bf16_f32 {V(U+2*rho+h)}, {V(acc+2*h)}, {V(acc+2*h+1)}")
            if rho & 1:
                ops.append(f"ds_write_b128 {'v34' if rho == 1 else 'v35'}, {V(U+4*(rho>>1),4)}")
        nf = len(fill)
        k = 0
        for n, op in enumerate(ops):
            a(op, "kvst")
            while k < nf and (k + 1) * len(ops) <= (n + 1) * (nf + 1):
                fill[k]()
                k += 1
        a(f"ds_read_b128 {V(U,4)}, v37", "bounce")
        a(f"ds_read_b128 {V(U+4,4)}, v37 offset:1088", "bounce")
        for f in fill[k:]:
            f()
        a(f"""
        s_add_u32 s42, s42, 0x7f4a7c15
        s_addc_u32 s43, s43, 0x9e3779b9
        v_mov_b32 {V(vTAG)}, s42
        v_mov_b32 {V(vTAG+1)}, s43
        """)
        a(f"buffer_store_dwordx4 {V(U,4)}, v36, {SWS}, {sU1} offen{self.pol('kvst', 'sc1')}", "kvst")
        a(f"buffer_store_dwordx4 {V(U+4,4)}, v36, {SWS}, {sU2} offen{self.pol('kvst', 'sc1')}", "kvst")

    def kv_flag(self):
        return self.join(self.W("kvst"), self.flag_store(sFK))

    def w_frag(self, s, fb):
        c, tt = (s >> 2) & 7, s & 3
        r = RING + 8 * (s % 3) + 4 * fb
        for jj in range(2):
            self.a(f"ds_read_b64_tr_b16 {V(r+2*jj,2)}, {V(vA[tt][fb])} offset:{(c>>1)*16384 + (c&1)*2048 + jj*512}", f"f{s}")

    def b1(self, fill):
        a = self.a
        for s in range(64):
            hf, c, tt = s >> 5, (s >> 2) & 7, s & 3
            a.phase = f"p{hf+1}"
            x = V(XR + 16 * c + 4 * tt, 4)
            n2 = s + 2
            cnt = []
            for fb in range(2):
                n0 = len(a.out)
                acc = V(ACC + 32 * hf + 16 * fb, 16)
                fr = V(RING + 8 * (s % 3) + 4 * fb, 4)
                first = (c == 0 and tt == 0)
                if fb == 0:
                    a.wait(f"f{s}")
                a(f"v_mfma_f32_32x32x16_bf16 {acc}, {fr}, {x}, {'0' if first else acc}")
                if n2 < 64:
                    if fb == 0 and tt == 2:
                        a.wait(f"w{n2 >> 2}")
                    if fb == 0 and tt == 3:
                        a("s_barrier")
                    if 32 <= n2 < 36:
                        a(f"v_add_u32 {V(vA[n2&3][fb])}, 0x10000, {V(vA[n2&3][fb])}")
                    self.w_frag(n2, fb)
                self.gap(fill, 2 * s + fb, "b1")
                if tt == 0:
                    cc = A(aC + 8 * hf + 4 * fb, 4)
                    a(f"v_mfma_f32_16x16x32_bf16 {cc}, {A(aSEL,4)}, {fr}, {'0' if c == 0 else cc}")
                if hf == 0 and fb == 1:
                    mm = A(aM, 4)
                    a(f"v_mfma_f32_16x16x32_bf16 {mm}, {A(aSEL,4)}, {x}, {'0' if first else mm}")
                cnt.append(len(a.out) - n0)
            self.load.append(("b1", s, cnt))
            self.stamp(f"s{hf+1}.{s}")
            if tt == 3:
                self.stamp(f"p{hf+1}.c{c}")
            if s == 31:
                self.stamp("pass1")
        assert not fill, fill.keys()

    def c_publish(self, hf):
        return self.T(f"""
        v_accvgpr_read_b32 v27, {A(aC+8*hf)}
        v_accvgpr_read_b32 v28, {A(aC+8*hf+4)}
        s_lshl_b32 {sT0}, {sW}, 3
        s_add_u32 {sT0}, {sT0}, {CX + 2048*hf}
        v_cmp_gt_u32 vcc, 32, {V(vL)}
        +v_lshlrev_b32 v30, 5, {V(vL)}
        +v_add_u32 v30, {sT0}, v30
        +v_cndmask_b32 v27, v28, v27, vcc
        v_and_b32 v28, 0xffff0000, v27
        v_sub_f32 v27, v27, v28
        v_and_b32 v29, 0xffff0000, v27
        v_sub_f32 v27, v27, v29
        v_lshrrev_b32 v28, 16, v28
        v_or_b32 v28, v28, v29
        v_lshrrev_b32 v29, 16, v27
        ds_write_b64 v30, v[28:29]
        """, f"cx{hf}")

    def m_finish(self):
        return self.T(f"""
        v_accvgpr_read_b32 v36, {A(aM)}
        v_mul_f32 v36, 0xbb000000, v36
        v_cvt_pk_bf16_f32 v36, v36, v36
        v_accvgpr_write_b32 {A(aM)}, v36
        v_accvgpr_write_b32 {A(aM+1)}, v36
        v_accvgpr_write_b32 {A(aM+2)}, v36
        v_accvgpr_write_b32 {A(aM+3)}, v36
        """)

    def c_addr(self):
        return self.T(f"""
        v_and_b32 v37, 31, {V(vL)}
        v_lshrrev_b32 v36, 5, {V(vL)}
        v_lshlrev_b32 v37, 5, v37
        v_lshl_add_u32 v37, v36, 4, v37
        v_add_u32 v37, {CX}, v37
        """)

    def c_read(self, hf):
        return self.T(f"""
        ds_read_b128 v[28:31], v37 offset:{2048*hf}
        ds_read_b128 v[32:35], v37 offset:{2048*hf + 1024}
        """)

    def c_apply(self, hf, fb):
        acc = V(ACC + 32 * hf + 16 * fb, 16)
        return self.T(f"v_mfma_f32_32x32x16_bf16 {acc}, {V(28+4*fb,4)}, {A(aM,4)}, {acc}")

    def h_store(self, hf, q):
        r = ACC + 32 * hf + 8 * q
        t = "\n".join(f"v_cvt_pk_bf16_f32 {V(r+i)}, {V(r+2*i)}, {V(r+2*i+1)}" for i in range(4)) + "\n"
        t += "\n".join(f"v_pk_max_i16 {V(r+i)}, {V(r+i)}, 0" for i in range(4)) + "\n"
        t += f"s_add_u32 {sT0}, {sHO}, {(hf*56 + q*14)*1024}\n"
        t += f"+buffer_store_dwordx4 {V(r,4)}, {V(vL16)}, {SWS}, {sT0} offen{self.pol('hst', 'sc1')}"
        if self.o.get("dummy") is not None:
            t += f"\n+s_add_u32 {sT0}, {sT0}, 0x1000000\n+buffer_store_dwordx4 {V(r,4)}, {V(vL16)}, {SWS}, {sT0} offen {self.o['dummy']}"
        return self.T(t, f"hst{hf}")

    def h_flag(self, hf):
        if hf == 0:
            return self.join(self.W("hst0"), self.flag_store(sFH))
        return self.join(self.T(f"s_add_u32 {sT0}, {sFH}, 128"), self.W("hst1"), self.flag_store(sT0))

    def ld_w2(self):
        L = []
        for i in range(56):
            t = f"buffer_load_dwordx4 {A(4*i,4)}, {V(vL16)}, {SWS}, {sW2O} offen offset:{1024*(i&3)}{self.pol('w2t', 'sc1')}"
            if i % 4 == 3 and i < 55:
                t += f"\n+s_add_u32 {sW2O}, {sW2O}, 4096"
            L += self.T(t)
        return L

    def ld_hk(self):
        nt = self.pol("hk")
        return self.T("\n".join(f"buffer_load_dwordx4 {V(HK+4*i,4)}, {V(vL16)}, {SHK}, {sHK} offen offset:{1024*i}{nt}" for i in range(4)))

    def p_head(self):
        x = HK + 16
        return self.T(f"""
        s_lshr_b32 {sT0}, {sW}, 1
        s_lshl_b32 {sT0}, {sT0}, 4
        s_lshr_b32 {sT0}, {sD}, {sT0}
        s_lshl_b32 {sT0}, {sT0}, 16
        s_lshl_b32 {sT1}, {sH0}, 16
        v_mov_b32 {V(x)}, {sT0}
        v_add_f32 {V(x)}, {sT1}, {V(x)}
        v_cvt_pk_bf16_f32 {V(x)}, {V(x)}, {V(x)}
        s_mul_i32 {sT2}, {sW}, 8256
        v_mov_b32 {V(x+4)}, 0
        v_readfirstlane_b32 {sT0}, {V(x)}
        v_mov_b32 {V(x+5)}, 0
        v_mov_b32 {V(x+6)}, 0
        v_mov_b32 {V(x+7)}, 0
        s_and_b32 {sT0}, {sT0}, 0xffff
        s_and_b32 {sT1}, {sH0}, 0xffff0000
        s_or_b32 {sT0}, {sT0}, {sT1}            ; (h0 + D, h1)
        s_bitcmp1_b32 {sW}, 0
        +s_cselect_b32 {sCY}, {sT0}, {sH1}      ; dword 3 of chunk 1
        +s_cselect_b32 {sT0}, 0, {sT0}          ; dword 2 of chunk 1
        s_lshl_b32 {sT1}, {sT0}, 16
        s_lshl_b32 {sT3}, {sCY}, 16
        v_writelane_b32 {V(x+6)}, {sT0}, 1
        s_lshr_b32 {sT0}, {sT0}, 16
        v_writelane_b32 {V(x+7)}, {sCY}, 1
        s_or_b32 {sT3}, {sT3}, {sT0}
        v_writelane_b32 {V(x+6)}, {sT1}, 3
        v_writelane_b32 {V(x+7)}, {sT3}, 3
        v_and_b32 {V(x)}, 1, {V(vL)}
        v_lshrrev_b32 {V(x+1)}, 1, {V(vL)}
        v_mul_u32_u24 {V(x+1)}, 4128, {V(x+1)}
        v_lshl_add_u32 {V(x)}, {V(x)}, 4, {V(x+1)}
        v_add_u32 {V(x)}, {sT2}, {V(x)}
        v_add_u32 {V(x+2)}, {sT2}, {V(vL16)}
        v_lshlrev_b32 {V(x+1)}, 2, v0
        """)

    def p_head2(self):
        x = HK + 16
        return self.T(f"""
        s_mov_b64 exec, 15
        +ds_write_b128 {V(x)}, {V(x+4,4)} offset:{PB}
        +s_mov_b64 exec, -1
        ds_write_b32 {V(x+1)}, {V(x+4)} offset:{KV}
        """, "pw")

    def p_shift(self, i):
        r = HK + 4 * i
        x = HK + 16
        d = HK + 24 + 4 * (i & 1)
        return self.T(f"""
        v_mov_b32 {V(x+3)}, {sCY}
        v_readlane_b32 {sCY}, {V(r+3)}, 63
        v_alignbyte_b32 {V(d+1)}, {V(r+1)}, {V(r)}, 2
        v_mov_b32_dpp {V(x+3)}, {V(r+3)} wave_shr:1 row_mask:0xf bank_mask:0xf
        v_alignbyte_b32 {V(d+2)}, {V(r+2)}, {V(r+1)}, 2
        v_alignbyte_b32 {V(d+3)}, {V(r+3)}, {V(r+2)}, 2
        v_alignbyte_b32 {V(d)}, {V(r)}, {V(x+3)}, 2
        """)

    def p_write(self, i, ph):
        x = HK + 16
        src = HK + 24 + 4 * (i & 1) if ph else HK + 4 * i
        return self.T(f"ds_write_b128 {V(x+2)}, {V(src,4)} offset:{PB + 4128*ph + 32 + 1024*i}", "pw")

    def kv_poll_addr(self):
        return self.T(f"""
        v_min_u32 v27, 27, {V(vL)}
        v_lshlrev_b32 v27, 12, v27
        s_lshl2_add_u32 {sT0}, {sDT}, {sW}
        s_lshl_b32 {sT0}, {sT0}, 7
        v_add_u32 v27, {sT0}, v27
        v_and_b32 v28, 3, {V(vL)}
        v_bfe_u32 v29, {V(vL)}, 2, 1
        v_lshlrev_b32 v28, 15, v28
        v_lshl_add_u32 v28, v29, 9, v28
        s_lshr_b32 {sT0}, {sJ}, 2
        s_lshl_b32 {sT0}, {sT0}, 12
        s_and_b32 {sT1}, {sJ}, 3
        s_lshl_b32 {sT1}, {sT1}, 7
        s_add_u32 {sT0}, {sT0}, {sT1}
        s_lshl_b32 {sT1}, {sW}, 10
        s_add_u32 {sT0}, {sT0}, {sT1}
        v_cmp_gt_u32 vcc, 32, {V(vL)}
        +v_add_u32 v28, {sT0}, v28
        +s_mov_b32 {sPO}, {FL_KV}
        +v_cndmask_b32 {V(vPO)}, v28, v27, vcc
        """)

    def kv_fetch(self):
        return self.T(f"""
        s_lshr_b32 {sU0}, {sM0}, 1
        +s_add_u32 m0, {sU0}, {KV + 1024}
        +buffer_load_dwordx4 {V(vL16)}, {SWS}, {sKF} offen{self.pol('kv', 'sc1')} lds
        +buffer_load_dwordx4 {V(vL16)}, {SWS}, {sKF} offen offset:1024{self.pol('kv', 'sc1')} lds
        """, "kv")

    def conv_addr(self):
        t = f"""
        v_lshrrev_b32 v27, 4, {V(vL)}          ; G
        v_bfe_u32 v28, {V(vL)}, 2, 2           ; r
        v_and_b32 v29, 3, {V(vL)}              ; c
        v_lshl_add_u32 v29, v27, 2, v29
        v_sub_u32 v29, v29, v28
        s_mul_i32 {sT0}, {sW}, 8256
        s_add_u32 {sT0}, {sT0}, {PB + 24}
        v_lshlrev_b32 v29, 3, v29
        v_add_u32 {V(vCA)}, {sT0}, v29
        v_and_b32 v28, 15, {V(vL)}
        v_sub_u32 v28, v28, v27                ; a - G
        v_add_u32 v28, 16, v28
        v_lshrrev_b32 v27, 2, v28
        v_and_b32 v28, 3, v28
        v_lshlrev_b32 v28, 4, v28
        v_lshl_add_u32 v28, v27, 8, v28
        """
        for e in range(4):
            t += f"""
            v_add_u32 v29, {-e}, v27
            v_xor_b32 v29, {sW}, v29
            v_and_b32 v29, 3, v29
            v_lshl_add_u32 v29, v29, 6, v28
            v_add_u32 {V(vXR[e])}, {KV - 256*e}, v29
            """
        return self.T(t)

    def conv_reads(self, e):
        base = XR + 64 * (e & 1)
        L = []
        for n in range(8):
            L.append(f"ds_read_b128 {V(base+32+4*n,4)}, {V(vXR[e])} offset:{1024*n}")
            for ph in range(2):
                L.append(f"ds_read_b64_tr_b16 {V(base+4*n+2*ph,2)}, {V(vCA)} offset:{ph*4128 + 128*(4*n+e)}")
        return self.T("\n".join(L), f"cv{e}")

    def conv(self, fill):
        a = self.a
        k = 0
        for e in range(4):
            base = XR + 64 * (e & 1)
            if e < 3:
                self.place(fill, self.conv_reads(e + 1), 36 * e + 2, 0.75)
                prs = sorted([(n, d) for n in range(8) for d in range(8) if n + d < 8], key=lambda p: (max(p), p[0] + p[1]))
            else:
                prs = sorted([(n, d) for n in range(8) for d in range(8) if n + d < 8], key=lambda p: (-(p[0] + p[1]), max(p)))
            seen = set()
            cnt = []
            for i, (n, d) in enumerate(prs):
                n0 = len(a.out)
                acc = A(aY + 4 * (n + d), 4)
                first = (e == 0 and (n + d) not in seen)
                seen.add(n + d)
                a(f"v_mfma_f32_16x16x32_bf16 {acc}, {V(base+4*n,4)}, {V(base+32+4*d,4)}, {'0' if first else acc}")
                self.gap(fill, k, "cv")
                cnt.append(len(a.out) - n0)
                if k % 4 == 3:
                    self.stamp(f"cg.{k}")
                k += 1
            self.load.append(("cv", e, cnt))
            self.stamp(f"cv.e{e}")
        assert not fill, fill.keys()

    def y_addr(self):
        return self.T(f"""
        v_lshrrev_b32 v27, 4, {V(vL)}
        v_and_b32 v28, 15, {V(vL)}
        v_mul_u32_u24 v27, 20, v27
        v_add_lshl_u32 v27, v27, v28, 4
        s_mul_i32 {sT0}, {sW}, 10240
        s_add_u32 {sT0}, {sT0}, {EX}
        v_add_u32 v12, {sT0}, v27
        v_and_b32 v28, 3, {V(vL)}
        v_lshrrev_b32 v29, 2, {V(vL)}
        v_mul_u32_u24 v28, 20, v28
        v_add_lshl_u32 v28, v28, v29, 4
        s_mul_i32 {sT0}, {sW}, 2560
        s_add_u32 {sT0}, {sT0}, {EX}
        v_add_u32 v13, {sT0}, v28
        """)

    def y_write(self, t):
        return self.T(f"ds_write_b128 v12, {A(aY+4*t,4)} offset:{1280*t}", "ex")

    YT = 160
    def y_gather(self):
        R = self.YT
        L = self.join(self.W("ex"), self.T("s_barrier"))
        L += self.T("\n".join(f"ds_read_b128 {V(R+16*t+4*src,4)}, v13 offset:{10240*src + 1280*t}" for t in range(2) for src in range(4)))
        return L

    def y_sum(self, t):
        b = self.YT + 16 * t
        x = ""
        for i in range(4):
            x += f"v_add_f32 {V(b+i)}, {V(b+i)}, {V(b+4+i)}\n"
        for i in range(4):
            x += f"v_add_f32 {V(b+8+i)}, {V(b+8+i)}, {V(b+12+i)}\n"
        for i in range(4):
            x += f"v_cvt_pk_bf16_f32 {V(b+4+i)}, {V(b+i)}, {V(b+8+i)}\n"
        x += f"s_add_u32 {sT0}, {sKF}, {YWS}\n"
        x += f"+buffer_store_dwordx4 {V(b+4,4)}, {V(vL16)}, {SWS}, {sT0} offen offset:{1024*t}{self.pol('yst', 'sc1')}"
        return self.T(x, "yst")

    def y_flag(self):
        return self.join(self.T(f"s_add_u32 {sT0}, {sFK}, {FL_Y - FL_KV}"), self.W("yst"), self.flag_store(sT0))

    def h_poll_addr(self):
        return self.T(f"""
        v_and_b32 v27, 1, {V(vL)}
        v_lshrrev_b32 v28, 1, {V(vL)}
        v_min_u32 v28, 13, v28
        v_mul_u32_u24 v27, 14, v27
        v_add_lshl_u32 {V(vPO)}, v27, v28, 8
        s_mul_i32 {sPO}, {sST}, {28*256}
        s_add_u32 {sPO}, {sPO}, {FL_H}
        s_mul_i32 {sHL}, {sST}, 224
        s_mul_i32 {sT0}, {sW}, 14
        s_add_u32 {sHL}, {sHL}, {sT0}
        s_lshl_b32 {sHL}, {sHL}, 10
        s_add_u32 {sHL}, {sHL}, {HWS}
        v_add_u32 {V(vH2)}, {112*1024}, {V(vL16)}
        """)

    def ld_h(self, order):
        L = []
        cur = None
        for k, sb in order:
            hf, T = divmod(k, 14)
            t = f"buffer_load_dwordx4 {V(hslot(k,sb),4)}, {V(vH2 if sb else vL16)}, {SWS}, {sHL2} offen offset:{1024*(T%4)}{self.pol('h', 'sc1')}"
            if cur != (hf, T // 4):
                cur = (hf, T // 4)
                t = f"s_add_u32 {sHL2}, {sHL}, {(hf*56 + T//4*4)*1024}\n+" + t
            L += self.T(t)
        return L

    def b2(self, order, fill):
        a = self.a
        seen = set()
        cnt = []
        for g, (k, q) in enumerate(order):
            n0 = len(a.out)
            sb, nb = q >> 1, q & 1
            acc = V(ACC2 + 16 * q, 16)
            a(f"v_mfma_f32_32x32x16_bf16 {acc}, {A(8*k+4*nb,4)}, {V(hslot(k,sb),4)}, {acc if q in seen else '0'}")
            seen.add(q)
            self.gap(fill, g, "b2")
            cnt.append(len(a.out) - n0)
            if g % 16 == 15:
                self.load.append(("b2", g, cnt))
                cnt = []
            if g % 2 == 1:
                self.stamp(f"bg.{g}")
            if g % 12 == 11:
                self.stamp(f"b2.g{g}")
        assert not fill, fill.keys()

    EXR, ESR, EYR = 112, 120, 160
    XF, TF, RR = 128, 144, 160

    def y_poll_addr(self):
        return self.T(f"""
        v_and_b32 {V(vPO)}, 31, {V(vL)}
        v_lshlrev_b32 {V(vPO)}, 9, {V(vPO)}
        s_lshl_b32 {sPO}, {sDT}, 14
        s_lshr_b32 {sT3}, {sST}, 3
        s_lshl_b32 {sT3}, {sT3}, 7
        s_add_u32 {sPO}, {sPO}, {sT3}
        s_add_u32 {sPO}, {sPO}, {FL_Y}
        """)

    def ep_loads(self):
        return self.T(f"""
        v_lshrrev_b32 v18, 3, {V(vL)}
        v_lshlrev_b32 v18, 4, v18
        s_lshl_b32 {sT0}, {sST}, 10
        s_lshl_b32 {sT1}, {sW}, 8
        s_add_u32 {sT0}, {sT0}, {sT1}
        s_add_u32 {sST2}, {sT0}, {STAT}
        s_add_u32 {sU1}, {sEO}, 8192
        buffer_load_dwordx4 {V(self.ESR,4)}, v18, {SWS}, {sST2} offen sc1
        buffer_load_dwordx4 {V(self.ESR+4,4)}, v18, {SWS}, {sST2} offen offset:128 sc1
        buffer_load_dwordx4 {V(self.EXR,4)}, {V(vXO)}, {SX}, {sEO} offen{self.pol('xe')}
        buffer_load_dwordx4 {V(self.EXR+4,4)}, {V(vXO)}, {SX}, {sU1} offen{self.pol('xe')}
        """)

    def y_fetch_addr(self):
        return self.T(f"""
        v_lshrrev_b32 v27, 3, {V(vL)}
        v_and_b32 v28, 7, {V(vL)}
        v_lshrrev_b32 v29, 4, {V(vL)}
        v_xor_b32 v29, v28, v29                ; idx
        v_lshrrev_b32 v30, 2, v29
        v_lshl_add_u32 v30, v27, 1, v30
        v_and_b32 v29, 3, v29
        v_lshlrev_b32 v29, 4, v29
        v_lshl_add_u32 v34, v30, 13, v29
        v_xor_b32 v35, 0x2000, v34
        v_add_u32 v35, {16*8192 - 1024}, v35
        s_lshl_b32 {sT0}, {sDT}, 18
        s_lshl_b32 {sT1}, {sST}, 8
        s_lshl_b32 {sT2}, {sW}, 6
        s_add_u32 {sT0}, {sT0}, {sT1}
        s_add_u32 {sT0}, {sT0}, {sT2}
        s_add_u32 {sU2}, {sT0}, {YWS}
        s_lshr_b32 {sU0}, {sM0}, 1
        s_add_u32 {sU0}, {sU0}, {YB}
        s_mov_b32 m0, {sU0}
        v_lshrrev_b32 v27, 5, {V(vL)}
        v_xor_b32 v27, v27, v28
        v_lshlrev_b32 v27, 4, v27
        v_lshl_add_u32 v27, v28, 8, v27
        v_bfe_u32 v28, {V(vL)}, 3, 2
        v_lshl_add_u32 v27, v28, 2, v27
        v_add_u32 v27, {sU0}, v27
        v_xor_b32 v28, 64, v27
        v_xor_b32 v29, 32, v27
        v_xor_b32 v30, 0x60, v27
        """)

    def y_fetch(self):
        return self.T(f"""
        buffer_load_dwordx4 v34, {SWS}, {sU2} offen{self.pol('y', 'sc1')} lds
        buffer_load_dwordx4 v35, {SWS}, {sU2} offen offset:1024{self.pol('y', 'sc1')} lds
        """, "y")

    def y_read(self):
        L = self.T("\n".join(f"ds_read_b32 {V(self.EYR+4*st+e)}, {V(27 + 2*st + (e & 1))} offset:{128*(e >> 1)}" for st in range(2) for e in range(4)))
        L[0] = self.join(self.W("y"), [L[0]])[0]
        return L

    def stat_check(self):
        def f():
            a = self.a
            S = self.ESR
            a(f"v_cmp_ne_u64 vcc, {sTAG}, {V(S+2,2)}")
            a(f"v_cmp_ne_u64 s[60:61], {sTAG}, {V(S+6,2)}")
            a("s_or_b64 vcc, vcc, s[60:61]")
            a("s_cbranch_vccnz L_slow_st")
            a.label("L_back_st")
            self.slow.append(f"""L_slow_st:
    s_mov_b32 {sCNT}, 0
L_spin_st:
    buffer_load_dwordx4 {V(S,4)}, v18, {SWS}, {sST2} offen sc1
    buffer_load_dwordx4 {V(S+4,4)}, v18, {SWS}, {sST2} offen offset:128 sc1
    s_add_u32 {sCNT}, {sCNT}, 1
    s_cmp_gt_u32 {sCNT}, 20000
    s_waitcnt vmcnt(0)
    s_cbranch_scc1 L_back_st
    v_cmp_ne_u64 vcc, {sTAG}, {V(S+2,2)}
    v_cmp_ne_u64 s[60:61], {sTAG}, {V(S+6,2)}
    s_or_b64 vcc, vcc, s[60:61]
    s_cbranch_vccnz L_spin_st
    s_branch L_back_st
""")
        return [f]

    def ep_pre(self, st, e):
        x, y = self.EXR + 4 * st + e, self.EYR + 4 * st + e
        xf, tf = self.XF + 8 * st + 2 * e, self.TF + 8 * st + 2 * e
        m = V(self.ESR + 4 * st)
        return self.T(f"""
        v_lshlrev_b32 {V(xf)}, 16, {V(x)}
        v_and_b32 {V(xf+1)}, 0xffff0000, {V(x)}
        v_lshlrev_b32 v32, 16, {V(y)}
        v_and_b32 v33, 0xffff0000, {V(y)}
        v_sub_f32 {V(tf)}, {V(xf)}, {m}
        v_sub_f32 {V(tf+1)}, {V(xf+1)}, {m}
        v_mul_f32 {V(tf)}, {V(tf)}, v32
        v_mul_f32 {V(tf+1)}, {V(tf+1)}, v33
        """)

    def ep_addr(self):
        return self.T(f"""
        v_and_b32 v36, 31, {V(vL)}
        v_mul_u32_u24 v36, 272, v36
        v_lshrrev_b32 v37, 5, {V(vL)}
        v_lshl_add_u32 v36, v37, 4, v36
        s_mul_i32 {sT0}, {sW}, 17408
        v_add_u32 v15, {sT0}, v36
        v_lshrrev_b32 v36, 3, {V(vL)}
        v_mul_u32_u24 v36, 272, v36
        v_and_b32 v37, 7, {V(vL)}
        v_lshl_add_u32 v36, v37, 5, v36
        s_mul_i32 {sT0}, {sW}, {8*272}
        v_add_u32 v16, {sT0}, v36
        """)

    def red_write(self, q):
        sb, nb = q >> 1, q & 1
        return self.T("\n".join(f"ds_write_b128 v15, {V(ACC2+16*q+4*g,4)} offset:{RED + sb*8704 + nb*128 + g*32}" for g in range(4)), f"red{sb}")

    def red_read(self, st):
        L = self.join(self.W(f"red{st}"), self.T("s_barrier"))
        L += self.T("\n".join(f"ds_read_b128 {V(self.RR+8*src+4*hh,4)}, v16 offset:{RED + src*17408 + st*8704 + hh*16}" for src in range(4) for hh in range(2)))
        return L

    def finish(self, st, packed):
        tf, xf, R = self.TF + 8 * st, self.XF + 8 * st, self.RR
        t = ""
        for src in range(4):
            if packed:
                for p in range(4):
                    t += f"v_pk_add_f32 {V(tf+2*p,2)}, {V(tf+2*p,2)}, {V(R+8*src+2*p,2)}\n"
            else:
                for p in range(8):
                    t += f"v_add_f32 {V(tf+p)}, {V(tf+p)}, {V(R+8*src+p)}\n"
        if packed:
            rr = V(self.ESR + 4 * st, 2)
            for p in range(4):
                t += f"v_pk_fma_f32 {V(tf+2*p,2)}, {V(tf+2*p,2)}, {rr}, {V(xf+2*p,2)} op_sel:[0,1,0] op_sel_hi:[1,1,1]\n"
        else:
            for p in range(8):
                t += f"v_fma_f32 {V(tf+p)}, {V(tf+p)}, {V(self.ESR+4*st+1)}, {V(xf+p)}\n"
        for p in range(4):
            t += f"v_cvt_pk_bf16_f32 {V(xf+p)}, {V(tf+2*p)}, {V(tf+2*p+1)}\n"
        t += f"buffer_store_dwordx4 {V(xf,4)}, {V(vXO)}, {SO}, {sU1 if st else sEO} offen{self.pol('out')}"
        return self.T(t)

    def stats_loads(self):
        a = self.a
        a(f"""
        s_mov_b32 s6, 0x200000
        s_and_b32 {sT1}, {sJ}, 3
        s_lshl2_add_u32 {sT1}, {sXCD}, {sT1}
        s_lshl2_add_u32 {sT1}, {sT1}, {sW}
        s_lshl_b32 {sXO[0]}, {sT1}, 14
        s_add_u32 {sXO[1]}, {sXO[0]}, 8192
        s_mov_b32 {sFH}, {WS_SIZE}
        """)
        for c in range(8):
            for i in range(2):
                a(f"buffer_load_dwordx4 {V(XR+16*c+4*i,4)}, {V(vXO)}, {SX}, {sXO[i]} offen offset:{128*c}{self.pol('xs')}")

    def stats(self):
        a = self.a
        a("v_mov_b32 v27, 0x3f803f80")
        def red8(r):
            a(f"v_add_f32_dpp {V(r)}, {V(r)}, {V(r)} quad_perm:[1,0,3,2] row_mask:0xf bank_mask:0xf")
            a(f"v_add_f32_dpp {V(r)}, {V(r)}, {V(r)} quad_perm:[2,3,0,1] row_mask:0xf bank_mask:0xf")
            a(f"v_add_f32_dpp {V(r)}, {V(r)}, {V(r)} row_half_mirror row_mask:0xf bank_mask:0xf")
        for i in range(2):
            a(f"v_mov_b32 {V(64+8*i)}, 0")
            a(f"v_mov_b32 {V(65+8*i)}, 0")
        for c in range(8):
            for j in range(4):
                for i in range(2):
                    a(f"v_dot2c_f32_bf16 {V(64+8*i+(j&1))}, {V(XR+16*c+4*i+j)}, v27")
        for i in range(2):
            a(f"v_add_f32 {V(64+8*i)}, {V(64+8*i)}, {V(65+8*i)}")
        for i in range(2):
            red8(64 + 8 * i)
        for i in range(2):
            a(f"v_mul_f32 {V(64+8*i)}, 0x3b000000, {V(64+8*i)}")
            a(f"v_mov_b32 {V(66+8*i)}, 0")
            a(f"v_mov_b32 {V(67+8*i)}, 0")
        for c in range(8):
            for j in range(4):
                for i in range(2):
                    x = V(XR + 16 * c + 4 * i + j)
                    t = 68 + 8 * i
                    a(f"v_lshlrev_b32 {V(t)}, 16, {x}")
                    a(f"v_and_b32 {V(t+1)}, 0xffff0000, {x}")
                    a(f"v_pk_add_f32 {V(t,2)}, {V(t,2)}, {V(64+8*i,2)} op_sel:[0,0] op_sel_hi:[1,0] neg_lo:[0,1] neg_hi:[0,1]")
                    a(f"v_pk_fma_f32 {V(66+8*i,2)}, {V(t,2)}, {V(t,2)}, {V(66+8*i,2)}")
        for i in range(2):
            a(f"v_add_f32 {V(66+8*i)}, {V(66+8*i)}, {V(67+8*i)}")
        for i in range(2):
            red8(66 + 8 * i)
        a(f"""
        v_lshrrev_b32 v28, 3, {V(vL)}
        v_lshlrev_b32 v28, 4, v28
        s_lshr_b32 {sT0}, {sXO[0]}, 6
        s_add_u32 {sT0}, {sT0}, {STAT}
        """)
        for i in range(2):
            m, v = 64 + 8 * i, 66 + 8 * i
            a(f"""
            v_mul_f32 {V(v)}, 0x3b000000, {V(v)}
            v_cvt_pk_bf16_f32 {V(v)}, {V(v)}, {V(m)}
            v_and_b32 {V(m)}, 0xffff0000, {V(v)}
            v_lshlrev_b32 {V(v)}, 16, {V(v)}
            v_add_f32 {V(v)}, 0x3727c5ac, {V(v)}
            v_cvt_pk_bf16_f32 {V(v)}, {V(v)}, {V(v)}
            v_lshlrev_b32 {V(v)}, 16, {V(v)}
            v_sqrt_f32 {V(v)}, {V(v)}
            v_cvt_pk_bf16_f32 {V(v)}, {V(v)}, {V(v)}
            v_lshlrev_b32 {V(v)}, 16, {V(v)}
            v_rcp_f32 {V(m+1)}, {V(v)}
            v_mov_b32 {V(m+2)}, {V(vTAG)}
            v_mov_b32 {V(m+3)}, {V(vTAG+1)}
            """)
        a("s_mov_b32 exec_lo, 0x01010101")
        a("s_mov_b32 exec_hi, 0x01010101")
        for i in range(2):
            a(f"buffer_store_dwordx4 {V(64+8*i,4)}, v28, {SWS}, {sT0} offen offset:{128*i} sc1")
        a("s_mov_b64 exec, -1")

    def gen_update(self):
        a = self.a
        a(f"s_cmp_lg_u32 s2, {28*8}")
        a("s_cbranch_scc1 L_nogen")
        a.wait_all()
        a.raw(f"""    v_lshlrev_b32 v28, 7, v0
    s_mov_b32 {sT1}, {FL_KV}
L_gen_next:
    s_mov_b32 {sCNT}, 0
L_gen_spin:
    buffer_load_dwordx2 v[30:31], v28, {SWS}, {sT1} offen sc1
    s_add_u32 {sCNT}, {sCNT}, 1
    s_cmp_gt_u32 {sCNT}, 20000
    s_waitcnt vmcnt(0)
    s_cbranch_scc1 L_gen_got
    v_cmp_ne_u64 vcc, {sTAG}, v[30:31]
    s_cbranch_vccnz L_gen_spin
L_gen_got:
    s_add_u32 {sT1}, {sT1}, 0x8000
    s_cmp_lt_u32 {sT1}, {FL_KV + 0x20000}
    s_cbranch_scc1 L_gen_next
    s_barrier
    s_cmp_lg_u32 {sW}, 0
    s_cbranch_scc1 L_nogen
    s_mov_b32 {sT1}, {GEN}
    s_mov_b64 exec, 1
    buffer_store_dwordx2 {V(vTAG,2)}, off, {SWS}, {sT1} sc1
    s_mov_b64 exec, -1
    s_waitcnt vmcnt(0)
L_nogen:""")

    def build(self):
        a, o, place, run = self.a, self.o, self.place, self.run
        rest = self.prologue()
        rest += self.addr_b1() + self.addr_a1()
        pre = self.ld_x(0) + self.ld_w1(0) + self.ld_x(1) + self.ld_w1(1) + self.ld_x(2)
        step = len(rest) / len(pre)
        k = 0
        for i, f in enumerate(pre):
            f()
            while k < len(rest) and k < (i + 1) * step:
                rest[k]()
                k += 1
        run(rest[k:])
        self.stamp("pro.issued")
        self.a1(self.ld_w1(2) + self.ld_x(3) + self.ld_w1(3) + self.ld_hk() + self.join(self.rd_x(0)) + self.ld_w1(4) + self.ld_x(4) + self.join(self.rd_x(1)))
        self.stamp("a1done")
        self.stamp("pro.a1done")
        a(f"s_cmp_ge_u32 {sJ}, 28")
        a("s_cbranch_scc1 L_spare")
        st_spare = a.state()
        a.wait("w0")
        a("s_barrier")
        for s in range(2):
            for fb in range(2):
                self.w_frag(s, fb)
        self.stamp("p1.start")
        fill = {}
        st = self.ld_x(5) + self.ld_w1(5) + self.ld_x(6) + self.ld_w1(6) + self.ld_x(7) + self.ld_w1(7)
        for n in range(8, 16):
            st += self.ld_w1(n)
        r1 = o.get("r1", 0.62)
        place(fill, self.rd_x(2), 1)
        place(fill, self.rd_x(3), 9)
        place(fill, self.rd_x(4), 17)
        place(fill, self.rd_x(5), 25)
        place(fill, self.rd_x(6), 33)
        place(fill, self.rd_x(7), 41)
        g = place(fill, st, 0, r1)
        place(fill, self.kv_flag(), 26)
        place(fill, self.p_head(), 5, 2)
        place(fill, self.kv_poll_addr(), 28, 2)
        place(fill, self.p_shift(0) + self.p_shift(1), 38, 2)
        pw = self.p_head2() + self.p_write(0, 0) + self.p_write(0, 1) + self.p_write(1, 1)
        place(fill, pw, 46, 1)
        place(fill, self.p_shift(2) + self.p_shift(3), 51, 2)
        place(fill, self.p_write(1, 0) + self.p_write(2, 0) + self.p_write(3, 0), 52, 0.5)
        place(fill, self.p_write(2, 1) + self.p_write(3, 1), 59, 0.5)
        gp = o.get("gp", 56)
        place(fill, self.poll_issue(), gp)
        place(fill, self.c_publish(0), 62, 2)
        place(fill, self.m_finish() + self.c_addr(), 66, 3)
        place(fill, self.W("cx0"), 69)
        place(fill, self.c_read(0), 71, 2)
        place(fill, self.c_apply(0, 0) + self.c_apply(0, 1), 74)
        hs = []
        for q in range(4):
            hs += self.h_store(0, q)
        place(fill, hs, 77, 3)
        gk = o.get("gk", 66)
        place(fill, self.join(self.poll_check("kv"), self.kv_fetch()), gk)
        w2 = self.ld_w2()
        n2 = o.get("n2", 27)
        place(fill, w2[:n2], gk + 1, n2 / (127 - gk))
        place(fill, self.conv_addr(), 90, 3)
        place(fill, self.W("kv", "pw"), 101)
        place(fill, self.h_flag(0), o.get("gh0", 104))
        place(fill, self.conv_reads(0), 103, 1.5)
        place(fill, self.c_publish(1), 122, 4)
        place(fill, self.join(self.W("cx1"), self.T("s_barrier"), self.c_read(1)), 126)
        self.b1(fill)
        self.stamp("pass2")
        a.phase = ""
        run(self.c_apply(1, 0) + self.c_apply(1, 1))
        a("s_branch L_conv")
        st_join = a.state()
        a.restore(st_spare)
        a.label("L_spare")
        self.stats_loads()
        run(self.kv_flag())
        a("s_barrier")
        run(self.p_head() + self.p_head2())
        for i in range(4):
            run(self.p_shift(i) + self.p_write(i, 0) + self.p_write(i, 1))
        run(self.kv_poll_addr() + self.poll_issue())
        self.stats()
        run(self.poll_check("kv2") + self.kv_fetch())
        run(self.ld_w2()[:n2])
        run(self.conv_addr())
        a(f"s_mov_b32 {sHO}, {WS_SIZE}")
        self.gen_update()
        a.wait_all()
        a("s_barrier")
        run(self.conv_reads(0))
        a.wait_all()
        a.restore(st_join)
        a.label("L_conv")
        self.stamp("convstart")
        self.stamp("cv.start")
        fill = {}
        hs = []
        for q in range(4):
            hs += self.h_store(1, q)
        place(fill, hs, 3, 1)
        gw = place(fill, w2[n2:], 0, o.get("r3", 0.27))
        place(fill, self.h_poll_addr() + self.y_addr(), 40, 1)
        place(fill, self.h_flag(1), o.get("gh1", 76))
        place(fill, self.poll_issue(0), gw - 12)
        horder = [(k, sb) for k in range(20) for sb in range(2)] + [(k, sb) for sb in range(2) for k in range(20, 28)]
        hl = self.ld_h(horder)
        nh = o.get("nh", 9)
        place(fill, self.poll_check("h0", 0), gw + 2)
        place(fill, hl[:nh], gw + 3, nh / (143 - gw - 3))
        g = 108
        for t in range(7, 1, -1):
            g += t + 1
            place(fill, self.y_write(t), g + 1)
        a.phase = "cv"
        self.conv(fill)
        a.phase = "b2"
        self.stamp("convend")
        order = [(k, q) for k in range(20) for q in range(4)]
        order += [(k, q) for k in range(20, 28) for q in range(2)]
        order += [(k, 2) for k in range(20, 28)] + [(k, 3) for k in range(20, 28)]
        fill = {}
        place(fill, self.y_write(1) + self.y_write(0), 0, 2)
        place(fill, self.y_gather(), 2, 2)
        place(fill, self.y_sum(0) + self.y_sum(1), 7, 4)
        r4 = o.get("r4", 0.55)
        g1 = place(fill, hl[nh:28], 0, r4)
        place(fill, self.poll_issue(128), g1 - 10)
        place(fill, self.poll_check("h1", 128), g1 + 1)
        g2 = place(fill, hl[28:], g1 + 2, r4)
        self.h_sched = (g1, g2)
        place(fill, self.y_flag(), o.get("gy", 26))
        place(fill, self.ep_addr(), 16, 2)
        place(fill, self.y_fetch_addr(), 28, 2)
        place(fill, self.y_poll_addr(), g1 + 3, 2)
        place(fill, self.ep_loads(), 46, 2)
        place(fill, self.poll_issue(0), 52)
        place(fill, self.join(self.poll_check("y", 0), self.y_fetch()), 60)
        place(fill, self.stat_check(), 66)
        place(fill, self.y_read(), 72, 4)
        ep = []
        for st_ in range(2):
            for e in range(4):
                ep += self.ep_pre(st_, e)
        place(fill, ep, 76, 4)
        place(fill, self.red_write(0) + self.red_write(1), 97, 1)
        place(fill, self.red_read(0), 105, 4)
        place(fill, self.red_write(2), 106, 1)
        f0 = self.finish(0, False)
        place(fill, f0[:20], 108, 5)
        self.b2(order, fill)
        self.stamp("b2end")
        run(f0[20:32])
        run(self.red_write(3))
        run(f0[32:])
        run(self.red_read(1))
        self.stamp("redbar")
        run(self.finish(1, True))
        if o["diag"]:
            a.wait_all()
            self.stamp("end")
            a.wait_all()
            for i in range(max(0, self.nst - 6), self.nst):
                a(f"v_writelane_b32 v39, s{sSTAMP + 2*(i % 8)}, {i}")
            a(f"""
            s_lshl2_add_u32 {sT0}, s2, {sW}
            s_lshl_b32 {sT0}, {sT0}, 8
            s_add_u32 {sT0}, {sT0}, {STAMP}
            v_lshlrev_b32 v27, 2, {V(vL)}
            buffer_store_dword v39, v27, {SWS}, {sT0} offen
            """)
        a.label("L_end")
        a("s_endpgm")
        for s in self.slow:
            a.raw(s)
        a.label("L_codeend")
        return self.wrap(a.text())

    def wrap(self, body):
        return f"""; Fused kernel: out = x + LN(x) * (longconv(shiftconv(k) * v) + D * kv) + relu(LN(x) @ w1) @ w2
; One persistent launch, one workgroup per CU; phases hand data over through d_ws with tagged flags.
; @launch grid=(256,1,1) block=(256,1,1) lds={LDS_SIZE}
.amdgcn_target "amdgcn-amd-amdhsa--gfx950"
.text
.globl {KN}
.p2align 8
.type {KN},@function
{KN}:
{body}
.section .rodata,"a"
.p2align 6
.amdhsa_kernel {KN}
  .amdhsa_next_free_vgpr 512
  .amdhsa_next_free_sgpr 102
  .amdhsa_accum_offset 256
  .amdhsa_group_segment_fixed_size 0
  .amdhsa_kernarg_size 96
  .amdhsa_user_sgpr_count 2
  .amdhsa_user_sgpr_kernarg_segment_ptr 1
  .amdhsa_system_sgpr_workgroup_id_x 1
  .amdhsa_float_denorm_mode_32 3
.end_amdhsa_kernel
"""


if __name__ == "__main__":
    opts = {}
    out = None
    for arg in sys.argv[1:]:
        if "=" in arg:
            k, v = arg.split("=", 1)
            opts[k] = eval(v)
        else:
            out = arg
    g = Gen(**opts)
    txt = g.build()
    if out:
        open(out, "w").write(txt)
        if g.names:
            open(out + ".names", "w").write(" ".join(g.names))
    if opts.get("show"):
        for l in g.load:
            print(l)
    print("nops inserted:", g.a.nops, "lines:", txt.count("\n"), "h sched", g.h_sched, file=sys.stderr)
```

```python
import sys, os
sys.path.insert(0, os.path.dirname(os.path.abspath(__file__)))
from emit import Asm

KN = "parallel_sum__ssm_conv_h3__dense_activation_relu__prompt_kernel"

KVT = 0x000000
YWS = 0x200000
HWS = 0x400000
FL_KV = 0xC00000
FL_Y = 0xC20000
FL_H = 0xC40000
STAT = 0xC80000
GEN = 0xC90000
STAMP = 0xD00000
W2T = 0xE00000
WS_SIZE = 0x2000000

R1 = 65536
W2R = 49152
KT = 131072
VT = KT + 9216
CX = 148480
YB = 152576
PB = 0
KV = 33280
EX = 90112
RED = 0
LDS_SIZE = 163840

SX, SK, SV, SSH, SHK, SW1, SW2, SO, SWS = [f"s[{4*i}:{4*i+3}]" for i in range(1, 10)]
sTAG = "s[42:43]"
sB = "s2"
sW, sXCD, sJ = "s44", "s45", "s46"
sST, sDT = "s47", "s48"
sXO = ["s49", "s50", "s51", "s52"]
sW1O, sM0 = "s53", "s54"
sHO = "s55"
sD, sCY, sH0, sH1 = "s56", "s57", "s58", "s59"
sT0, sT1, sT2, sT3 = "s60", "s61", "s62", "s63"
sW2O = "s64"
sFK = "s65"
sFH = "s66"
sCNT = "s67"
sHL = "s68"
sKF = "s69"
sEO = "s70"
sPO, sHL2 = "s40", "s41"
sU0, sU1, sU2 = "s71", "s3", "s72"
sHK, sST2 = "s73", "s74"
sSTAMP = 76


def V(i, n=1):
    return f"v{i}" if n == 1 else f"v[{i}:{i+n-1}]"


def A(i, n=1):
    return f"a{i}" if n == 1 else f"a[{i}:{i+n-1}]"


vL, vL16, vXO, vW0, vW1 = 1, 2, 3, 4, 5
vXA = [6, 7]
vXR = [8, 9, 10, 11]
vA = [[12, 13], [14, 15], [16, 17], [18, 19]]
vCA, vH2 = 20, 21
vTAG = 22
vP = 24
vPO = 26
RING = 40
ACC = 64
XR = 128
HK = 96
aSEL, aM, aC = 224, 228, 232
aY = 224
ACC2 = 192


def hslot(k, sb):
    return 40 + 8 * (k % 19) + 4 * sb


class Gen:
    def __init__(self, **o):
        self.o = dict(diag=False, codepf=True, nt="k v w2r hk")
        self.o.update(o)
        self.a = Asm()
        self.a.drop = self.o.get("drop", [])
        self.slow = []
        self.nst = 0
        self.names = []
        self.load = []

    def pol(self, name, base=""):
        p = self.o.get("pol_" + name)
        if p is None:
            p = base + (" nt" if name in self.o["nt"].split() else "")
        p = p.strip()
        return " " + p if p else ""

    def stamp(self, name):
        if not self.o["diag"]:
            return
        grp = name.split(".")[0] if "." in name else "main"
        if name not in ("start", "end") and grp not in self.o["diag"]:
            return
        i = self.nst
        assert i < 64, name
        r = sSTAMP + 2 * (i % 8)
        if i >= 6:
            self.a.raw(f"    v_writelane_b32 v39, s{sSTAMP + 2*((i-6) % 8)}, {i-6}")
        self.a.raw(f"    {'s_memtime' if self.o.get('clk') else 's_memrealtime'} s[{r}:{r+1}]")
        self.names.append(name)
        self.nst += 1

    def T(self, text, tag=None):
        groups = []
        for line in text.strip().split("\n"):
            line = line.strip()
            if not line or line.startswith(";"):
                continue
            if line.startswith("+"):
                groups[-1].append(line[1:].strip())
            else:
                groups.append([line])
        return [(lambda g=g: [self.a(x, tag) for x in g]) for g in groups]

    def W(self, *tags):
        return [lambda: self.a.wait(*tags)]

    @staticmethod
    def join(*lists):
        fs = [f for l in lists for f in l]
        return [lambda: [f() for f in fs]]

    @staticmethod
    def run(items):
        for f in items:
            f()

    @staticmethod
    def place(fill, items, g0, per=1.0):
        g = g0
        for i, f in enumerate(items):
            g = g0 + int(i / per)
            fill.setdefault(g, []).append(f)
        return g

    def gap(self, fill, g, phase):
        n0 = len(self.a.out)
        for f in fill.pop(g, []):
            f()
        return len(self.a.out) - n0

    def flag_store(self, soff):
        return self.T(f"""
        s_mov_b64 exec, 1
        +buffer_store_dwordx2 {V(vTAG,2)}, off, {SWS}, {soff} sc1
        +s_mov_b64 exec, -1""")

    def poll_issue(self, imm=0):
        return self.T(f"buffer_load_dwordx2 {V(vP,2)}, {V(vPO)}, {SWS}, {sPO} offen offset:{imm} sc1")

    def poll_check(self, name, imm=0):
        def f():
            a = self.a
            a(f"v_cmp_ne_u64 vcc, {sTAG}, {V(vP,2)}")
            a(f"s_cbranch_vccnz L_slow_{name}")
            a.label(f"L_back_{name}")
            self.slow.append(f"""L_slow_{name}:
    s_mov_b32 {sCNT}, 0
L_spin_{name}:
    buffer_load_dwordx2 {V(vP,2)}, {V(vPO)}, {SWS}, {sPO} offen offset:{imm} sc1
    s_add_u32 {sCNT}, {sCNT}, 1
    s_cmp_gt_u32 {sCNT}, 20000
    s_waitcnt vmcnt(0)
    s_cbranch_scc1 L_back_{name}
    v_cmp_ne_u64 vcc, {sTAG}, {V(vP,2)}
    s_cbranch_vccnz L_spin_{name}
    s_branch L_back_{name}
""")
        return [f]

    def prologue(self):
        a = self.a
        a(f"""
        s_cmp_ge_u32 s2, 0x100
        s_cbranch_scc1 L_end
        s_load_dwordx2 s[8:9], s[0:1], 8
        s_load_dwordx2 s[12:13], s[0:1], 16
        s_load_dwordx2 s[16:17], s[0:1], 24
        s_load_dwordx2 s[4:5], s[0:1], 0
        s_load_dwordx2 s[24:25], s[0:1], 56
        s_load_dwordx2 s[36:37], s[0:1], 88
        s_load_dwordx2 s[20:21], s[0:1], 32
        s_load_dwordx2 s[40:41], s[0:1], 40
        s_load_dwordx2 s[28:29], s[0:1], 64
        s_load_dwordx2 s[32:33], s[0:1], 72
        """)
        self.stamp("start")
        if self.o["codepf"]:
            a(f"""
            s_getpc_b64 s[60:61]
            L_pc:
            v_lshlrev_b32 v28, 7, v0
            v_min_u32 v28, L_codeend-L_pc-4, v28
            v_mov_b32 v29, s61
            v_add_co_u32 v28, vcc, s60, v28
            v_lshrrev_b32 v27, 6, v0
            v_and_b32 {V(vL)}, 63, v0
            v_addc_co_u32 v29, vcc, 0, v29, vcc
            global_load_dword a255, v[28:29], off
            """)
        else:
            a(f"""
            v_lshrrev_b32 v27, 6, v0
            v_and_b32 {V(vL)}, 63, v0
            """)
        a(f"""
        s_and_b32 {sXCD}, s2, 7
        s_lshr_b32 {sJ}, s2, 3
        v_readfirstlane_b32 {sW}, v27
        s_mov_b32 s10, 0x200000
        s_mov_b32 s11, 0x20000
        s_mov_b64 s[14:15], s[10:11]
        s_mov_b64 s[22:23], s[10:11]
        s_mov_b64 s[34:35], s[10:11]
        s_mov_b32 s18, 0x1000
        s_mov_b32 s19, s11
        s_mov_b32 s7, s11
        s_mov_b32 s31, s11
        s_mov_b32 s27, s11
        s_mov_b32 s38, {WS_SIZE}
        s_mov_b32 s39, s11
        s_cmp_lt_u32 {sJ}, 28
        s_cselect_b32 s26, 0x1c0000, 0
        s_cselect_b32 s6, s10, 0
        s_mov_b32 s30, s26
        s_lshr_b32 {sT0}, {sJ}, 3
        s_lshl2_add_u32 {sST}, {sXCD}, {sT0}
        s_and_b32 {sDT}, {sJ}, 7
        v_lshrrev_b32 v27, 3, {V(vL)}          ; l>>3
        v_and_b32 v28, 7, {V(vL)}              ; l&7
        v_lshrrev_b32 v29, 4, {V(vL)}          ; l>>4
        v_lshrrev_b32 v30, 5, {V(vL)}          ; l>>5
        v_lshlrev_b32 v31, 10, v27             ; (l>>3)*1024
        v_lshl_or_b32 {V(vXO)}, v28, 4, v31
        v_lshlrev_b32 v32, 5, v30
        v_xor_b32 v32, {V(vXO)}, v32
        v_xor_b32 v33, 64, v32
        v_add_u32 v33, 7168, v33
        s_lshl_b32 {sT0}, {sST}, 16
        s_lshl_b32 {sT1}, {sW}, 14
        s_lshl_b32 {sT2}, {sDT}, 7
        s_add_u32 {sT0}, {sT0}, {sT2}
        s_add_u32 {sEO}, {sT0}, {sT1}
        s_lshl_b32 {sT1}, {sW}, 10
        s_add_u32 {sT0}, {sT0}, {sT1}
        s_sub_u32 {sT0}, {sT0}, 4096
        v_xor_b32 v34, 6, v28
        v_lshlrev_b32 v34, 4, v34
        v_add_u32 v34, {sT0}, v34
        s_lshl_b32 {sT1}, {sW}, 11
        s_add_u32 m0, {sT1}, {KT + 1024}
        s_lshl_b32 {sT2}, {sW}, 7
        s_lshl_b32 {sT3}, {sDT}, 9
        s_add_u32 {sT3}, {sT3}, {sT2}
        v_and_b32 v35, 15, {V(vL)}             ; l&15
        v_lshlrev_b32 v36, 3, v35
        v_and_b32 v37, 1, v29
        v_lshlrev_b32 v37, 6, v37
        v_xor_b32 v20, {V(vXO)}, v37
        v_add_u32 v21, 7168, v20
        s_lshl_b32 {sM0}, {sW}, 12
        s_cmp_ge_u32 {sJ}, 14
        s_cselect_b32 {sU0}, {27*65536}, 0
        s_lshl_b32 {sU1}, {sJ}, 17
        s_sub_u32 {sU1}, {sU1}, {sU0}
        s_lshl2_add_u32 {sU1}, {sM0}, {sU1}
        s_lshl_b32 {sU0}, {sXCD}, 7
        s_add_u32 {sU1}, {sU1}, {sU0}
        """)
        nt = self.pol("k")
        a(f"buffer_load_dwordx4 v32, {SK}, {sEO} offen{nt} lds", "a1")
        self.stamp("pro.args")
        a(f"buffer_load_dwordx4 v33, {SK}, {sEO} offen offset:1024{nt} lds", "a1")
        a(f"s_add_u32 m0, {sT1}, {VT}")
        a(f"buffer_load_dwordx2 {V(RING,2)}, v36, {SSH}, {sT3} offen", "a1")
        nt = self.pol("v")
        a(f"buffer_load_dwordx4 v32, {SV}, {sEO} offen{nt} lds", "a1")
        a(f"buffer_load_dwordx4 v33, {SV}, {sEO} offen offset:1024{nt} lds", "a1")
        a(f"s_add_u32 m0, {sT2}, {KT + 512}")
        a("s_mov_b64 exec, 0xff")
        a(f"buffer_load_dwordx4 v34, {SK}, 0 offen lds", "a1")
        a("s_mov_b64 exec, -1")
        a(f"s_add_u32 m0, {sM0}, {W2R}")
        a(f"""
        s_lshr_b32 {sT0}, {sXCD}, 1
        """)
        nt = self.pol("w2r")
        a(f"buffer_load_dwordx4 v20, {SW2}, {sU1} offen{nt} lds", "w2r")
        a(f"buffer_load_dwordx4 v21, {SW2}, {sU1} offen offset:1024{nt} lds", "w2r")
        a(f"""
        s_and_b32 {sT1}, {sJ}, 3
        s_lshl2_add_u32 {sT0}, {sT0}, {sT1}         ; rb
        s_lshl2_add_u32 {sT0}, {sT0}, {sW}
        s_lshr_b32 {sT1}, {sT0}, 1
        s_lshl_b32 {sT1}, {sT1}, 16
        s_and_b32 {sT2}, {sW}, 1
        s_lshl_b32 {sT2}, {sT2}, 13
        s_add_u32 {sXO[0]}, {sT1}, {sT2}
        s_add_u32 {sXO[1]}, {sXO[0]}, {16384-1024}
        s_add_u32 {sXO[2]}, {sXO[1]}, {16384-1024}
        s_add_u32 {sXO[3]}, {sXO[2]}, {16384-1024}
        v_lshlrev_b32 v37, 4, v29
        v_xor_b32 {V(vXA[0])}, {V(vXO)}, v37
        v_xor_b32 {V(vXA[1])}, 64, {V(vXA[0])}
        s_and_b32 {sT2}, {sXCD}, 1
        s_mul_i32 {sT2}, {sT2}, 7
        s_lshr_b32 {sT3}, {sJ}, 2
        s_add_u32 {sT2}, {sT2}, {sT3}               ; ft
        s_mul_i32 {sW1O}, {sW}, {16*3584}
        s_lshl_b32 {sT3}, {sT2}, 8
        s_add_u32 {sW1O}, {sW1O}, {sT3}
        v_mul_u32_u24 v38, 2560, v27
        v_add_u32 {V(vW0)}, v20, v38
        v_add_u32 {V(vW1)}, {8*3584-1024}, {V(vW0)}
        """)
        return self.T(f"""
        s_mul_i32 {sFH}, {sT0}, 14
        s_add_u32 {sFH}, {sFH}, {sT2}
        s_lshl_b32 {sFH}, {sFH}, 8
        s_add_u32 {sFH}, {sFH}, {FL_H}
        s_mul_i32 {sHO}, {sT0}, 112
        s_add_u32 {sHO}, {sHO}, {sT2}
        s_lshl_b32 {sHO}, {sHO}, 10
        s_add_u32 {sHO}, {sHO}, {HWS}
        s_lshr_b32 {sT0}, {sW}, 1
        s_lshl1_add_u32 {sT0}, s2, {sT0}
        s_lshl_b32 {sHK}, {sT0}, 12
        s_lshl_b32 {sT1}, s2, 2
        s_mov_b32 {sT2}, {GEN}
        s_load_dwordx2 s[58:59], s[20:21], {sHK}
        s_load_dword {sD}, s[40:41], {sT1}
        s_load_dwordx2 {sTAG}, s[36:37], {sT2}
        s_and_b32 {sT1}, {sW}, 1
        s_lshl_b32 {sT1}, {sT1}, 2
        s_sub_u32 {sHK}, {sHK}, {sT1}
        s_add_u32 {sHK}, {sHK}, 8
        s_lshl2_add_u32 {sFK}, s2, {sW}
        s_lshl_b32 {sKF}, {sFK}, 11
        s_lshl_b32 {sFK}, {sFK}, 7
        s_add_u32 {sFK}, {sFK}, {FL_KV}
        v_lshlrev_b32 {V(vL16)}, 4, {V(vL)}
        """)

    def ld_x(self, c):
        L = []
        for i in range(4):
            t = f"buffer_load_dwordx4 {V(vXA[i&1])}, {SX}, {sXO[i]} offen offset:{1024*i + 128*c}{self.pol('x')} lds"
            if i == 0:
                t = f"s_add_u32 m0, {sM0}, {R1 + (c & 3)*16384 - 128*c}\n+" + t
            L += self.T(t, f"x{c}")
        if c >= 4:
            L[0] = self.join(self.W(f"xr{c-4}"), [L[0]])[0]
        return L

    def ld_w1(self, n):
        c = n & 7
        adv = (128 - 7*64*3584) if n == 7 else 64*3584
        L = self.T(f"""
        s_add_u32 m0, {sM0}, {(n >> 3)*R1 + (c >> 1)*16384 + (c & 1)*2048}
        +buffer_load_dwordx4 {V(vW0)}, {SW1}, {sW1O} offen{self.pol('w1')} lds
        buffer_load_dwordx4 {V(vW1)}, {SW1}, {sW1O} offen offset:1024{self.pol('w1')} lds
        """ + (f"+s_add_u32 {sW1O}, {sW1O}, {adv & 0xffffffff}" if n < 15 else ""), f"w{n}")
        if n >= 8 and n % 2 == 0:
            L[0] = self.join(self.W(f"xr{4 + (n-8)//2}"), [L[0]])[0]
        if n == 6:
            L[0] = self.join(self.W("bounce"), [L[0]])[0]
        return L

    def rd_x(self, c):
        L = self.T("\n".join(f"ds_read_b128 {V(XR+16*c+4*tt,4)}, {V(vXR[tt])} offset:{(c & 3)*16384}" for tt in range(4)), f"xr{c}")
        L[0] = self.join(self.W(f"x{c}"), [L[0]])[0]
        return L

    def addr_b1(self):
        t = f"""
        v_lshrrev_b32 v29, 4, {V(vL)}
        v_lshrrev_b32 v30, 5, {V(vL)}
        v_bfe_u32 v31, {V(vL)}, 1, 3
        v_xor_b32 v31, v31, v30
        v_lshlrev_b32 v31, 4, v31
        v_and_b32 v32, 31, {V(vL)}
        v_lshl_add_u32 v31, v32, 7, v31
        s_add_u32 {sT0}, {sM0}, {R1}
        v_add_u32 v31, {sT0}, v31
        v_bfe_u32 v32, {V(vL)}, 2, 2          ; r
        v_and_b32 v33, 3, {V(vL)}             ; c
        v_bfe_u32 v35, {V(vL)}, 3, 1          ; (r>>1)&1
        v_lshlrev_b32 v35, 6, v35
        v_lshl_add_u32 v35, v32, 7, v35
        v_and_b32 v34, 1, v29
        v_lshl_add_u32 v35, v34, 5, v35
        v_lshl_add_u32 v35, v33, 3, v35
        v_lshl_add_u32 v34, v30, 10, v35
        v_lshl_add_u32 v38, v30, 9, v35
        s_add_u32 {sT0}, {sM0}, {W2R}
        v_add_u32 v38, {sT0}, v38
        """
        for tt in range(4):
            t += f"""
            s_add_u32 {sT0}, {sW}, {tt}
            s_and_b32 {sT0}, {sT0}, 3
            s_lshl_b32 {sT1}, {sT0}, 5
            s_lshl_b32 {sT0}, {sT0}, 12
            v_xor_b32 {V(vXR[tt])}, {sT1}, v31
            v_add_u32 {V(vA[tt][0])}, {sT0}, v34
            v_xor_b32 {V(vA[tt][1])}, 64, {V(vA[tt][0])}
            """
        t += f"""
        v_lshrrev_b32 v31, 2, {V(vL)}
        v_xor_b32 v31, v31, v29
        v_and_b32 v31, 1, v31
        v_add_u32 v31, -1, v31
        v_and_b32 v31, 0x3f803f80, v31
        v_accvgpr_write_b32 {A(aSEL)}, v31
        v_accvgpr_write_b32 {A(aSEL+1)}, v31
        v_accvgpr_write_b32 {A(aSEL+2)}, v31
        v_accvgpr_write_b32 {A(aSEL+3)}, v31
        """
        return self.T(t)

    def addr_a1(self):
        return self.T(f"""
        v_lshrrev_b32 v27, 4, {V(vL)}         ; G
        v_bfe_u32 v28, {V(vL)}, 2, 2          ; r
        v_and_b32 v29, 3, {V(vL)}             ; c
        v_lshrrev_b32 v30, 2, {V(vL)}         ; 4G + r
        v_lshlrev_b32 v30, 9, v30
        v_lshl_add_u32 v30, v29, 3, v30
        v_xor_b32 v31, {sW}, v28
        v_lshl_add_u32 v31, v31, 5, v30
        v_add_u32 v31, {KT + 1024}, v31
        v_add_u32 v32, 3, v28
        v_and_b32 v32, 3, v32
        v_xor_b32 v32, {sW}, v32
        v_lshl_add_u32 v32, v32, 5, v30
        v_add_u32 v32, {KT + 512}, v32
        s_add_u32 {sT1}, {sM0}, {W2R}
        v_bfe_u32 v33, {V(vL)}, 1, 3          ; i>>1
        v_mul_u32_u24 v33, 272, v33
        v_lshl_add_u32 v33, v27, 4, v33
        v_add_u32 v33, {sT1}, v33
        v_and_b32 v34, 1, {V(vL)}
        v_lshlrev_b32 v34, 1, v34
        s_and_b32 {sT0}, {sST}, 3
        v_xor_b32 v34, {sT0}, v34
        v_xor_b32 v35, 1, v34
        v_lshl_add_u32 v34, v34, 6, v33
        v_lshl_add_u32 v35, v35, 6, v33
        v_and_b32 v36, 15, {V(vL)}
        v_lshlrev_b32 v36, 4, v36
        v_mul_u32_u24 v37, 272, v27
        v_add3_u32 v37, v37, v36, {sT1}
        v_lshl_add_u32 v36, v27, 13, v36
        v_xor_b32 v33, 64, v38
        s_lshl2_add_u32 {sT0}, {sXCD}, {sW}
        s_mul_i32 {sT0}, {sT0}, 28
        s_add_u32 {sT0}, {sT0}, {sJ}
        s_lshl_b32 {sT0}, {sT0}, 11
        s_add_u32 {sT0}, {sT0}, {W2T}
        s_cmp_lt_u32 {sJ}, 28
        +s_cselect_b32 {sU0}, {sT0}, {WS_SIZE}      ; w2 fragment store (spare workgroups have none)
        s_lshl2_add_u32 {sT0}, {sDT}, {sW}
        s_lshl_b32 {sT1}, {sT0}, 16
        s_lshl_b32 {sT2}, {sST}, 8
        s_add_u32 {sU1}, {sT1}, {sT2}
        s_add_u32 {sU2}, {sU1}, {4*8192}
        s_mul_i32 {sW2O}, {sT0}, {28*2048}
        s_add_u32 {sW2O}, {sW2O}, {W2T}
        """)

    def a1(self, fill):
        a = self.a
        a.wait("a1")
        a("s_barrier")
        self.stamp("a1data")
        self.stamp("pro.a1data")
        KR, VR, KF, VF, acc, WF, U, WT = 192, 206, 214, 242, 250, 44, 48, 56
        for s in range(-3, 4):
            base, imm = ("v31", s * 128) if s >= 0 else ("v32", (s + 4) * 128)
            a(f"ds_read_b64_tr_b16 {V(KR+2*(s+3),2)}, {base} offset:{imm}")
        for r in range(4):
            a(f"ds_read_b64_tr_b16 {V(VR+2*r,2)}, v31 offset:{VT-KT-1024+r*128}")
        a.wait("w2r")
        for nb in range(2):
            for jj in range(2):
                a(f"ds_read_b64_tr_b16 {V(WT+4*nb+2*jj,2)}, {'v33' if nb else 'v38'} offset:{1024*jj}")
        ops = []
        def unpack(dst, src):
            return [f"v_lshlrev_b32 {V(dst)}, 16, {V(src)}", f"v_and_b32 {V(dst+1)}, 0xffff0000, {V(src)}",
                    f"v_lshlrev_b32 {V(dst+2)}, 16, {V(src+1)}", f"v_and_b32 {V(dst+3)}, 0xffff0000, {V(src+1)}"]
        ops += unpack(WF, RING)
        done = set()
        for rho in range(4):
            for j in range(3, -1, -1):
                s = rho - j
                if s not in done:
                    ops += unpack(KF + 4 * (s + 3), KR + 2 * (s + 3))
                    done.add(s)
            if rho == 0:
                for nb in range(2):
                    ops.append(f"buffer_store_dwordx4 {V(WT+4*nb,4)}, {V(vL16)}, {SWS}, {sU0} offen offset:{1024*nb}{self.pol('w2st', 'sc1')}")
            vf = VF + 4 * (rho & 1)
            ops += unpack(vf, VR + 2 * rho)
            for j in range(3, -1, -1):
                s = rho - j
                wp = V(WF + (j & 2), 2)
                lo = j & 1
                for h in range(2):
                    k = V(KF + 4 * (s + 3) + 2 * h, 2)
                    d = V(acc + 2 * h, 2)
                    if j == 3:
                        ops.append(f"v_pk_mul_f32 {d}, {k}, {wp} op_sel:[0,{lo}] op_sel_hi:[1,{lo}]")
                    else:
                        ops.append(f"v_pk_fma_f32 {d}, {k}, {wp}, {d} op_sel:[0,{lo},0] op_sel_hi:[1,{lo},1]")
            for h in range(2):
                ops.append(f"v_pk_mul_f32 {V(acc+2*h,2)}, {V(acc+2*h,2)}, {V(vf+2*h,2)}")
            for h in range(2):
                ops.append(f"v_cvt_pk_bf16_f32 {V(U+2*rho+h)}, {V(acc+2*h)}, {V(acc+2*h+1)}")
            if rho & 1:
                ops.append(f"ds_write_b128 {'v34' if rho == 1 else 'v35'}, {V(U+4*(rho>>1),4)}")
        nf = len(fill)
        k = 0
        for n, op in enumerate(ops):
            a(op, "kvst")
            while k < nf and (k + 1) * len(ops) <= (n + 1) * (nf + 1):
                fill[k]()
                k += 1
        a(f"ds_read_b128 {V(U,4)}, v37", "bounce")
        a(f"ds_read_b128 {V(U+4,4)}, v37 offset:1088", "bounce")
        for f in fill[k:]:
            f()
        a(f"""
        s_add_u32 s42, s42, 0x7f4a7c15
        s_addc_u32 s43, s43, 0x9e3779b9
        v_mov_b32 {V(vTAG)}, s42
        v_mov_b32 {V(vTAG+1)}, s43
        """)
        a(f"buffer_store_dwordx4 {V(U,4)}, v36, {SWS}, {sU1} offen{self.pol('kvst', 'sc1')}", "kvst")
        a(f"buffer_store_dwordx4 {V(U+4,4)}, v36, {SWS}, {sU2} offen{self.pol('kvst', 'sc1')}", "kvst")

    def kv_flag(self):
        return self.join(self.W("kvst"), self.flag_store(sFK))

    def w_frag(self, s, fb):
        c, tt = (s >> 2) & 7, s & 3
        r = RING + 8 * (s % 3) + 4 * fb
        for jj in range(2):
            self.a(f"ds_read_b64_tr_b16 {V(r+2*jj,2)}, {V(vA[tt][fb])} offset:{(c>>1)*16384 + (c&1)*2048 + jj*512}", f"f{s}")

    def b1(self, fill):
        a = self.a
        for s in range(64):
            hf, c, tt = s >> 5, (s >> 2) & 7, s & 3
            a.phase = f"p{hf+1}"
            x = V(XR + 16 * c + 4 * tt, 4)
            n2 = s + 2
            cnt = []
            for fb in range(2):
                n0 = len(a.out)
                acc = V(ACC + 32 * hf + 16 * fb, 16)
                fr = V(RING + 8 * (s % 3) + 4 * fb, 4)
                first = (c == 0 and tt == 0)
                if fb == 0:
                    a.wait(f"f{s}")
                a(f"v_mfma_f32_32x32x16_bf16 {acc}, {fr}, {x}, {'0' if first else acc}")
                if n2 < 64:
                    if fb == 0 and tt == 2:
                        a.wait(f"w{n2 >> 2}")
                    if fb == 0 and tt == 3:
                        a("s_barrier")
                    if 32 <= n2 < 36:
                        a(f"v_add_u32 {V(vA[n2&3][fb])}, 0x10000, {V(vA[n2&3][fb])}")
                    self.w_frag(n2, fb)
                self.gap(fill, 2 * s + fb, "b1")
                if tt == 0:
                    cc = A(aC + 8 * hf + 4 * fb, 4)
                    a(f"v_mfma_f32_16x16x32_bf16 {cc}, {A(aSEL,4)}, {fr}, {'0' if c == 0 else cc}")
                if hf == 0 and fb == 1:
                    mm = A(aM, 4)
                    a(f"v_mfma_f32_16x16x32_bf16 {mm}, {A(aSEL,4)}, {x}, {'0' if first else mm}")
                cnt.append(len(a.out) - n0)
            self.load.append(("b1", s, cnt))
            self.stamp(f"s{hf+1}.{s}")
            if tt == 3:
                self.stamp(f"p{hf+1}.c{c}")
            if s == 31:
                self.stamp("pass1")
        assert not fill, fill.keys()

    def c_publish(self, hf):
        return self.T(f"""
        v_accvgpr_read_b32 v27, {A(aC+8*hf)}
        v_accvgpr_read_b32 v28, {A(aC+8*hf+4)}
        s_lshl_b32 {sT0}, {sW}, 3
        s_add_u32 {sT0}, {sT0}, {CX + 2048*hf}
        v_cmp_gt_u32 vcc, 32, {V(vL)}
        +v_lshlrev_b32 v30, 5, {V(vL)}
        +v_add_u32 v30, {sT0}, v30
        +v_cndmask_b32 v27, v28, v27, vcc
        v_and_b32 v28, 0xffff0000, v27
        v_sub_f32 v27, v27, v28
        v_and_b32 v29, 0xffff0000, v27
        v_sub_f32 v27, v27, v29
        v_lshrrev_b32 v28, 16, v28
        v_or_b32 v28, v28, v29
        v_lshrrev_b32 v29, 16, v27
        ds_write_b64 v30, v[28:29]
        """, f"cx{hf}")

    def m_finish(self):
        return self.T(f"""
        v_accvgpr_read_b32 v36, {A(aM)}
        v_mul_f32 v36, 0xbb000000, v36
        v_cvt_pk_bf16_f32 v36, v36, v36
        v_accvgpr_write_b32 {A(aM)}, v36
        v_accvgpr_write_b32 {A(aM+1)}, v36
        v_accvgpr_write_b32 {A(aM+2)}, v36
        v_accvgpr_write_b32 {A(aM+3)}, v36
        """)

    def c_addr(self):
        return self.T(f"""
        v_and_b32 v37, 31, {V(vL)}
        v_lshrrev_b32 v36, 5, {V(vL)}
        v_lshlrev_b32 v37, 5, v37
        v_lshl_add_u32 v37, v36, 4, v37
        v_add_u32 v37, {CX}, v37
        """)

    def c_read(self, hf):
        return self.T(f"""
        ds_read_b128 v[28:31], v37 offset:{2048*hf}
        ds_read_b128 v[32:35], v37 offset:{2048*hf + 1024}
        """)

    def c_apply(self, hf, fb):
        acc = V(ACC + 32 * hf + 16 * fb, 16)
        return self.T(f"v_mfma_f32_32x32x16_bf16 {acc}, {V(28+4*fb,4)}, {A(aM,4)}, {acc}")

    def h_store(self, hf, q):
        r = ACC + 32 * hf + 8 * q
        t = "\n".join(f"v_cvt_pk_bf16_f32 {V(r+i)}, {V(r+2*i)}, {V(r+2*i+1)}" for i in range(4)) + "\n"
        t += "\n".join(f"v_pk_max_i16 {V(r+i)}, {V(r+i)}, 0" for i in range(4)) + "\n"
        t += f"s_add_u32 {sT0}, {sHO}, {(hf*56 + q*14)*1024}\n"
        t += f"+buffer_store_dwordx4 {V(r,4)}, {V(vL16)}, {SWS}, {sT0} offen{self.pol('hst', 'sc1')}"
        if self.o.get("dummy") is not None:
            t += f"\n+s_add_u32 {sT0}, {sT0}, 0x1000000\n+buffer_store_dwordx4 {V(r,4)}, {V(vL16)}, {SWS}, {sT0} offen {self.o['dummy']}"
        return self.T(t, f"hst{hf}")

    def h_flag(self, hf):
        if hf == 0:
            return self.join(self.W("hst0"), self.flag_store(sFH))
        return self.join(self.T(f"s_add_u32 {sT0}, {sFH}, 128"), self.W("hst1"), self.flag_store(sT0))

    def ld_w2(self):
        L = []
        for i in range(56):
            t = f"buffer_load_dwordx4 {A(4*i,4)}, {V(vL16)}, {SWS}, {sW2O} offen offset:{1024*(i&3)}{self.pol('w2t', 'sc1')}"
            if i % 4 == 3 and i < 55:
                t += f"\n+s_add_u32 {sW2O}, {sW2O}, 4096"
            L += self.T(t)
        return L

    def ld_hk(self):
        nt = self.pol("hk")
        return self.T("\n".join(f"buffer_load_dwordx4 {V(HK+4*i,4)}, {V(vL16)}, {SHK}, {sHK} offen offset:{1024*i}{nt}" for i in range(4)))

    def p_head(self):
        x = HK + 16
        return self.T(f"""
        s_lshr_b32 {sT0}, {sW}, 1
        s_lshl_b32 {sT0}, {sT0}, 4
        s_lshr_b32 {sT0}, {sD}, {sT0}
        s_lshl_b32 {sT0}, {sT0}, 16
        s_lshl_b32 {sT1}, {sH0}, 16
        v_mov_b32 {V(x)}, {sT0}
        v_add_f32 {V(x)}, {sT1}, {V(x)}
        v_cvt_pk_bf16_f32 {V(x)}, {V(x)}, {V(x)}
        s_mul_i32 {sT2}, {sW}, 8256
        v_mov_b32 {V(x+4)}, 0
        v_readfirstlane_b32 {sT0}, {V(x)}
        v_mov_b32 {V(x+5)}, 0
        v_mov_b32 {V(x+6)}, 0
        v_mov_b32 {V(x+7)}, 0
        s_and_b32 {sT0}, {sT0}, 0xffff
        s_and_b32 {sT1}, {sH0}, 0xffff0000
        s_or_b32 {sT0}, {sT0}, {sT1}            ; (h0 + D, h1)
        s_bitcmp1_b32 {sW}, 0
        +s_cselect_b32 {sCY}, {sT0}, {sH1}      ; dword 3 of chunk 1
        +s_cselect_b32 {sT0}, 0, {sT0}          ; dword 2 of chunk 1
        s_lshl_b32 {sT1}, {sT0}, 16
        s_lshl_b32 {sT3}, {sCY}, 16
        v_writelane_b32 {V(x+6)}, {sT0}, 1
        s_lshr_b32 {sT0}, {sT0}, 16
        v_writelane_b32 {V(x+7)}, {sCY}, 1
        s_or_b32 {sT3}, {sT3}, {sT0}
        v_writelane_b32 {V(x+6)}, {sT1}, 3
        v_writelane_b32 {V(x+7)}, {sT3}, 3
        v_and_b32 {V(x)}, 1, {V(vL)}
        v_lshrrev_b32 {V(x+1)}, 1, {V(vL)}
        v_mul_u32_u24 {V(x+1)}, 4128, {V(x+1)}
        v_lshl_add_u32 {V(x)}, {V(x)}, 4, {V(x+1)}
        v_add_u32 {V(x)}, {sT2}, {V(x)}
        v_add_u32 {V(x+2)}, {sT2}, {V(vL16)}
        v_lshlrev_b32 {V(x+1)}, 2, v0
        """)

    def p_head2(self):
        x = HK + 16
        return self.T(f"""
        s_mov_b64 exec, 15
        +ds_write_b128 {V(x)}, {V(x+4,4)} offset:{PB}
        +s_mov_b64 exec, -1
        ds_write_b32 {V(x+1)}, {V(x+4)} offset:{KV}
        """, "pw")

    def p_shift(self, i):
        r = HK + 4 * i
        x = HK + 16
        d = HK + 24 + 4 * (i & 1)
        return self.T(f"""
        v_mov_b32 {V(x+3)}, {sCY}
        v_readlane_b32 {sCY}, {V(r+3)}, 63
        v_alignbyte_b32 {V(d+1)}, {V(r+1)}, {V(r)}, 2
        v_mov_b32_dpp {V(x+3)}, {V(r+3)} wave_shr:1 row_mask:0xf bank_mask:0xf
        v_alignbyte_b32 {V(d+2)}, {V(r+2)}, {V(r+1)}, 2
        v_alignbyte_b32 {V(d+3)}, {V(r+3)}, {V(r+2)}, 2
        v_alignbyte_b32 {V(d)}, {V(r)}, {V(x+3)}, 2
        """)

    def p_write(self, i, ph):
        x = HK + 16
        src = HK + 24 + 4 * (i & 1) if ph else HK + 4 * i
        return self.T(f"ds_write_b128 {V(x+2)}, {V(src,4)} offset:{PB + 4128*ph + 32 + 1024*i}", "pw")

    def kv_poll_addr(self):
        return self.T(f"""
        v_min_u32 v27, 27, {V(vL)}
        v_lshlrev_b32 v27, 12, v27
        s_lshl2_add_u32 {sT0}, {sDT}, {sW}
        s_lshl_b32 {sT0}, {sT0}, 7
        v_add_u32 v27, {sT0}, v27
        v_and_b32 v28, 3, {V(vL)}
        v_bfe_u32 v29, {V(vL)}, 2, 1
        v_lshlrev_b32 v28, 15, v28
        v_lshl_add_u32 v28, v29, 9, v28
        s_lshr_b32 {sT0}, {sJ}, 2
        s_lshl_b32 {sT0}, {sT0}, 12
        s_and_b32 {sT1}, {sJ}, 3
        s_lshl_b32 {sT1}, {sT1}, 7
        s_add_u32 {sT0}, {sT0}, {sT1}
        s_lshl_b32 {sT1}, {sW}, 10
        s_add_u32 {sT0}, {sT0}, {sT1}
        v_cmp_gt_u32 vcc, 32, {V(vL)}
        +v_add_u32 v28, {sT0}, v28
        +s_mov_b32 {sPO}, {FL_KV}
        +v_cndmask_b32 {V(vPO)}, v28, v27, vcc
        """)

    def kv_fetch(self):
        return self.T(f"""
        s_lshr_b32 {sU0}, {sM0}, 1
        +s_add_u32 m0, {sU0}, {KV + 1024}
        +buffer_load_dwordx4 {V(vL16)}, {SWS}, {sKF} offen{self.pol('kv', 'sc1')} lds
        +buffer_load_dwordx4 {V(vL16)}, {SWS}, {sKF} offen offset:1024{self.pol('kv', 'sc1')} lds
        """, "kv")

    def conv_addr(self):
        t = f"""
        v_lshrrev_b32 v27, 4, {V(vL)}          ; G
        v_bfe_u32 v28, {V(vL)}, 2, 2           ; r
        v_and_b32 v29, 3, {V(vL)}              ; c
        v_lshl_add_u32 v29, v27, 2, v29
        v_sub_u32 v29, v29, v28
        s_mul_i32 {sT0}, {sW}, 8256
        s_add_u32 {sT0}, {sT0}, {PB + 24}
        v_lshlrev_b32 v29, 3, v29
        v_add_u32 {V(vCA)}, {sT0}, v29
        v_and_b32 v28, 15, {V(vL)}
        v_sub_u32 v28, v28, v27                ; a - G
        v_add_u32 v28, 16, v28
        v_lshrrev_b32 v27, 2, v28
        v_and_b32 v28, 3, v28
        v_lshlrev_b32 v28, 4, v28
        v_lshl_add_u32 v28, v27, 8, v28
        """
        for e in range(4):
            t += f"""
            v_add_u32 v29, {-e}, v27
            v_xor_b32 v29, {sW}, v29
            v_and_b32 v29, 3, v29
            v_lshl_add_u32 v29, v29, 6, v28
            v_add_u32 {V(vXR[e])}, {KV - 256*e}, v29
            """
        return self.T(t)

    def conv_reads(self, e):
        base = XR + 64 * (e & 1)
        L = []
        for n in range(8):
            L.append(f"ds_read_b128 {V(base+32+4*n,4)}, {V(vXR[e])} offset:{1024*n}")
            for ph in range(2):
                L.append(f"ds_read_b64_tr_b16 {V(base+4*n+2*ph,2)}, {V(vCA)} offset:{ph*4128 + 128*(4*n+e)}")
        return self.T("\n".join(L), f"cv{e}")

    def conv(self, fill):
        a = self.a
        k = 0
        for e in range(4):
            base = XR + 64 * (e & 1)
            if e < 3:
                self.place(fill, self.conv_reads(e + 1), 36 * e + 2, 0.75)
                prs = sorted([(n, d) for n in range(8) for d in range(8) if n + d < 8], key=lambda p: (max(p), p[0] + p[1]))
            else:
                prs = sorted([(n, d) for n in range(8) for d in range(8) if n + d < 8], key=lambda p: (-(p[0] + p[1]), max(p)))
            seen = set()
            cnt = []
            for i, (n, d) in enumerate(prs):
                n0 = len(a.out)
                acc = A(aY + 4 * (n + d), 4)
                first = (e == 0 and (n + d) not in seen)
                seen.add(n + d)
                a(f"v_mfma_f32_16x16x32_bf16 {acc}, {V(base+4*n,4)}, {V(base+32+4*d,4)}, {'0' if first else acc}")
                self.gap(fill, k, "cv")
                cnt.append(len(a.out) - n0)
                if k % 4 == 3:
                    self.stamp(f"cg.{k}")
                k += 1
            self.load.append(("cv", e, cnt))
            self.stamp(f"cv.e{e}")
        assert not fill, fill.keys()

    def y_addr(self):
        return self.T(f"""
        v_lshrrev_b32 v27, 4, {V(vL)}
        v_and_b32 v28, 15, {V(vL)}
        v_mul_u32_u24 v27, 20, v27
        v_add_lshl_u32 v27, v27, v28, 4
        s_mul_i32 {sT0}, {sW}, 10240
        s_add_u32 {sT0}, {sT0}, {EX}
        v_add_u32 v12, {sT0}, v27
        v_and_b32 v28, 3, {V(vL)}
        v_lshrrev_b32 v29, 2, {V(vL)}
        v_mul_u32_u24 v28, 20, v28
        v_add_lshl_u32 v28, v28, v29, 4
        s_mul_i32 {sT0}, {sW}, 2560
        s_add_u32 {sT0}, {sT0}, {EX}
        v_add_u32 v13, {sT0}, v28
        """)

    def y_write(self, t):
        return self.T(f"ds_write_b128 v12, {A(aY+4*t,4)} offset:{1280*t}", "ex")

    YT = 160
    def y_gather(self):
        R = self.YT
        L = self.join(self.W("ex"), self.T("s_barrier"))
        L += self.T("\n".join(f"ds_read_b128 {V(R+16*t+4*src,4)}, v13 offset:{10240*src + 1280*t}" for t in range(2) for src in range(4)))
        return L

    def y_sum(self, t):
        b = self.YT + 16 * t
        x = ""
        for i in range(4):
            x += f"v_add_f32 {V(b+i)}, {V(b+i)}, {V(b+4+i)}\n"
        for i in range(4):
            x += f"v_add_f32 {V(b+8+i)}, {V(b+8+i)}, {V(b+12+i)}\n"
        for i in range(4):
            x += f"v_cvt_pk_bf16_f32 {V(b+4+i)}, {V(b+i)}, {V(b+8+i)}\n"
        x += f"s_add_u32 {sT0}, {sKF}, {YWS}\n"
        x += f"+buffer_store_dwordx4 {V(b+4,4)}, {V(vL16)}, {SWS}, {sT0} offen offset:{1024*t}{self.pol('yst', 'sc1')}"
        return self.T(x, "yst")

    def y_flag(self):
        return self.join(self.T(f"s_add_u32 {sT0}, {sFK}, {FL_Y - FL_KV}"), self.W("yst"), self.flag_store(sT0))

    def h_poll_addr(self):
        return self.T(f"""
        v_and_b32 v27, 1, {V(vL)}
        v_lshrrev_b32 v28, 1, {V(vL)}
        v_min_u32 v28, 13, v28
        v_mul_u32_u24 v27, 14, v27
        v_add_lshl_u32 {V(vPO)}, v27, v28, 8
        s_mul_i32 {sPO}, {sST}, {28*256}
        s_add_u32 {sPO}, {sPO}, {FL_H}
        s_mul_i32 {sHL}, {sST}, 224
        s_mul_i32 {sT0}, {sW}, 14
        s_add_u32 {sHL}, {sHL}, {sT0}
        s_lshl_b32 {sHL}, {sHL}, 10
        s_add_u32 {sHL}, {sHL}, {HWS}
        v_add_u32 {V(vH2)}, {112*1024}, {V(vL16)}
        """)

    def ld_h(self, order):
        L = []
        cur = None
        for k, sb in order:
            hf, T = divmod(k, 14)
            t = f"buffer_load_dwordx4 {V(hslot(k,sb),4)}, {V(vH2 if sb else vL16)}, {SWS}, {sHL2} offen offset:{1024*(T%4)}{self.pol('h', 'sc1')}"
            if cur != (hf, T // 4):
                cur = (hf, T // 4)
                t = f"s_add_u32 {sHL2}, {sHL}, {(hf*56 + T//4*4)*1024}\n+" + t
            L += self.T(t)
        return L

    def b2(self, order, fill):
        a = self.a
        seen = set()
        cnt = []
        for g, (k, q) in enumerate(order):
            n0 = len(a.out)
            sb, nb = q >> 1, q & 1
            acc = V(ACC2 + 16 * q, 16)
            a(f"v_mfma_f32_32x32x16_bf16 {acc}, {A(8*k+4*nb,4)}, {V(hslot(k,sb),4)}, {acc if q in seen else '0'}")
            seen.add(q)
            self.gap(fill, g, "b2")
            cnt.append(len(a.out) - n0)
            if g % 16 == 15:
                self.load.append(("b2", g, cnt))
                cnt = []
            if g % 2 == 1:
                self.stamp(f"bg.{g}")
            if g % 12 == 11:
                self.stamp(f"b2.g{g}")
        assert not fill, fill.keys()

    EXR, ESR, EYR = 112, 120, 160
    XF, TF, RR = 128, 144, 160

    def y_poll_addr(self):
        return self.T(f"""
        v_and_b32 {V(vPO)}, 31, {V(vL)}
        v_lshlrev_b32 {V(vPO)}, 9, {V(vPO)}
        s_lshl_b32 {sPO}, {sDT}, 14
        s_lshr_b32 {sT3}, {sST}, 3
        s_lshl_b32 {sT3}, {sT3}, 7
        s_add_u32 {sPO}, {sPO}, {sT3}
        s_add_u32 {sPO}, {sPO}, {FL_Y}
        """)

    def ep_loads(self):
        return self.T(f"""
        v_lshrrev_b32 v18, 3, {V(vL)}
        v_lshlrev_b32 v18, 4, v18
        s_lshl_b32 {sT0}, {sST}, 10
        s_lshl_b32 {sT1}, {sW}, 8
        s_add_u32 {sT0}, {sT0}, {sT1}
        s_add_u32 {sST2}, {sT0}, {STAT}
        s_add_u32 {sU1}, {sEO}, 8192
        buffer_load_dwordx4 {V(self.ESR,4)}, v18, {SWS}, {sST2} offen sc1
        buffer_load_dwordx4 {V(self.ESR+4,4)}, v18, {SWS}, {sST2} offen offset:128 sc1
        buffer_load_dwordx4 {V(self.EXR,4)}, {V(vXO)}, {SX}, {sEO} offen{self.pol('xe')}
        buffer_load_dwordx4 {V(self.EXR+4,4)}, {V(vXO)}, {SX}, {sU1} offen{self.pol('xe')}
        """)

    def y_fetch_addr(self):
        return self.T(f"""
        v_lshrrev_b32 v27, 3, {V(vL)}
        v_and_b32 v28, 7, {V(vL)}
        v_lshrrev_b32 v29, 4, {V(vL)}
        v_xor_b32 v29, v28, v29                ; idx
        v_lshrrev_b32 v30, 2, v29
        v_lshl_add_u32 v30, v27, 1, v30
        v_and_b32 v29, 3, v29
        v_lshlrev_b32 v29, 4, v29
        v_lshl_add_u32 v34, v30, 13, v29
        v_xor_b32 v35, 0x2000, v34
        v_add_u32 v35, {16*8192 - 1024}, v35
        s_lshl_b32 {sT0}, {sDT}, 18
        s_lshl_b32 {sT1}, {sST}, 8
        s_lshl_b32 {sT2}, {sW}, 6
        s_add_u32 {sT0}, {sT0}, {sT1}
        s_add_u32 {sT0}, {sT0}, {sT2}
        s_add_u32 {sU2}, {sT0}, {YWS}
        s_lshr_b32 {sU0}, {sM0}, 1
        s_add_u32 {sU0}, {sU0}, {YB}
        s_mov_b32 m0, {sU0}
        v_lshrrev_b32 v27, 5, {V(vL)}
        v_xor_b32 v27, v27, v28
        v_lshlrev_b32 v27, 4, v27
        v_lshl_add_u32 v27, v28, 8, v27
        v_bfe_u32 v28, {V(vL)}, 3, 2
        v_lshl_add_u32 v27, v28, 2, v27
        v_add_u32 v27, {sU0}, v27
        v_xor_b32 v28, 64, v27
        v_xor_b32 v29, 32, v27
        v_xor_b32 v30, 0x60, v27
        """)

    def y_fetch(self):
        return self.T(f"""
        buffer_load_dwordx4 v34, {SWS}, {sU2} offen{self.pol('y', 'sc1')} lds
        buffer_load_dwordx4 v35, {SWS}, {sU2} offen offset:1024{self.pol('y', 'sc1')} lds
        """, "y")

    def y_read(self):
        L = self.T("\n".join(f"ds_read_b32 {V(self.EYR+4*st+e)}, {V(27 + 2*st + (e & 1))} offset:{128*(e >> 1)}" for st in range(2) for e in range(4)))
        L[0] = self.join(self.W("y"), [L[0]])[0]
        return L

    def stat_check(self):
        def f():
            a = self.a
            S = self.ESR
            a(f"v_cmp_ne_u64 vcc, {sTAG}, {V(S+2,2)}")
            a(f"v_cmp_ne_u64 s[60:61], {sTAG}, {V(S+6,2)}")
            a("s_or_b64 vcc, vcc, s[60:61]")
            a("s_cbranch_vccnz L_slow_st")
            a.label("L_back_st")
            self.slow.append(f"""L_slow_st:
    s_mov_b32 {sCNT}, 0
L_spin_st:
    buffer_load_dwordx4 {V(S,4)}, v18, {SWS}, {sST2} offen sc1
    buffer_load_dwordx4 {V(S+4,4)}, v18, {SWS}, {sST2} offen offset:128 sc1
    s_add_u32 {sCNT}, {sCNT}, 1
    s_cmp_gt_u32 {sCNT}, 20000
    s_waitcnt vmcnt(0)
    s_cbranch_scc1 L_back_st
    v_cmp_ne_u64 vcc, {sTAG}, {V(S+2,2)}
    v_cmp_ne_u64 s[60:61], {sTAG}, {V(S+6,2)}
    s_or_b64 vcc, vcc, s[60:61]
    s_cbranch_vccnz L_spin_st
    s_branch L_back_st
""")
        return [f]

    def ep_pre(self, st, e):
        x, y = self.EXR + 4 * st + e, self.EYR + 4 * st + e
        xf, tf = self.XF + 8 * st + 2 * e, self.TF + 8 * st + 2 * e
        m = V(self.ESR + 4 * st)
        return self.T(f"""
        v_lshlrev_b32 {V(xf)}, 16, {V(x)}
        v_and_b32 {V(xf+1)}, 0xffff0000, {V(x)}
        v_lshlrev_b32 v32, 16, {V(y)}
        v_and_b32 v33, 0xffff0000, {V(y)}
        v_sub_f32 {V(tf)}, {V(xf)}, {m}
        v_sub_f32 {V(tf+1)}, {V(xf+1)}, {m}
        v_mul_f32 {V(tf)}, {V(tf)}, v32
        v_mul_f32 {V(tf+1)}, {V(tf+1)}, v33
        """)

    def ep_addr(self):
        return self.T(f"""
        v_and_b32 v36, 31, {V(vL)}
        v_mul_u32_u24 v36, 272, v36
        v_lshrrev_b32 v37, 5, {V(vL)}
        v_lshl_add_u32 v36, v37, 4, v36
        s_mul_i32 {sT0}, {sW}, 17408
        v_add_u32 v15, {sT0}, v36
        v_lshrrev_b32 v36, 3, {V(vL)}
        v_mul_u32_u24 v36, 272, v36
        v_and_b32 v37, 7, {V(vL)}
        v_lshl_add_u32 v36, v37, 5, v36
        s_mul_i32 {sT0}, {sW}, {8*272}
        v_add_u32 v16, {sT0}, v36
        """)

    def red_write(self, q):
        sb, nb = q >> 1, q & 1
        return self.T("\n".join(f"ds_write_b128 v15, {V(ACC2+16*q+4*g,4)} offset:{RED + sb*8704 + nb*128 + g*32}" for g in range(4)), f"red{sb}")

    def red_read(self, st):
        L = self.join(self.W(f"red{st}"), self.T("s_barrier"))
        L += self.T("\n".join(f"ds_read_b128 {V(self.RR+8*src+4*hh,4)}, v16 offset:{RED + src*17408 + st*8704 + hh*16}" for src in range(4) for hh in range(2)))
        return L

    def finish(self, st, packed):
        tf, xf, R = self.TF + 8 * st, self.XF + 8 * st, self.RR
        t = ""
        for src in range(4):
            if packed:
                for p in range(4):
                    t += f"v_pk_add_f32 {V(tf+2*p,2)}, {V(tf+2*p,2)}, {V(R+8*src+2*p,2)}\n"
            else:
                for p in range(8):
                    t += f"v_add_f32 {V(tf+p)}, {V(tf+p)}, {V(R+8*src+p)}\n"
        if packed:
            rr = V(self.ESR + 4 * st, 2)
            for p in range(4):
                t += f"v_pk_fma_f32 {V(tf+2*p,2)}, {V(tf+2*p,2)}, {rr}, {V(xf+2*p,2)} op_sel:[0,1,0] op_sel_hi:[1,1,1]\n"
        else:
            for p in range(8):
                t += f"v_fma_f32 {V(tf+p)}, {V(tf+p)}, {V(self.ESR+4*st+1)}, {V(xf+p)}\n"
        for p in range(4):
            t += f"v_cvt_pk_bf16_f32 {V(xf+p)}, {V(tf+2*p)}, {V(tf+2*p+1)}\n"
        t += f"buffer_store_dwordx4 {V(xf,4)}, {V(vXO)}, {SO}, {sU1 if st else sEO} offen{self.pol('out')}"
        return self.T(t)

    def stats_loads(self):
        a = self.a
        a(f"""
        s_mov_b32 s6, 0x200000
        s_and_b32 {sT1}, {sJ}, 3
        s_lshl2_add_u32 {sT1}, {sXCD}, {sT1}
        s_lshl2_add_u32 {sT1}, {sT1}, {sW}
        s_lshl_b32 {sXO[0]}, {sT1}, 14
        s_add_u32 {sXO[1]}, {sXO[0]}, 8192
        s_mov_b32 {sFH}, {WS_SIZE}
        """)
        for c in range(8):
            for i in range(2):
                a(f"buffer_load_dwordx4 {V(XR+16*c+4*i,4)}, {V(vXO)}, {SX}, {sXO[i]} offen offset:{128*c}{self.pol('xs')}")

    def stats(self):
        a = self.a
        a("v_mov_b32 v27, 0x3f803f80")
        def red8(r):
            a(f"v_add_f32_dpp {V(r)}, {V(r)}, {V(r)} quad_perm:[1,0,3,2] row_mask:0xf bank_mask:0xf")
            a(f"v_add_f32_dpp {V(r)}, {V(r)}, {V(r)} quad_perm:[2,3,0,1] row_mask:0xf bank_mask:0xf")
            a(f"v_add_f32_dpp {V(r)}, {V(r)}, {V(r)} row_half_mirror row_mask:0xf bank_mask:0xf")
        for i in range(2):
            a(f"v_mov_b32 {V(64+8*i)}, 0")
            a(f"v_mov_b32 {V(65+8*i)}, 0")
        for c in range(8):
            for j in range(4):
                for i in range(2):
                    a(f"v_dot2c_f32_bf16 {V(64+8*i+(j&1))}, {V(XR+16*c+4*i+j)}, v27")
        for i in range(2):
            a(f"v_add_f32 {V(64+8*i)}, {V(64+8*i)}, {V(65+8*i)}")
        for i in range(2):
            red8(64 + 8 * i)
        for i in range(2):
            a(f"v_mul_f32 {V(64+8*i)}, 0x3b000000, {V(64+8*i)}")
            a(f"v_mov_b32 {V(66+8*i)}, 0")
            a(f"v_mov_b32 {V(67+8*i)}, 0")
        for c in range(8):
            for j in range(4):
                for i in range(2):
                    x = V(XR + 16 * c + 4 * i + j)
                    t = 68 + 8 * i
                    a(f"v_lshlrev_b32 {V(t)}, 16, {x}")
                    a(f"v_and_b32 {V(t+1)}, 0xffff0000, {x}")
                    a(f"v_pk_add_f32 {V(t,2)}, {V(t,2)}, {V(64+8*i,2)} op_sel:[0,0] op_sel_hi:[1,0] neg_lo:[0,1] neg_hi:[0,1]")
                    a(f"v_pk_fma_f32 {V(66+8*i,2)}, {V(t,2)}, {V(t,2)}, {V(66+8*i,2)}")
        for i in range(2):
            a(f"v_add_f32 {V(66+8*i)}, {V(66+8*i)}, {V(67+8*i)}")
        for i in range(2):
            red8(66 + 8 * i)
        a(f"""
        v_lshrrev_b32 v28, 3, {V(vL)}
        v_lshlrev_b32 v28, 4, v28
        s_lshr_b32 {sT0}, {sXO[0]}, 6
        s_add_u32 {sT0}, {sT0}, {STAT}
        """)
        for i in range(2):
            m, v = 64 + 8 * i, 66 + 8 * i
            a(f"""
            v_mul_f32 {V(v)}, 0x3b000000, {V(v)}
            v_cvt_pk_bf16_f32 {V(v)}, {V(v)}, {V(m)}
            v_and_b32 {V(m)}, 0xffff0000, {V(v)}
            v_lshlrev_b32 {V(v)}, 16, {V(v)}
            v_add_f32 {V(v)}, 0x3727c5ac, {V(v)}
            v_cvt_pk_bf16_f32 {V(v)}, {V(v)}, {V(v)}
            v_lshlrev_b32 {V(v)}, 16, {V(v)}
            v_sqrt_f32 {V(v)}, {V(v)}
            v_cvt_pk_bf16_f32 {V(v)}, {V(v)}, {V(v)}
            v_lshlrev_b32 {V(v)}, 16, {V(v)}
            v_rcp_f32 {V(m+1)}, {V(v)}
            v_mov_b32 {V(m+2)}, {V(vTAG)}
            v_mov_b32 {V(m+3)}, {V(vTAG+1)}
            """)
        a("s_mov_b32 exec_lo, 0x01010101")
        a("s_mov_b32 exec_hi, 0x01010101")
        for i in range(2):
            a(f"buffer_store_dwordx4 {V(64+8*i,4)}, v28, {SWS}, {sT0} offen offset:{128*i} sc1")
        a("s_mov_b64 exec, -1")

    def gen_update(self):
        a = self.a
        a(f"s_cmp_lg_u32 s2, {28*8}")
        a("s_cbranch_scc1 L_nogen")
        a.wait_all()
        a.raw(f"""    v_lshlrev_b32 v28, 7, v0
    s_mov_b32 {sT1}, {FL_KV}
L_gen_next:
    s_mov_b32 {sCNT}, 0
L_gen_spin:
    buffer_load_dwordx2 v[30:31], v28, {SWS}, {sT1} offen sc1
    s_add_u32 {sCNT}, {sCNT}, 1
    s_cmp_gt_u32 {sCNT}, 20000
    s_waitcnt vmcnt(0)
    s_cbranch_scc1 L_gen_got
    v_cmp_ne_u64 vcc, {sTAG}, v[30:31]
    s_cbranch_vccnz L_gen_spin
L_gen_got:
    s_add_u32 {sT1}, {sT1}, 0x8000
    s_cmp_lt_u32 {sT1}, {FL_KV + 0x20000}
    s_cbranch_scc1 L_gen_next
    s_barrier
    s_cmp_lg_u32 {sW}, 0
    s_cbranch_scc1 L_nogen
    s_mov_b32 {sT1}, {GEN}
    s_mov_b64 exec, 1
    buffer_store_dwordx2 {V(vTAG,2)}, off, {SWS}, {sT1} sc1
    s_mov_b64 exec, -1
    s_waitcnt vmcnt(0)
L_nogen:""")

    def build(self):
        a, o, place, run = self.a, self.o, self.place, self.run
        rest = self.prologue()
        rest += self.addr_b1() + self.addr_a1()
        pre = self.ld_x(0) + self.ld_w1(0) + self.ld_x(1) + self.ld_w1(1) + self.ld_x(2)
        step = len(rest) / len(pre)
        k = 0
        for i, f in enumerate(pre):
            f()
            while k < len(rest) and k < (i + 1) * step:
                rest[k]()
                k += 1
        run(rest[k:])
        self.stamp("pro.issued")
        self.a1(self.ld_w1(2) + self.ld_x(3) + self.ld_w1(3) + self.ld_hk() + self.join(self.rd_x(0)) + self.ld_w1(4) + self.ld_x(4) + self.join(self.rd_x(1)))
        self.stamp("a1done")
        self.stamp("pro.a1done")
        a(f"s_cmp_ge_u32 {sJ}, 28")
        a("s_cbranch_scc1 L_spare")
        st_spare = a.state()
        a.wait("w0")
        a("s_barrier")
        for s in range(2):
            for fb in range(2):
                self.w_frag(s, fb)
        self.stamp("p1.start")
        fill = {}
        st = self.ld_x(5) + self.ld_w1(5) + self.ld_x(6) + self.ld_w1(6) + self.ld_x(7) + self.ld_w1(7)
        for n in range(8, 16):
            st += self.ld_w1(n)
        r1 = o.get("r1", 0.62)
        place(fill, self.rd_x(2), 1)
        place(fill, self.rd_x(3), 9)
        place(fill, self.rd_x(4), 17)
        place(fill, self.rd_x(5), 25)
        place(fill, self.rd_x(6), 33)
        place(fill, self.rd_x(7), 41)
        g = place(fill, st, 0, r1)
        place(fill, self.kv_flag(), 26)
        place(fill, self.p_head(), 5, 2)
        place(fill, self.kv_poll_addr(), 28, 2)
        place(fill, self.p_shift(0) + self.p_shift(1), 38, 2)
        pw = self.p_head2() + self.p_write(0, 0) + self.p_write(0, 1) + self.p_write(1, 1)
        place(fill, pw, 46, 1)
        place(fill, self.p_shift(2) + self.p_shift(3), 51, 2)
        place(fill, self.p_write(1, 0) + self.p_write(2, 0) + self.p_write(3, 0), 52, 0.5)
        place(fill, self.p_write(2, 1) + self.p_write(3, 1), 59, 0.5)
        gp = o.get("gp", 56)
        place(fill, self.poll_issue(), gp)
        place(fill, self.c_publish(0), 62, 2)
        place(fill, self.m_finish() + self.c_addr(), 66, 3)
        place(fill, self.W("cx0"), 69)
        place(fill, self.c_read(0), 71, 2)
        place(fill, self.c_apply(0, 0) + self.c_apply(0, 1), 74)
        hs = []
        for q in range(4):
            hs += self.h_store(0, q)
        place(fill, hs, 77, 3)
        gk = o.get("gk", 66)
        place(fill, self.join(self.poll_check("kv"), self.kv_fetch()), gk)
        w2 = self.ld_w2()
        n2 = o.get("n2", 27)
        place(fill, w2[:n2], gk + 1, n2 / (127 - gk))
        place(fill, self.conv_addr(), 90, 3)
        place(fill, self.W("kv", "pw"), 101)
        place(fill, self.h_flag(0), o.get("gh0", 104))
        place(fill, self.conv_reads(0), 103, 1.5)
        place(fill, self.c_publish(1), 122, 4)
        place(fill, self.join(self.W("cx1"), self.T("s_barrier"), self.c_read(1)), 126)
        self.b1(fill)
        self.stamp("pass2")
        a.phase = ""
        run(self.c_apply(1, 0) + self.c_apply(1, 1))
        a("s_branch L_conv")
        st_join = a.state()
        a.restore(st_spare)
        a.label("L_spare")
        self.stats_loads()
        run(self.kv_flag())
        a("s_barrier")
        run(self.p_head() + self.p_head2())
        for i in range(4):
            run(self.p_shift(i) + self.p_write(i, 0) + self.p_write(i, 1))
        run(self.kv_poll_addr() + self.poll_issue())
        self.stats()
        run(self.poll_check("kv2") + self.kv_fetch())
        run(self.ld_w2()[:n2])
        run(self.conv_addr())
        a(f"s_mov_b32 {sHO}, {WS_SIZE}")
        self.gen_update()
        a.wait_all()
        a("s_barrier")
        run(self.conv_reads(0))
        a.wait_all()
        a.restore(st_join)
        a.label("L_conv")
        self.stamp("convstart")
        self.stamp("cv.start")
        fill = {}
        hs = []
        for q in range(4):
            hs += self.h_store(1, q)
        place(fill, hs, 3, 1)
        gw = place(fill, w2[n2:], 0, o.get("r3", 0.27))
        place(fill, self.h_poll_addr() + self.y_addr(), 40, 1)
        place(fill, self.h_flag(1), o.get("gh1", 76))
        place(fill, self.poll_issue(0), gw - 12)
        horder = [(k, sb) for k in range(20) for sb in range(2)] + [(k, sb) for sb in range(2) for k in range(20, 28)]
        hl = self.ld_h(horder)
        nh = o.get("nh", 9)
        place(fill, self.poll_check("h0", 0), gw + 2)
        place(fill, hl[:nh], gw + 3, nh / (143 - gw - 3))
        g = 108
        for t in range(7, 1, -1):
            g += t + 1
            place(fill, self.y_write(t), g + 1)
        a.phase = "cv"
        self.conv(fill)
        a.phase = "b2"
        self.stamp("convend")
        order = [(k, q) for k in range(20) for q in range(4)]
        order += [(k, q) for k in range(20, 28) for q in range(2)]
        order += [(k, 2) for k in range(20, 28)] + [(k, 3) for k in range(20, 28)]
        fill = {}
        place(fill, self.y_write(1) + self.y_write(0), 0, 2)
        place(fill, self.y_gather(), 2, 2)
        place(fill, self.y_sum(0) + self.y_sum(1), 7, 4)
        r4 = o.get("r4", 0.55)
        g1 = place(fill, hl[nh:28], 0, r4)
        place(fill, self.poll_issue(128), g1 - 10)
        place(fill, self.poll_check("h1", 128), g1 + 1)
        g2 = place(fill, hl[28:], g1 + 2, r4)
        self.h_sched = (g1, g2)
        place(fill, self.y_flag(), o.get("gy", 26))
        place(fill, self.ep_addr(), 16, 2)
        place(fill, self.y_fetch_addr(), 28, 2)
        place(fill, self.y_poll_addr(), g1 + 3, 2)
        place(fill, self.ep_loads(), 46, 2)
        place(fill, self.poll_issue(0), 52)
        place(fill, self.join(self.poll_check("y", 0), self.y_fetch()), 60)
        place(fill, self.stat_check(), 66)
        place(fill, self.y_read(), 72, 4)
        ep = []
        for st_ in range(2):
            for e in range(4):
                ep += self.ep_pre(st_, e)
        place(fill, ep, 76, 4)
        place(fill, self.red_write(0) + self.red_write(1), 97, 1)
        place(fill, self.red_read(0), 105, 4)
        place(fill, self.red_write(2), 106, 1)
        f0 = self.finish(0, False)
        place(fill, f0[:20], 108, 5)
        self.b2(order, fill)
        self.stamp("b2end")
        run(f0[20:32])
        run(self.red_write(3))
        run(f0[32:])
        run(self.red_read(1))
        self.stamp("redbar")
        run(self.finish(1, True))
        if o["diag"]:
            a.wait_all()
            self.stamp("end")
            a.wait_all()
            for i in range(max(0, self.nst - 6), self.nst):
                a(f"v_writelane_b32 v39, s{sSTAMP + 2*(i % 8)}, {i}")
            a(f"""
            s_lshl2_add_u32 {sT0}, s2, {sW}
            s_lshl_b32 {sT0}, {sT0}, 8
            s_add_u32 {sT0}, {sT0}, {STAMP}
            v_lshlrev_b32 v27, 2, {V(vL)}
            buffer_store_dword v39, v27, {SWS}, {sT0} offen
            """)
            if o.get("dbgx"):
                a(f"""
                s_cmp_ge_u32 s2, 8
                s_cbranch_scc1 L_end
                s_cmp_lg_u32 {sW}, 0
                s_cbranch_scc1 L_end
                s_load_dwordx2 s[4:5], s[0:1], 80
                s_mov_b32 s6, 256
                s_getreg_b32 s62, hwreg(HW_REG_XCC_ID)
                s_and_b32 s62, s62, 15
                s_mul_i32 s62, s62, 1000000
                v_readlane_b32 s60, v39, 0
                v_readlane_b32 s61, v39, {self.nst-1}
                s_sub_u32 s61, s61, s60
                s_and_b32 s60, s60, 0xffff
                s_add_u32 s60, s60, s62
                s_lshl_b32 s63, s2, 2
                v_mov_b32 v27, s60
                v_mov_b32 v28, s61
                buffer_store_dword v27, off, s[4:7], s63 offset:0
                buffer_store_dword v28, off, s[4:7], s63 offset:32
                """)
        a.label("L_end")
        a("s_endpgm")
        for s in self.slow:
            a.raw(s)
        a.label("L_codeend")
        return self.wrap(a.text())

    def wrap(self, body):
        return f"""; Fused kernel: out = x + LN(x) * (longconv(shiftconv(k) * v) + D * kv) + relu(LN(x) @ w1) @ w2
; One persistent launch, one workgroup per CU; phases hand data over through d_ws with tagged flags.
; @launch grid=(256,1,1) block=(256,1,1) lds={LDS_SIZE}
.amdgcn_target "amdgcn-amd-amdhsa--gfx950"
.text
.globl {KN}
.p2align 8
.type {KN},@function
{KN}:
{body}
.section .rodata,"a"
.p2align 6
.amdhsa_kernel {KN}
  .amdhsa_next_free_vgpr 512
  .amdhsa_next_free_sgpr 102
  .amdhsa_accum_offset 256
  .amdhsa_group_segment_fixed_size 0
  .amdhsa_kernarg_size 96
  .amdhsa_user_sgpr_count 2
  .amdhsa_user_sgpr_kernarg_segment_ptr 1
  .amdhsa_system_sgpr_workgroup_id_x 1
  .amdhsa_float_denorm_mode_32 3
.end_amdhsa_kernel
"""


if __name__ == "__main__":
    opts = {}
    out = None
    for arg in sys.argv[1:]:
        if "=" in arg:
            k, v = arg.split("=", 1)
            opts[k] = eval(v)
        else:
            out = arg
    g = Gen(**opts)
    txt = g.build()
    if out:
        open(out, "w").write(txt)
        if g.names:
            open(out + ".names", "w").write(" ".join(g.names))
    if opts.get("show"):
        for l in g.load:
            print(l)
    print("nops inserted:", g.a.nops, "lines:", txt.count("\n"), "h sched", g.h_sched, file=sys.stderr)
```

```python
import re

REG_RE = re.compile(r"^(v|a|s)(\d+)$")
RNG_RE = re.compile(r"^(v|a|s)\[(\d+):(\d+)\]$")
TRANS = ("v_exp_", "v_log_", "v_rcp_", "v_rsq_", "v_sqrt_", "v_sin_", "v_cos_")


def regs_of(tok):
    tok = tok.strip()
    if tok.startswith("-"):
        tok = tok[1:]
    if tok.startswith("|"):
        tok = tok.strip("|")
    m = REG_RE.match(tok)
    if m:
        return [(m.group(1), int(m.group(2)))]
    m = RNG_RE.match(tok)
    if m:
        return [(m.group(1), i) for i in range(int(m.group(2)), int(m.group(3)) + 1)]
    if tok == "vcc":
        return [("s", "vcc")]
    if tok == "exec":
        return [("s", "exec")]
    if tok == "m0":
        return [("s", "m0")]
    return []


class Ins:
    __slots__ = ("text", "mn", "cls", "R", "W", "A", "B", "C", "passes", "cnt", "dpp", "wide", "lds")

    def __init__(self, text):
        self.text = text
        t = text.split(";")[0].strip()
        parts = t.split(None, 1)
        mn = self.mn = parts[0]
        rest = parts[1] if len(parts) > 1 else ""
        ops = [o.strip() for o in rest.split(",")] if rest else []
        mods = ""
        if ops:
            j = None
            for i, o in enumerate(ops):
                if " " in o:
                    j = i
                    break
            if j is not None:
                first, tail = ops[j].split(None, 1)
                mods = tail + "," + ",".join(ops[j + 1:])
                ops = ops[:j] + [first]
        self.R, self.W = set(), set()
        self.A = self.B = self.C = None
        self.passes = 0
        self.cnt = 1
        self.dpp = any(k in mods for k in ("quad_perm", "row_", "wave_"))
        self.wide = False
        self.lds = False
        rr = lambda toks: set(r for tk in toks for r in regs_of(tk))
        if mn.startswith("v_mfma"):
            self.cls = "mfma"
            self.passes = 8 if "32x32x16" in mn else 4 if "16x16x32" in mn else 16
            self.W = rr(ops[0:1])
            self.A, self.B, self.C = rr(ops[1:2]), rr(ops[2:3]), rr(ops[3:4])
            self.R = self.A | self.B | self.C
        elif mn.startswith("v_"):
            self.cls = "valu"
            if mn.startswith("v_permlane") or mn.startswith("v_swap"):
                self.W = rr(ops[0:2])
                self.R = rr(ops[0:2])
            elif mn.startswith(("v_add_co", "v_addc_co", "v_sub_co", "v_subb_co")):
                self.W = rr(ops[0:2])
                self.R = rr(ops[2:])
            elif mn == "v_nop":
                pass
            else:
                self.W = rr(ops[0:1])
                self.R = rr(ops[1:])
                if mn.startswith(("v_fmac", "v_dot2c", "v_writelane", "v_pk_fmac")) or self.dpp or "sdwa" in mn:
                    self.R |= self.W
                if mn.startswith("v_cndmask") and len(ops) == 3:
                    self.R.add(("s", "vcc"))
        elif mn.startswith("ds_"):
            self.cls = "ds"
            if mn.startswith("ds_read"):
                self.W = rr(ops[0:1])
                self.R = rr(ops[1:])
            else:
                self.R = rr(ops)
        elif mn.startswith(("buffer_", "global_")):
            self.cls = "vmem"
            self.lds = bool(re.search(r"\blds\b", mods))
            if "load" in mn and not self.lds:
                self.W = rr(ops[0:1])
                self.R = rr(ops[1:])
            else:
                self.R = rr(ops)
                if self.lds:
                    self.R.add(("s", "m0"))
                if "store" in mn and ("x3" in mn or "x4" in mn):
                    self.wide = True
                    self.A = rr(ops[0:1])
        elif mn.startswith("s_load") or mn.startswith("s_memtime") or mn.startswith("s_memrealtime"):
            self.cls = "smem"
            self.W = rr(ops[0:1])
            self.R = rr(ops[1:])
        elif mn == "s_nop":
            self.cls = "nop"
            self.cnt = int(ops[0]) + 1
        elif mn.startswith(("s_waitcnt", "s_barrier", "s_branch", "s_cbranch", "s_endpgm", "s_setprio", "s_sleep")):
            self.cls = "ctl"
        elif mn.startswith("s_cmp") or mn.startswith("s_bitcmp"):
            self.cls = "salu"
            self.R = rr(ops)
        elif mn.startswith("s_"):
            self.cls = "salu"
            self.W = rr(ops[0:1])
            self.R = rr(ops[1:])
            if "saveexec" in mn:
                self.W.add(("s", "exec"))
        else:
            raise ValueError("unknown mnemonic: " + text)


def need_states(p, c):
    n = 0
    vw = set(r for r in p.W if r[0] != "s")
    sw = set(r for r in p.W if r[0] == "s")
    if p.cls == "valu":
        if c.cls == "mfma" and vw & c.R:
            n = max(n, 3 if p.mn.startswith("v_dot") else 2)
        if c.cls == "valu":
            if vw & c.R:
                if c.mn.startswith(("v_readlane", "v_readfirstlane")):
                    n = max(n, 1)
                if c.dpp or c.mn.startswith("v_permlane"):
                    n = max(n, 2)
                if p.mn.startswith(TRANS) and not c.mn.startswith(TRANS):
                    n = max(n, 1)
                if "sdwa" in p.mn or ("op_sel" in p.text and not p.mn.startswith("v_pk")):
                    n = max(n, 1)
            if p.mn.startswith("v_dot") and vw & (c.R | c.W):
                if not (c.mn == p.mn and c.mn.startswith("v_dot2c") and not (vw & (c.R - c.W))):
                    n = max(n, 3)
            if sw & c.R:
                n = max(n, 4 if c.mn.startswith(("v_readlane", "v_writelane")) else 2)
        if c.cls in ("vmem", "ds") and p.mn.startswith("v_dot") and vw & c.R:
            n = max(n, 3)
        if c.cls == "vmem" and sw & c.R:
            n = max(n, 5)
    elif p.cls == "mfma":
        big = {4: 8, 8: 12, 16: 20}[p.passes]
        if c.cls == "mfma":
            if p.W & (c.A | c.B):
                n = max(n, big)
            if p.W & c.C and not (p.W == c.C and p.passes == c.passes):
                n = max(n, big - 2)
            if p.W & c.W and not (p.W & c.C):
                n = max(n, big)
        elif c.cls == "valu":
            if p.W & (c.R | c.W):
                n = max(n, big)
            if p.C & c.W:
                n = max(n, {4: 3, 8: 7, 16: 15}[p.passes])
        elif c.cls in ("vmem", "ds"):
            if p.W & (c.R | c.W):
                n = max(n, big)
            if p.C & c.W:
                n = max(n, {4: 3, 8: 7, 16: 15}[p.passes])
    elif p.cls == "salu":
        if c.cls == "vmem" and c.lds and ("s", "m0") in p.W:
            n = max(n, 1)
    elif p.cls == "vmem" and p.wide:
        if p.A & c.W:
            n = max(n, 2 if c.cls == "valu" else 1)
    return n


class Asm:
    def __init__(self):
        self.out = []
        self.hist = []
        self.vm = []
        self.lg = []
        self.sm = set()
        self.nops = 0
        self.seen = set()
        self.phase = ""
        self.drop = []
        self.pure = False

    def raw(self, s):
        self.out.append(s)

    def comment(self, s):
        self.out.append("    ; " + s)

    def label(self, name, reset=False):
        self.out.append(name + ":")
        if reset:
            self.hist = []

    def state(self):
        return (list(self.hist), list(self.vm), list(self.lg), set(self.sm))

    def restore(self, st):
        self.hist, self.vm, self.lg, self.sm = list(st[0]), list(st[1]), list(st[2]), set(st[3])

    def _push(self, ins):
        self.out.append("    " + ins.text)
        self.hist.append(ins)
        if len(self.hist) > 24:
            self.hist.pop(0)

    def _wait(self, vm=None, lg=None):
        parts = []
        if vm is not None:
            assert vm <= 63
            parts.append(f"vmcnt({vm})")
            self.vm = self.vm[len(self.vm) - vm:] if vm else []
        if lg is not None:
            assert lg <= 15
            parts.append(f"lgkmcnt({lg})")
            self.lg = self.lg[len(self.lg) - lg:] if lg else []
            if lg == 0:
                self.sm = set()
        if parts:
            self._push(Ins("s_waitcnt " + " ".join(parts)))

    @staticmethod
    def _need(q, pred, cap):
        idx = -1
        for i, e in enumerate(q):
            if pred(e):
                idx = i
        if idx < 0:
            return None
        return min(len(q) - 1 - idx, cap)

    def wait(self, *tags):
        ts = set(tags)
        assert ts <= self.seen, ts - self.seen
        if self.pure:
            return
        vm = self._need(self.vm, lambda e: e[0] in ts, 63)
        lg = self._need(self.lg, lambda e: e[0] in ts, 15)
        self._wait(vm, lg)

    def wait_all(self, vm=True, lg=True):
        self._wait(0 if vm else None, 0 if lg else None)

    def __call__(self, text, tag=None):
        for line in text.strip().split("\n"):
            line = line.strip()
            if not line or line.startswith(";"):
                continue
            if line.endswith(":"):
                self.label(line[:-1])
                continue
            self.one(line, tag)

    def one(self, text, tag=None):
        self.seen.add(tag)
        if any(ph == self.phase and re.search(rx, text) for ph, rx in self.drop):
            return
        if self.pure and re.match(r"v_mfma|ds_|s_barrier|s_cbranch_vccnz|v_pk_|v_dot|v_cvt|v_fma|v_add_f32|v_sub_f32|v_mul_f32", text):
            return
        ins = Ins(text)
        touch = ins.R | ins.W
        if self.pure and len(self.vm) >= 50:
            self._wait(30, None)
        vm = None if self.pure else self._need(self.vm, lambda e: e[1] & touch, 63)
        lg = self._need(self.lg, lambda e: e[1] & touch, 15)
        if ins.cls == "ds" and lg is not None:
            lg = self._need(self.lg, lambda e: e[1] & ins.R, 15)
        if ins.cls == "vmem" and vm is not None and not self.pure:
            vm = self._need(self.vm, lambda e: e[1] & ins.R, 63)
        if self.sm & touch:
            lg = 0
        if vm is not None or lg is not None:
            self._wait(vm, lg)
        dist = 0
        need = 0
        for p in reversed(self.hist):
            n = need_states(p, ins)
            if n > dist:
                need = max(need, n - dist)
            dist += p.cnt
            if dist >= 20:
                break
        while need > 0:
            k = min(need, 16)
            self._push(Ins(f"s_nop {k-1}"))
            self.nops += k
            need -= k
        if ins.mn == "s_waitcnt":
            raise ValueError("use wait()/wait_all()")
        self._push(ins)
        if ins.cls == "vmem":
            self.vm.append((tag, set(ins.W)))
            assert len(self.vm) <= 63, "too many vector memory ops in flight"
        elif ins.cls == "ds":
            self.lg.append((tag, set(ins.W)))
        elif ins.cls == "smem":
            self.sm |= ins.W

    def text(self):
        return "\n".join(self.out) + "\n"
```

```python
import sys, os
sys.path.insert(0, os.path.dirname(os.path.abspath(__file__)))
from emit import Asm

KN = "parallel_sum__ssm_conv_h3__dense_activation_relu__prompt_kernel"

KVT = 0x000000
YWS = 0x200000
HWS = 0x400000
FL_KV = 0xC00000
FL_Y = 0xC20000
FL_H = 0xC40000
STAT = 0xC80000
GEN = 0xC90000
STAMP = 0xD00000
W2T = 0xE00000
WS_SIZE = 0x1000000

R1 = 65536
KT = 131072
VT = KT + 9216
CX = 148480
YB = 152576
PB = 0
KV = 33280
EX = 90112
RED = 0
LDS_SIZE = 163840

SX, SK, SV, SSH, SHK, SW1, SW2, SO, SWS = [f"s[{4*i}:{4*i+3}]" for i in range(1, 10)]
sTAG = "s[42:43]"
sB = "s2"
sW, sXCD, sJ = "s44", "s45", "s46"
sST, sDT = "s47", "s48"
sXO = ["s49", "s50", "s51", "s52"]
sW1O, sM0 = "s53", "s54"
sHO = "s55"
sD, sCY, sH0, sH1 = "s56", "s57", "s58", "s59"
sT0, sT1, sT2, sT3 = "s60", "s61", "s62", "s63"
sW2O = "s64"
sFK = "s65"
sFH = "s66"
sCNT = "s67"
sHL = "s68"
sKF = "s69"
sEO = "s70"
sPO, sHL2 = "s40", "s41"
sU0, sU1, sU2 = "s71", "s3", "s72"
sHK, sST2, sRHO = "s73", "s74", "s75"
sG = [f"s{92+i}" for i in range(7)]
sKS0, sKS1, sSH = "s99", "s100", "s101"
sSTAMP = 76


def V(i, n=1):
    return f"v{i}" if n == 1 else f"v[{i}:{i+n-1}]"


def A(i, n=1):
    return f"a{i}" if n == 1 else f"a[{i}:{i+n-1}]"


vL, vL16, vXO, vW0, vW1 = 1, 2, 3, 4, 5
vXA = [6, 7]
vXR = [8, 9, 10, 11]
vA = [[12, 13], [14, 15], [16, 17], [18, 19]]
vCA, vH2 = 20, 21
vTAG = 22
vP = 24
vPO = 26
RING = 40
ACC = 64
XR = 128
HK = 96
vK0, vK1, vKH, vSH = 96, 97, 98, 99
vT0, vT1, vB0, vB1, vBR, vKS = 100, 101, 102, 103, 104, 105
WF, U, SHR = 112, 116, 124
aSEL, aM, aC = 224, 228, 232
aY = 224
ACC2 = 192


def hslot(k, sb):
    return 40 + 8 * (k % 19) + 4 * sb


class Gen:
    def __init__(self, **o):
        self.o = dict(diag=False, codepf=True, nt="")
        self.o.update(o)
        self.a = Asm()
        self.a.drop = self.o.get("drop", [])
        self.a.pure = self.o.get("pure", False)
        self.slow = []
        self.nst = 0
        self.names = []
        self.load = []
        self.m0of, self.isdma, self.keep = {}, set(), []

    def pol(self, name, base=""):
        p = self.o.get("pol_" + name)
        if p is None:
            p = base + (" nt" if name in self.o["nt"].split() else "")
        p = p.strip()
        return " " + p if p else ""

    def stamp(self, name):
        if not self.o["diag"]:
            return
        grp = name.split(".")[0] if "." in name else "main"
        if name not in ("start", "end") and grp not in self.o["diag"]:
            return
        i = self.nst
        assert i < 64, name
        r = sSTAMP + 2 * (i % 8)
        if i >= 6:
            self.a.raw(f"    v_writelane_b32 v39, s{sSTAMP + 2*((i-6) % 8)}, {i-6}")
        self.a.raw(f"    {'s_memtime' if self.o.get('clk') else 's_memrealtime'} s[{r}:{r+1}]")
        self.names.append(name)
        self.nst += 1

    def T(self, text, tag=None):
        groups = []
        for line in text.strip().split("\n"):
            line = line.strip()
            if not line or line.startswith(";"):
                continue
            if line.startswith("+"):
                groups[-1].append(line[1:].strip())
            else:
                groups.append([line])
        return [(lambda g=g: [self.a(x, tag) for x in g]) for g in groups]

    def W(self, *tags):
        return [lambda: self.a.wait(*tags)]

    @staticmethod
    def join(*lists):
        fs = [f for l in lists for f in l]
        return [lambda: [f() for f in fs]]

    @staticmethod
    def run(items):
        for f in items:
            f()

    @staticmethod
    def place(fill, items, g0, per=1.0):
        g = g0
        for i, f in enumerate(items):
            g = g0 + int(i / per)
            fill.setdefault(g, []).append(f)
        return g

    def gap(self, fill, g, phase):
        n0 = len(self.a.out)
        for f in fill.pop(g, []):
            f()
        return len(self.a.out) - n0

    def flag_store(self, soff, imm=0):
        return self.T(f"""
        s_mov_b64 exec, 1
        +buffer_store_dwordx2 {V(vTAG,2)}, off, {SWS}, {soff} offset:{imm} sc1
        +s_mov_b64 exec, -1""")

    def dma(self, m0, items):
        self.m0of[id(items[0])] = m0
        for f in items:
            self.isdma.add(id(f))
        self.keep += items
        return items

    def stream(self, items, first=True):
        out = list(items)
        last = None
        for i, f in enumerate(items):
            m0 = self.m0of.get(id(f))
            if m0 is not None:
                if last is None:
                    if first:
                        out[i] = self.join(self.T(m0), [out[i]])[0]
                else:
                    out[last] = self.join([out[last]], self.T(m0))[0]
            if id(f) in self.isdma:
                last = i
        return out

    def poll_issue(self, imm=0):
        return self.T(f"buffer_load_dwordx2 {V(vP,2)}, {V(vPO)}, {SWS}, {sPO} offen offset:{imm} sc1")

    def poll_check(self, name, imm=0):
        def f():
            a = self.a
            a(f"v_cmp_ne_u64 vcc, {sTAG}, {V(vP,2)}")
            a(f"s_cbranch_vccnz L_slow_{name}")
            a.label(f"L_back_{name}")
            self.slow.append(f"""L_slow_{name}:
    s_mov_b32 {sCNT}, 0
L_spin_{name}:
    buffer_load_dwordx2 {V(vP,2)}, {V(vPO)}, {SWS}, {sPO} offen offset:{imm} sc1
    s_add_u32 {sCNT}, {sCNT}, 1
    s_cmp_gt_u32 {sCNT}, 20000
    s_waitcnt vmcnt(0)
    s_cbranch_scc1 L_back_{name}
    v_cmp_ne_u64 vcc, {sTAG}, {V(vP,2)}
    s_cbranch_vccnz L_spin_{name}
    s_branch L_back_{name}
""")
        return [f]

    def prologue(self):
        a = self.a
        a(f"""
        s_cmp_ge_u32 s2, 0x100
        s_cbranch_scc1 L_end
        s_load_dwordx2 s[4:5], s[0:1], 0
        s_load_dwordx2 s[24:25], s[0:1], 56
        s_load_dwordx2 s[8:9], s[0:1], 8
        s_load_dwordx2 s[12:13], s[0:1], 16
        s_load_dwordx2 s[16:17], s[0:1], 24
        s_load_dwordx2 s[36:37], s[0:1], 88
        s_load_dwordx2 s[20:21], s[0:1], 32
        s_load_dwordx2 s[40:41], s[0:1], 40
        s_load_dwordx2 s[28:29], s[0:1], 64
        s_load_dwordx2 s[32:33], s[0:1], 72
        """)
        self.stamp("start")
        a(f"""
        v_lshrrev_b32 v27, 6, v0
        v_and_b32 {V(vL)}, 63, v0
        s_lshr_b32 {sJ}, s2, 3
        v_readfirstlane_b32 {sW}, v27
        """)
        if self.o["codepf"]:
            a(f"""
            s_getpc_b64 s[60:61]
            L_pc:
            v_and_b32 v28, 1, v0
            v_lshl_add_u32 v28, v27, 1, v28
            v_lshl_add_u32 v28, {sJ}, 3, v28
            v_lshlrev_b32 v28, 7, v28
            v_min_u32 v28, L_codeend-L_pc-4, v28
            v_mov_b32 v29, s61
            v_add_co_u32 v28, vcc, s60, v28
            s_and_b32 {sXCD}, s2, 7
            s_mov_b32 s6, 0x200000
            v_addc_co_u32 v29, vcc, 0, v29, vcc
            global_load_dword a255, v[28:29], off
            """)
        else:
            a(f"""
            s_and_b32 {sXCD}, s2, 7
            s_mov_b32 s6, 0x200000
            """)
        a(f"""
        s_mov_b32 s7, 0x20000
        s_mov_b64 s[10:11], s[6:7]
        s_mov_b64 s[14:15], s[6:7]
        s_mov_b64 s[22:23], s[6:7]
        s_mov_b64 s[34:35], s[6:7]
        s_mov_b32 s18, 0x1000
        s_mov_b32 s19, s7
        s_mov_b32 s26, 0x1c0000
        s_mov_b32 s27, s7
        s_mov_b64 s[30:31], s[26:27]
        s_mov_b32 s38, {WS_SIZE}
        s_mov_b32 s39, s7
        v_lshrrev_b32 v27, 3, {V(vL)}          ; l>>3
        v_and_b32 v28, 7, {V(vL)}              ; l&7
        v_lshrrev_b32 v29, 4, {V(vL)}          ; l>>4
        v_lshlrev_b32 v31, 10, v27             ; (l>>3)*1024
        v_lshl_or_b32 {V(vXO)}, v28, 4, v31
        v_and_b32 v37, 1, v29
        v_lshlrev_b32 v37, 6, v37
        v_xor_b32 v20, {V(vXO)}, v37
        s_lshl_b32 {sM0}, {sW}, 12
        s_lshr_b32 {sT0}, {sJ}, 3
        s_lshl2_add_u32 {sST}, {sXCD}, {sT0}
        s_and_b32 {sDT}, {sJ}, 7
        s_cmp_ge_u32 {sJ}, 28
        s_cbranch_scc1 L_spare
        """)

    def addr_x(self):
        return self.T(f"""
        s_lshr_b32 {sT0}, {sXCD}, 1
        s_and_b32 {sT1}, {sJ}, 3
        s_lshl2_add_u32 {sT0}, {sT0}, {sT1}         ; rb
        s_lshl_b32 {sRHO}, {sT1}, 1
        s_lshr_b32 {sT3}, {sJ}, 2
        s_xor_b32 {sRHO}, {sRHO}, {sT3}
        s_and_b32 {sRHO}, {sRHO}, {self.o.get("rho1", 0)}
        s_lshl2_add_u32 {sT0}, {sT0}, {sW}
        s_lshr_b32 {sT1}, {sT0}, 1
        s_lshl_b32 {sT1}, {sT1}, 16
        s_and_b32 {sT2}, {sW}, 1
        s_lshl_b32 {sT2}, {sT2}, 13
        s_add_u32 {sXO[0]}, {sT1}, {sT2}
        s_add_u32 {sXO[1]}, {sXO[0]}, {16384-1024}
        s_add_u32 {sXO[2]}, {sXO[1]}, {16384-1024}
        s_add_u32 {sXO[3]}, {sXO[2]}, {16384-1024}
        s_lshl_b32 {sT1}, {sRHO}, 7
        v_lshlrev_b32 v37, 4, v29
        v_xor_b32 {V(vXA[0])}, {V(vXO)}, v37
        v_xor_b32 {V(vXA[0])}, {sT1}, {V(vXA[0])}
        v_xor_b32 {V(vXA[1])}, 64, {V(vXA[0])}
        """)

    def addr_w(self):
        return self.T(f"""
        s_and_b32 {sT2}, {sXCD}, 1
        s_mul_i32 {sT2}, {sT2}, 7
        s_add_u32 {sT2}, {sT2}, {sT3}               ; ft
        s_mul_i32 {sT1}, {sW}, {16*3584}
        s_lshl_b32 {sT3}, {sT2}, 8
        s_add_u32 {sT1}, {sT1}, {sT3}
        s_mul_i32 {sW1O}, {sRHO}, {64*3584}
        v_mul_u32_u24 v38, 2560, v27
        v_add3_u32 {V(vW0)}, v20, v38, {sT1}
        v_add_u32 {V(vW1)}, {8*3584-1024}, {V(vW0)}
        """)

    def addr_h(self):
        return self.T(f"""
        s_lshr_b32 {sFH}, {sT0}, 2
        s_mul_i32 {sFH}, {sFH}, 14
        s_add_u32 {sFH}, {sFH}, {sT2}
        s_lshl_b32 {sFH}, {sFH}, 8
        s_add_u32 {sFH}, {sFH}, {FL_H}
        s_cmp_eq_u32 {sW}, 0
        +s_cselect_b32 {sFH}, {sFH}, {WS_SIZE}      ; wave 0 publishes for the workgroup
        s_mul_i32 {sHO}, {sT0}, 112
        s_add_u32 {sHO}, {sHO}, {sT2}
        s_lshl_b32 {sHO}, {sHO}, 10
        s_add_u32 {sHO}, {sHO}, {HWS}
        """)

    def addr_k(self):
        return self.T(f"""
        v_lshrrev_b32 v30, 5, {V(vL)}
        v_lshlrev_b32 v30, 5, v30
        v_xor_b32 {V(vK0)}, {V(vXO)}, v30      ; rows 0..7
        v_xor_b32 {V(vK1)}, 64, {V(vK0)}
        v_add_u32 {V(vK1)}, 7168, {V(vK1)}
        s_lshl_b32 {sT0}, {sST}, 16
        s_lshl_b32 {sT1}, {sW}, 14
        s_lshl_b32 {sT2}, {sDT}, 7
        s_add_u32 {sT0}, {sT0}, {sT2}
        s_add_u32 {sEO}, {sT0}, {sT1}
        s_lshl_b32 {sT1}, {sW}, 10
        s_add_u32 {sT0}, {sT0}, {sT1}
        s_sub_u32 {sT0}, {sT0}, 4096
        v_xor_b32 {V(vKH)}, 6, v28
        v_lshlrev_b32 {V(vKH)}, 4, {V(vKH)}
        v_add_u32 {V(vKH)}, {sT0}, {V(vKH)}
        s_lshl_b32 {sU0}, {sW}, 11
        s_lshl_b32 {sU2}, {sW}, 7
        s_lshl2_add_u32 {sSH}, {sT2}, {sU2}
        v_and_b32 {V(vSH)}, 15, {V(vL)}
        v_lshlrev_b32 {V(vSH)}, 3, {V(vSH)}
        """)

    def addr_misc(self):
        return self.T(f"""
        s_lshr_b32 {sT0}, {sW}, 1
        s_lshl1_add_u32 {sT0}, s2, {sT0}
        s_lshl_b32 {sHK}, {sT0}, 12
        s_lshl_b32 {sT1}, s2, 2
        s_mov_b32 {sT2}, {GEN}
        s_load_dwordx2 {sTAG}, s[36:37], {sT2}
        s_load_dwordx2 s[58:59], s[20:21], {sHK}
        s_load_dword {sD}, s[40:41], {sT1}
        s_and_b32 {sT1}, {sW}, 1
        s_lshl_b32 {sT1}, {sT1}, 2
        s_sub_u32 {sHK}, {sHK}, {sT1}
        s_add_u32 {sHK}, {sHK}, 8
        s_lshl2_add_u32 {sKF}, s2, {sW}
        s_lshl_b32 {sKF}, {sKF}, 11
        s_lshl_b32 {sFK}, s2, 7
        s_add_u32 {sFK}, {sFK}, {FL_KV}
        s_cmp_eq_u32 {sW}, 0
        +s_cselect_b32 {sFK}, {sFK}, {WS_SIZE}
        v_lshlrev_b32 {V(vL16)}, 4, {V(vL)}
        """)

    def ld_k(self):
        return self.dma(f"s_add_u32 m0, {sU0}, {KT + 1024}", self.T(f"""
        buffer_load_dwordx4 {V(vK0)}, {SK}, {sEO} offen{self.pol("k")} lds
        buffer_load_dwordx4 {V(vK1)}, {SK}, {sEO} offen offset:1024{self.pol("k")} lds""", "a1"))

    def ld_v(self):
        return self.dma(f"s_add_u32 m0, {sU0}, {VT}", self.T(f"""
        buffer_load_dwordx4 {V(vK0)}, {SV}, {sEO} offen{self.pol("v")} lds
        buffer_load_dwordx4 {V(vK1)}, {SV}, {sEO} offen offset:1024{self.pol("v")} lds""", "a1"))

    def ld_halo(self):
        return self.dma(f"s_add_u32 m0, {sU2}, {KT + 512}", self.T(f"""
        s_mov_b64 exec, 0xff
        +buffer_load_dwordx4 {V(vKH)}, {SK}, 0 offen lds
        +s_mov_b64 exec, -1""", "a1"))

    def ld_sh(self):
        return self.T(f"buffer_load_dwordx2 {V(SHR,2)}, {V(vSH)}, {SSH}, {sSH} offen", "a1")

    def ld_x(self, c):
        L = []
        for i in range(4):
            t = f"buffer_load_dwordx4 {V(vXA[i&1])}, {SX}, {sXO[i]} offen offset:{1024*i}{self.pol('x')} lds"
            if i >= 2 and c < 7:
                t += f"\n+v_xor_b32 {V(vXA[i&1])}, {(c ^ (c+1)) << 7}, {V(vXA[i&1])}"
            L += self.T(t, f"x{c}")
        if c >= 4:
            L[0] = self.join(self.W(f"xr{c-4}"), [L[0]])[0]
        return self.dma(f"s_add_u32 m0, {sM0}, {R1 + (c & 3)*16384}", L)

    def ld_w1(self, n):
        c = n & 7
        t = f"buffer_load_dwordx4 {V(vW0)}, {SW1}, {sW1O} offen{self.pol('w1')} lds\n"
        if n == 7:
            t += f"+v_add_u32 {V(vW0)}, 128, {V(vW0)}\n"
        t += f"buffer_load_dwordx4 {V(vW1)}, {SW1}, {sW1O} offen offset:1024{self.pol('w1')} lds\n"
        if n == 7:
            t += f"+v_add_u32 {V(vW1)}, 128, {V(vW1)}\n"
        if n < 15:
            t += f"+s_xor_b32 {sW1O}, {sRHO}, {(c+1) & 7}\n+s_mul_i32 {sW1O}, {sW1O}, {64*3584}"
        L = self.T(t, f"w{n}")
        if n >= 8 and n % 2 == 0:
            L[0] = self.join(self.W(f"xr{4 + (n-8)//2}"), [L[0]])[0]
        return self.dma(f"s_add_u32 m0, {sM0}, {(n >> 3)*R1 + (c >> 1)*16384 + (c & 1)*2048}", L)

    def rd_x(self, c):
        L = self.T("\n".join(f"ds_read_b128 {V(XR+16*c+4*tt,4)}, {V(vXR[tt])} offset:{(c & 3)*16384}" for tt in range(4)), f"xr{c}")
        L[0] = self.join(self.W(f"x{c}"), [L[0]])[0]
        return L

    def addr_b1(self):
        t = f"""
        v_lshrrev_b32 v29, 4, {V(vL)}
        v_lshrrev_b32 v30, 5, {V(vL)}
        v_bfe_u32 v31, {V(vL)}, 1, 3
        v_xor_b32 v31, v31, v30
        v_lshlrev_b32 v31, 4, v31
        v_and_b32 v32, 31, {V(vL)}
        v_lshl_add_u32 v31, v32, 7, v31
        s_add_u32 {sT0}, {sM0}, {R1}
        v_add_u32 v31, {sT0}, v31
        v_bfe_u32 v32, {V(vL)}, 2, 2          ; r
        v_and_b32 v33, 3, {V(vL)}             ; c
        v_bfe_u32 v35, {V(vL)}, 3, 1          ; (r>>1)&1
        v_lshlrev_b32 v35, 6, v35
        v_lshl_add_u32 v35, v32, 7, v35
        v_and_b32 v34, 1, v29
        v_lshl_add_u32 v35, v34, 5, v35
        v_lshl_add_u32 v35, v33, 3, v35
        v_lshl_add_u32 v34, v30, 10, v35
        """
        for tt in range(4):
            t += f"""
            s_add_u32 {sT0}, {sW}, {tt}
            s_and_b32 {sT0}, {sT0}, 3
            s_lshl_b32 {sT1}, {sT0}, 5
            s_lshl_b32 {sT0}, {sT0}, 12
            v_xor_b32 {V(vXR[tt])}, {sT1}, v31
            v_add_u32 {V(vA[tt][0])}, {sT0}, v34
            v_xor_b32 {V(vA[tt][1])}, 64, {V(vA[tt][0])}
            """
        t += f"""
        v_lshrrev_b32 v31, 2, {V(vL)}
        v_xor_b32 v31, v31, v29
        v_and_b32 v31, 1, v31
        v_add_u32 v31, -1, v31
        v_and_b32 v31, 0x3f803f80, v31
        v_accvgpr_write_b32 {A(aSEL)}, v31
        v_accvgpr_write_b32 {A(aSEL+1)}, v31
        v_accvgpr_write_b32 {A(aSEL+2)}, v31
        v_accvgpr_write_b32 {A(aSEL+3)}, v31
        """
        return self.T(t)

    def addr_a1(self):
        return self.T(f"""
        v_lshrrev_b32 v27, 4, {V(vL)}         ; G
        v_bfe_u32 v28, {V(vL)}, 2, 2          ; r
        v_and_b32 v29, 3, {V(vL)}             ; c
        v_lshrrev_b32 v30, 2, {V(vL)}         ; 4G + r
        v_lshlrev_b32 v30, 9, v30
        v_lshl_add_u32 v30, v29, 3, v30
        v_xor_b32 v31, {sW}, v28
        v_lshl_add_u32 v31, v31, 5, v30
        v_add_u32 {V(vT0)}, {KT + 1024}, v31
        v_add_u32 v32, 3, v28
        v_and_b32 v32, 3, v32
        v_xor_b32 v32, {sW}, v32
        v_lshl_add_u32 v32, v32, 5, v30
        v_add_u32 {V(vT1)}, {KT + 512}, v32
        s_mul_i32 {sT1}, {sW}, 2176
        s_add_u32 {sT1}, {sT1}, {YB}
        v_bfe_u32 v33, {V(vL)}, 1, 3          ; i>>1
        v_mul_u32_u24 v33, 272, v33
        v_lshl_add_u32 v33, v27, 4, v33
        v_add_u32 v33, {sT1}, v33
        v_and_b32 v34, 1, {V(vL)}
        v_lshlrev_b32 v34, 1, v34
        s_and_b32 {sT0}, {sST}, 3
        v_xor_b32 v34, {sT0}, v34
        v_xor_b32 v35, 1, v34
        v_lshl_add_u32 {V(vB0)}, v34, 6, v33
        v_lshl_add_u32 {V(vB1)}, v35, 6, v33
        v_and_b32 v36, 15, {V(vL)}
        v_lshlrev_b32 v36, 4, v36
        v_mul_u32_u24 v37, 272, v27
        v_add3_u32 {V(vBR)}, v37, v36, {sT1}
        v_lshl_add_u32 {V(vKS)}, v27, 13, v36
        s_lshl2_add_u32 {sT0}, {sDT}, {sW}
        s_lshl_b32 {sT1}, {sT0}, 16
        s_lshl_b32 {sT2}, {sST}, 8
        s_add_u32 {sKS0}, {sT1}, {sT2}
        s_add_u32 {sKS1}, {sKS0}, {4*8192}
        s_mul_i32 {sW2O}, {sT0}, {28*2048}
        s_add_u32 {sW2O}, {sW2O}, {W2T}
        """)

    def a1(self, fill):
        a = self.a
        KR, VR, KF, VF, acc = 192, 206, 214, 242, 250
        for s in range(-3, 4):
            base, imm = (vT0, s * 128) if s >= 0 else (vT1, (s + 4) * 128)
            a(f"ds_read_b64_tr_b16 {V(KR+2*(s+3),2)}, {V(base)} offset:{imm}")
        for r in range(4):
            a(f"ds_read_b64_tr_b16 {V(VR+2*r,2)}, {V(vT0)} offset:{VT-KT-1024+r*128}")
        ops = []
        def unpack(dst, src):
            return [f"v_lshlrev_b32 {V(dst)}, 16, {V(src)}", f"v_and_b32 {V(dst+1)}, 0xffff0000, {V(src)}",
                    f"v_lshlrev_b32 {V(dst+2)}, 16, {V(src+1)}", f"v_and_b32 {V(dst+3)}, 0xffff0000, {V(src+1)}"]
        ops += unpack(WF, SHR)
        ops += ["s_add_u32 s42, s42, 0x7f4a7c15\ns_addc_u32 s43, s43, 0x9e3779b9", f"v_mov_b32 {V(vTAG)}, s42", f"v_mov_b32 {V(vTAG+1)}, s43"]
        done = set()
        for rho in range(4):
            for j in range(3, -1, -1):
                s = rho - j
                if s not in done:
                    ops += unpack(KF + 4 * (s + 3), KR + 2 * (s + 3))
                    done.add(s)
            vf = VF + 4 * (rho & 1)
            ops += unpack(vf, VR + 2 * rho)
            for j in range(3, -1, -1):
                s = rho - j
                wp = V(WF + (j & 2), 2)
                lo = j & 1
                for h in range(2):
                    k = V(KF + 4 * (s + 3) + 2 * h, 2)
                    d = V(acc + 2 * h, 2)
                    if j == 3:
                        ops.append(f"v_pk_mul_f32 {d}, {k}, {wp} op_sel:[0,{lo}] op_sel_hi:[1,{lo}]")
                    else:
                        ops.append(f"v_pk_fma_f32 {d}, {k}, {wp}, {d} op_sel:[0,{lo},0] op_sel_hi:[1,{lo},1]")
            for h in range(2):
                ops.append(f"v_pk_mul_f32 {V(acc+2*h,2)}, {V(acc+2*h,2)}, {V(vf+2*h,2)}")
            for h in range(2):
                ops.append(f"v_cvt_pk_bf16_f32 {V(U+2*rho+h)}, {V(acc+2*h)}, {V(acc+2*h+1)}")
            if rho & 1:
                ops.append(f"ds_write_b128 {V(vB0 if rho == 1 else vB1)}, {V(U+4*(rho>>1),4)}")
        nf = len(fill)
        k = 0
        for n, op in enumerate(ops):
            a(op)
            while k < nf and (k + 1) * len(ops) <= (n + 1) * (nf + 1):
                fill[k]()
                k += 1
        a(f"ds_read_b128 {V(U,4)}, {V(vBR)}")
        a(f"ds_read_b128 {V(U+4,4)}, {V(vBR)} offset:1088")
        for f in fill[k:]:
            f()

    def kv_store(self):
        return self.T(f"""
        buffer_store_dwordx4 {V(U,4)}, {V(vKS)}, {SWS}, {sKS0} offen{self.pol('kvst', 'sc1')}
        buffer_store_dwordx4 {V(U+4,4)}, {V(vKS)}, {SWS}, {sKS1} offen{self.pol('kvst', 'sc1')}""", "kvst")

    def addr_w2r(self):
        return self.T(f"""
        v_add_u32 v21, 7168, v20
        s_and_b32 {sT0}, {sW}, 1
        s_mul_i32 {sT0}, {sT0}, {7*128}
        s_lshr_b32 {sT1}, {sW}, 1
        s_lshl_b32 {sT1}, {sT1}, 6
        s_add_u32 {sT0}, {sT0}, {sT1}
        s_and_b32 {sT1}, {sJ}, 3
        s_lshl4_add_u32 {sT0}, {sT1}, {sT0}
        s_lshl3_add_u32 {sT0}, {sT0}, {sXCD}
        s_lshl_b32 {sW1O}, {sT0}, 7
        s_lshl2_add_u32 {sT0}, {sXCD}, {sT1}
        s_lshl2_add_u32 {sT0}, {sT0}, {sW}
        s_mul_i32 {sHO}, {sT0}, {7*2048}
        s_add_u32 {sHO}, {sHO}, {W2T}          ; fragment store
        s_lshl_b32 {sRHO}, {sW}, 14
        """)

    def addr_w2t(self):
        return self.T(f"""
        v_lshrrev_b32 v29, 4, {V(vL)}
        v_lshrrev_b32 v30, 5, {V(vL)}
        v_bfe_u32 v32, {V(vL)}, 2, 2          ; r
        v_and_b32 v33, 3, {V(vL)}             ; c
        v_bfe_u32 v35, {V(vL)}, 3, 1          ; (r>>1)&1
        v_lshlrev_b32 v35, 6, v35
        v_lshl_add_u32 v35, v32, 7, v35
        v_and_b32 v34, 1, v29
        v_lshl_add_u32 v35, v34, 5, v35
        v_lshl_add_u32 v35, v33, 3, v35
        v_lshl_add_u32 v12, v30, 9, v35       ; k = 4*half + r
        v_add_u32 v12, {sRHO}, v12
        v_xor_b32 v13, 64, v12
        """)

    def ld_w2r(self, i):
        t = f"""
        buffer_load_dwordx4 v20, {SW2}, {sW1O} offen{self.pol('w2r')} lds
        buffer_load_dwordx4 v21, {SW2}, {sW1O} offen offset:1024{self.pol('w2r')} lds"""
        if i < 6:
            t += f"\n+s_add_u32 {sW1O}, {sW1O}, {128*1024}"
        return self.dma(f"s_add_u32 m0, {sRHO}, {2048*i}", self.T(t, f"w2r{i}"))

    def w2_read(self, i):
        L = self.T("\n".join(f"ds_read_b64_tr_b16 {V(40+8*i+4*nb+2*jj,2)}, {V(12+nb)} offset:{2048*i + 1024*jj}" for nb in range(2) for jj in range(2)))
        return self.join(self.W(f"w2r{i}"), L)

    def w2_store(self, i):
        t = "\n".join(f"buffer_store_dwordx4 {V(40+8*i+4*nb,4)}, {V(vL16)}, {SWS}, {sHO} offen offset:{2048*(i&1) + 1024*nb}{self.pol('w2st', 'sc1')}" for nb in range(2))
        if i & 1:
            t += f"\n+s_add_u32 {sHO}, {sHO}, 4096"
        return self.T(t, "kvst")

    def w_frag(self, s, fb):
        c, tt = (s >> 2) & 7, s & 3
        r = RING + 8 * (s % 3) + 4 * fb
        for jj in range(2):
            self.a(f"ds_read_b64_tr_b16 {V(r+2*jj,2)}, {V(vA[tt][fb])} offset:{(c>>1)*16384 + (c&1)*2048 + jj*512}", f"f{s}")

    def b1(self, fill, after):
        a = self.a
        for s in range(64):
            hf, c, tt = s >> 5, (s >> 2) & 7, s & 3
            a.phase = f"p{hf+1}"
            x = V(XR + 16 * c + 4 * tt, 4)
            n2 = s + 2
            cnt = []
            for fb in range(2):
                n0 = len(a.out)
                acc = V(ACC + 32 * hf + 16 * fb, 16)
                fr = V(RING + 8 * (s % 3) + 4 * fb, 4)
                first = (c == 0 and tt == 0)
                if fb == 0:
                    a.wait(f"f{s}")
                a(f"v_mfma_f32_32x32x16_bf16 {acc}, {fr}, {x}, {'0' if first else acc}")
                if (s | 3) in after and tt >= 2:
                    if fb == 0 and tt == 3:
                        a("s_barrier")
                elif n2 < 64:
                    if fb == 0 and tt == 2:
                        a.wait(f"w{n2 >> 2}")
                    if fb == 0 and tt == 3:
                        a("s_barrier")
                    if 32 <= n2 < 36:
                        a(f"v_add_u32 {V(vA[n2&3][fb])}, 0x10000, {V(vA[n2&3][fb])}")
                    self.w_frag(n2, fb)
                self.gap(fill, 2 * s + fb, "b1")
                if tt == 0:
                    cc = A(aC + 8 * hf + 4 * fb, 4)
                    a(f"v_mfma_f32_16x16x32_bf16 {cc}, {A(aSEL,4)}, {fr}, {'0' if c == 0 else cc}")
                if hf == 0 and fb == 1:
                    mm = A(aM, 4)
                    a(f"v_mfma_f32_16x16x32_bf16 {mm}, {A(aSEL,4)}, {x}, {'0' if first else mm}")
                cnt.append(len(a.out) - n0)
            self.load.append(("b1", s, cnt))
            self.stamp(f"s{hf+1}.{s}")
            if tt == 3:
                self.stamp(f"p{hf+1}.c{c}")
            if s in after:
                after[s]()
            if s == 31:
                self.stamp("pass1")
        assert not fill, fill.keys()

    def c_publish(self, hf):
        return self.T(f"""
        v_accvgpr_read_b32 v27, {A(aC+8*hf)}
        v_accvgpr_read_b32 v28, {A(aC+8*hf+4)}
        s_lshl_b32 {sT0}, {sW}, 3
        s_add_u32 {sT0}, {sT0}, {CX + 2048*hf}
        v_cmp_gt_u32 vcc, 32, {V(vL)}
        +v_lshlrev_b32 v30, 5, {V(vL)}
        +v_add_u32 v30, {sT0}, v30
        +v_cndmask_b32 v27, v28, v27, vcc
        v_and_b32 v28, 0xffff0000, v27
        v_sub_f32 v27, v27, v28
        v_and_b32 v29, 0xffff0000, v27
        v_sub_f32 v27, v27, v29
        v_lshrrev_b32 v28, 16, v28
        v_or_b32 v28, v28, v29
        v_lshrrev_b32 v29, 16, v27
        ds_write_b64 v30, v[28:29]
        """, f"cx{hf}")

    def m_finish(self):
        return self.T(f"""
        v_accvgpr_read_b32 v36, {A(aM)}
        v_mul_f32 v36, 0xbb000000, v36
        v_cvt_pk_bf16_f32 v36, v36, v36
        v_accvgpr_write_b32 {A(aM)}, v36
        v_accvgpr_write_b32 {A(aM+1)}, v36
        v_accvgpr_write_b32 {A(aM+2)}, v36
        v_accvgpr_write_b32 {A(aM+3)}, v36
        """)

    def c_addr(self):
        return self.T(f"""
        v_and_b32 v37, 31, {V(vL)}
        v_lshrrev_b32 v36, 5, {V(vL)}
        v_lshlrev_b32 v37, 5, v37
        v_lshl_add_u32 v37, v36, 4, v37
        v_add_u32 v37, {CX}, v37
        """)

    def c_read(self, hf):
        return self.T(f"""
        ds_read_b128 v[28:31], v37 offset:{2048*hf}
        ds_read_b128 v[32:35], v37 offset:{2048*hf + 1024}
        """)

    def c_apply(self, hf, fb):
        acc = V(ACC + 32 * hf + 16 * fb, 16)
        return self.T(f"v_mfma_f32_32x32x16_bf16 {acc}, {V(28+4*fb,4)}, {A(aM,4)}, {acc}")

    def h_store(self, hf, q):
        r = ACC + 32 * hf + 8 * q
        t = "\n".join(f"v_cvt_pk_bf16_f32 {V(r+i)}, {V(r+2*i)}, {V(r+2*i+1)}" for i in range(4)) + "\n"
        t += "\n".join(f"v_pk_max_i16 {V(r+i)}, {V(r+i)}, 0" for i in range(4)) + "\n"
        t += f"s_add_u32 {sT0}, {sHO}, {(hf*56 + q*14)*1024}\n"
        t += f"+buffer_store_dwordx4 {V(r,4)}, {V(vL16)}, {SWS}, {sT0} offen{self.pol('hst', 'sc1')}"
        return self.T(t, f"hst{hf}")

    def addr_rot(self):
        t = f"""
        s_lshr_b32 {sT0}, {sJ}, 3
        s_lshl1_add_u32 {sT0}, {sT0}, {sDT}
        s_mul_i32 {sT0}, {sT0}, {2048 if self.o.get("rho2", 0) else 0}
        s_sub_u32 {sT1}, {sT0}, {7*2048}
        +s_cselect_b32 {sG[0]}, {sT0}, {sT1}
        """
        for g in range(1, 7):
            t += f"""
            s_add_u32 {sT0}, {sG[g-1]}, 2048
            s_cmp_eq_u32 {sT0}, {7*2048}
            +s_cselect_b32 {sG[g]}, 0, {sT0}
            """
        return self.T(t)

    def ld_w2(self):
        L = []
        for i in range(56):
            t = f"buffer_load_dwordx4 {A(4*i,4)}, {V(vL16)}, {SWS}, {sW1O} offen offset:{1024*(i&3)}{self.pol('w2t', 'sc1')}"
            if i == 27:
                t += f"\n+s_add_u32 {sW2O}, {sW2O}, {14*2048}"
            if i % 4 == 0:
                t = f"s_lshl1_add_u32 {sW1O}, {sG[(i//4) % 7]}, {sW2O}\n+" + t
            L += self.T(t)
        return L

    def ld_hk(self):
        nt = self.pol("hk")
        return self.T("\n".join(f"buffer_load_dwordx4 {V(HK+4*i,4)}, {V(vL16)}, {SHK}, {sHK} offen offset:{1024*i}{nt}" for i in range(4)))

    def p_head(self):
        x = HK + 16
        return self.T(f"""
        s_lshr_b32 {sT0}, {sW}, 1
        s_lshl_b32 {sT0}, {sT0}, 4
        s_lshr_b32 {sT0}, {sD}, {sT0}
        s_lshl_b32 {sT0}, {sT0}, 16
        s_lshl_b32 {sT1}, {sH0}, 16
        v_mov_b32 {V(x)}, {sT0}
        v_add_f32 {V(x)}, {sT1}, {V(x)}
        v_cvt_pk_bf16_f32 {V(x)}, {V(x)}, {V(x)}
        s_mul_i32 {sT2}, {sW}, 8256
        v_mov_b32 {V(x+4)}, 0
        v_readfirstlane_b32 {sT0}, {V(x)}
        v_mov_b32 {V(x+5)}, 0
        v_mov_b32 {V(x+6)}, 0
        v_mov_b32 {V(x+7)}, 0
        s_and_b32 {sT0}, {sT0}, 0xffff
        s_and_b32 {sT1}, {sH0}, 0xffff0000
        s_or_b32 {sT0}, {sT0}, {sT1}            ; (h0 + D, h1)
        s_bitcmp1_b32 {sW}, 0
        +s_cselect_b32 {sCY}, {sT0}, {sH1}      ; dword 3 of chunk 1
        +s_cselect_b32 {sT0}, 0, {sT0}          ; dword 2 of chunk 1
        s_lshl_b32 {sT1}, {sT0}, 16
        s_lshl_b32 {sT3}, {sCY}, 16
        v_writelane_b32 {V(x+6)}, {sT0}, 1
        s_lshr_b32 {sT0}, {sT0}, 16
        v_writelane_b32 {V(x+7)}, {sCY}, 1
        s_or_b32 {sT3}, {sT3}, {sT0}
        v_writelane_b32 {V(x+6)}, {sT1}, 3
        v_writelane_b32 {V(x+7)}, {sT3}, 3
        v_and_b32 {V(x)}, 1, {V(vL)}
        v_lshrrev_b32 {V(x+1)}, 1, {V(vL)}
        v_mul_u32_u24 {V(x+1)}, 4128, {V(x+1)}
        v_lshl_add_u32 {V(x)}, {V(x)}, 4, {V(x+1)}
        v_add_u32 {V(x)}, {sT2}, {V(x)}
        v_add_u32 {V(x+2)}, {sT2}, {V(vL16)}
        v_lshlrev_b32 {V(x+1)}, 2, v0
        """)

    def p_head2(self):
        x = HK + 16
        return self.T(f"""
        s_mov_b64 exec, 15
        +ds_write_b128 {V(x)}, {V(x+4,4)} offset:{PB}
        +s_mov_b64 exec, -1
        ds_write_b32 {V(x+1)}, {V(x+4)} offset:{KV}
        """, "pw")

    def p_shift(self, i):
        r = HK + 4 * i
        x = HK + 16
        d = HK + 24 + 4 * (i & 1)
        return self.T(f"""
        v_mov_b32 {V(x+3)}, {sCY}
        v_readlane_b32 {sCY}, {V(r+3)}, 63
        v_alignbyte_b32 {V(d+1)}, {V(r+1)}, {V(r)}, 2
        v_mov_b32_dpp {V(x+3)}, {V(r+3)} wave_shr:1 row_mask:0xf bank_mask:0xf
        v_alignbyte_b32 {V(d+2)}, {V(r+2)}, {V(r+1)}, 2
        v_alignbyte_b32 {V(d+3)}, {V(r+3)}, {V(r+2)}, 2
        v_alignbyte_b32 {V(d)}, {V(r)}, {V(x+3)}, 2
        """)

    def p_write(self, i, ph):
        x = HK + 16
        src = HK + 24 + 4 * (i & 1) if ph else HK + 4 * i
        return self.T(f"ds_write_b128 {V(x+2)}, {V(src,4)} offset:{PB + 4128*ph + 32 + 1024*i}", "pw")

    def w2_poll_addr(self):
        return self.T(f"""
        s_lshl3_add_u32 {sPO}, {sW}, {sDT}
        s_lshl_b32 {sPO}, {sPO}, 7
        s_add_u32 {sPO}, {sPO}, {FL_KV + 28*8*128}
        v_mov_b32 {V(vPO)}, 0
        """)

    def kv_poll_addr(self):
        return self.T(f"""
        v_and_b32 {V(vPO)}, 3, {V(vL)}
        v_bfe_u32 v38, {V(vL)}, 2, 1
        v_lshlrev_b32 {V(vPO)}, 13, {V(vPO)}
        v_lshl_add_u32 {V(vPO)}, v38, 7, {V(vPO)}
        s_lshr_b32 {sPO}, {sJ}, 2
        s_lshl2_add_u32 {sPO}, {sPO}, {sW}
        s_lshl_b32 {sPO}, {sPO}, 8
        s_add_u32 {sPO}, {sPO}, {FL_KV}
        """)

    def kv_fetch(self):
        return self.T(f"""
        s_lshr_b32 {sU0}, {sM0}, 1
        +s_add_u32 m0, {sU0}, {KV + 1024}
        buffer_load_dwordx4 {V(vL16)}, {SWS}, {sKF} offen{self.pol('kv', 'sc1')} lds
        buffer_load_dwordx4 {V(vL16)}, {SWS}, {sKF} offen offset:1024{self.pol('kv', 'sc1')} lds
        """, "kv")

    def conv_addr(self):
        t = f"""
        v_lshrrev_b32 v27, 4, {V(vL)}          ; G
        v_bfe_u32 v28, {V(vL)}, 2, 2           ; r
        v_and_b32 v29, 3, {V(vL)}              ; c
        v_lshl_add_u32 v29, v27, 2, v29
        v_sub_u32 v29, v29, v28
        s_mul_i32 {sT0}, {sW}, 8256
        s_add_u32 {sT0}, {sT0}, {PB + 24}
        v_lshlrev_b32 v29, 3, v29
        v_add_u32 {V(vCA)}, {sT0}, v29
        v_and_b32 v28, 15, {V(vL)}
        v_sub_u32 v28, v28, v27                ; a - G
        v_add_u32 v28, 16, v28
        v_lshrrev_b32 v27, 2, v28
        v_and_b32 v28, 3, v28
        v_lshlrev_b32 v28, 4, v28
        v_lshl_add_u32 v28, v27, 8, v28
        """
        for e in range(4):
            t += f"""
            v_add_u32 v29, {-e}, v27
            v_xor_b32 v29, {sW}, v29
            v_and_b32 v29, 3, v29
            v_lshl_add_u32 v29, v29, 6, v28
            v_add_u32 {V(vXR[e])}, {KV - 256*e}, v29
            """
        return self.T(t)

    def conv_reads(self, e):
        base = XR + 64 * (e & 1)
        L = []
        for n in range(8):
            L.append(f"ds_read_b128 {V(base+32+4*n,4)}, {V(vXR[e])} offset:{1024*n}")
            for ph in range(2):
                L.append(f"ds_read_b64_tr_b16 {V(base+4*n+2*ph,2)}, {V(vCA)} offset:{ph*4128 + 128*(4*n+e)}")
        return self.T("\n".join(L), f"cv{e}")

    def conv(self, fill):
        a = self.a
        k = 0
        for e in range(4):
            base = XR + 64 * (e & 1)
            if e < 3:
                self.place(fill, self.conv_reads(e + 1), 36 * e + 2, 0.75)
                prs = sorted([(n, d) for n in range(8) for d in range(8) if n + d < 8], key=lambda p: (max(p), p[0] + p[1]))
            else:
                prs = sorted([(n, d) for n in range(8) for d in range(8) if n + d < 8], key=lambda p: (-(p[0] + p[1]), max(p)))
            seen = set()
            cnt = []
            for i, (n, d) in enumerate(prs):
                n0 = len(a.out)
                acc = A(aY + 4 * (n + d), 4)
                first = (e == 0 and (n + d) not in seen)
                seen.add(n + d)
                a(f"v_mfma_f32_16x16x32_bf16 {acc}, {V(base+4*n,4)}, {V(base+32+4*d,4)}, {'0' if first else acc}")
                self.gap(fill, k, "cv")
                cnt.append(len(a.out) - n0)
                if k % 4 == 3:
                    self.stamp(f"cg.{k}")
                k += 1
            self.load.append(("cv", e, cnt))
            self.stamp(f"cv.e{e}")
        assert not fill, fill.keys()

    def y_addr(self):
        return self.T(f"""
        v_lshrrev_b32 v27, 4, {V(vL)}
        v_and_b32 v28, 15, {V(vL)}
        v_mul_u32_u24 v27, 20, v27
        v_add_lshl_u32 v27, v27, v28, 4
        s_mul_i32 {sT0}, {sW}, 10240
        s_add_u32 {sT0}, {sT0}, {EX}
        v_add_u32 v12, {sT0}, v27
        v_and_b32 v28, 3, {V(vL)}
        v_lshrrev_b32 v29, 2, {V(vL)}
        v_mul_u32_u24 v28, 20, v28
        v_add_lshl_u32 v28, v28, v29, 4
        s_mul_i32 {sT0}, {sW}, 2560
        s_add_u32 {sT0}, {sT0}, {EX}
        v_add_u32 v13, {sT0}, v28
        """)

    def y_write(self, t):
        return self.T(f"ds_write_b128 v12, {A(aY+4*t,4)} offset:{1280*t}", "ex")

    YT = 160
    def y_gather(self):
        R = self.YT
        L = self.join(self.W("ex"), self.T("s_barrier"))
        L += self.T("\n".join(f"ds_read_b128 {V(R+16*t+4*src,4)}, v13 offset:{10240*src + 1280*t}" for t in range(2) for src in range(4)))
        return L

    def y_sum(self, t):
        b = self.YT + 16 * t
        x = ""
        for i in range(4):
            x += f"v_add_f32 {V(b+i)}, {V(b+i)}, {V(b+4+i)}\n"
        for i in range(4):
            x += f"v_add_f32 {V(b+8+i)}, {V(b+8+i)}, {V(b+12+i)}\n"
        for i in range(4):
            x += f"v_cvt_pk_bf16_f32 {V(b+4+i)}, {V(b+i)}, {V(b+8+i)}\n"
        x += f"s_add_u32 {sT0}, {sKF}, {YWS}\n"
        x += f"+buffer_store_dwordx4 {V(b+4,4)}, {V(vL16)}, {SWS}, {sT0} offen offset:{1024*t}{self.pol('yst', 'sc1')}"
        return self.T(x, "yst")

    def publish(self, tag, soff, imm=0):
        return self.join(self.W(tag), self.T("s_barrier"), self.flag_store(soff, imm))

    def h_poll_addr(self):
        return self.T(f"""
        v_min_u32 {V(vPO)}, 13, {V(vL)}
        v_lshlrev_b32 {V(vPO)}, 8, {V(vPO)}
        s_lshr_b32 {sPO}, {sST}, 1
        s_mul_i32 {sPO}, {sPO}, {14*256}
        s_add_u32 {sPO}, {sPO}, {FL_H}
        s_mul_i32 {sHL}, {sST}, 224
        s_mul_i32 {sT0}, {sW}, 14
        s_add_u32 {sHL}, {sHL}, {sT0}
        s_lshl_b32 {sHL}, {sHL}, 10
        s_add_u32 {sHL}, {sHL}, {HWS}
        v_add_u32 {V(vH2)}, {112*1024}, {V(vL16)}
        """)

    def ld_h(self, order):
        L = []
        cur = None
        for k, sb in order:
            hf, T = divmod(k, 14)
            t = f"buffer_load_dwordx4 {V(hslot(k,sb),4)}, {V(vH2 if sb else vL16)}, {SWS}, {sHL2} offen offset:{1024*(T&1)}{self.pol('h', 'sc1')}"
            if cur != (hf, T // 2):
                t = f"s_add_u32 {sHL2}, {sHL}, {sG[T//2]}\n+" + t
                if hf == 1 and cur[0] == 0:
                    t = f"s_add_u32 {sHL}, {sHL}, {56*1024}\n+" + t
                cur = (hf, T // 2)
            L += self.T(t)
        return L

    def b2(self, order, fill):
        a = self.a
        seen = set()
        cnt = []
        for g, (k, q) in enumerate(order):
            n0 = len(a.out)
            sb, nb = q >> 1, q & 1
            acc = V(ACC2 + 16 * q, 16)
            a(f"v_mfma_f32_32x32x16_bf16 {acc}, {A(8*k+4*nb,4)}, {V(hslot(k,sb),4)}, {acc if q in seen else '0'}")
            seen.add(q)
            self.gap(fill, g, "b2")
            cnt.append(len(a.out) - n0)
            if g % 16 == 15:
                self.load.append(("b2", g, cnt))
                cnt = []
            if g % 2 == 1:
                self.stamp(f"bg.{g}")
            if g % 12 == 11:
                self.stamp(f"b2.g{g}")
        assert not fill, fill.keys()

    EXR, ESR, EYR = 112, 120, 160
    XF, TF, RR = 128, 144, 160

    def y_poll_addr(self):
        return self.T(f"""
        v_and_b32 {V(vPO)}, 7, {V(vL)}
        v_lshlrev_b32 {V(vPO)}, 7, {V(vPO)}
        s_lshl2_add_u32 {sPO}, {sDT}, {sW}
        s_lshl_b32 {sPO}, {sPO}, 10
        s_add_u32 {sPO}, {sPO}, {FL_Y}
        """)

    def ep_loads(self):
        return self.T(f"""
        v_lshrrev_b32 v18, 3, {V(vL)}
        v_lshlrev_b32 v18, 4, v18
        s_lshl_b32 {sT0}, {sST}, 10
        s_lshl_b32 {sT1}, {sW}, 8
        s_add_u32 {sT0}, {sT0}, {sT1}
        s_add_u32 {sST2}, {sT0}, {STAT}
        s_add_u32 {sU1}, {sEO}, 8192
        buffer_load_dwordx4 {V(self.ESR,4)}, v18, {SWS}, {sST2} offen sc1
        buffer_load_dwordx4 {V(self.ESR+4,4)}, v18, {SWS}, {sST2} offen offset:128 sc1
        buffer_load_dwordx4 {V(self.EXR,4)}, {V(vXO)}, {SX}, {sEO} offen{self.pol('xe')}
        buffer_load_dwordx4 {V(self.EXR+4,4)}, {V(vXO)}, {SX}, {sU1} offen{self.pol('xe')}
        """)

    def y_fetch_addr(self):
        return self.T(f"""
        v_lshrrev_b32 v27, 4, {V(vL)}
        v_and_b32 v28, 15, {V(vL)}
        s_lshl_b32 {sT0}, {sW}, 2
        v_xor_b32 v28, {sT0}, v28
        v_lshlrev_b32 v28, 4, v28
        v_lshl_add_u32 v34, v27, 13, v28
        v_xor_b32 v35, 32, v34
        v_add_u32 v35, {4*8192 - 1024}, v35
        v_lshrrev_b32 v27, 5, {V(vL)}
        v_or_b32 v27, {sT0}, v27
        v_and_b32 v28, 7, {V(vL)}
        v_lshlrev_b32 v29, 1, v28
        v_xor_b32 v27, v27, v29
        v_lshlrev_b32 v27, 4, v27
        v_lshl_add_u32 v27, v28, 10, v27
        v_bfe_u32 v28, {V(vL)}, 3, 2
        v_lshl_add_u32 v27, v28, 2, v27
        v_add_u32 v30, {YB}, v27
        v_xor_b32 v31, 32, v30
        s_lshl2_add_u32 {sT0}, {sDT}, {sW}
        s_lshl_b32 {sT0}, {sT0}, 16
        s_lshl_b32 {sT1}, {sST}, 8
        s_add_u32 {sT0}, {sT0}, {sT1}
        s_add_u32 {sU2}, {sT0}, {YWS}
        s_lshr_b32 {sU0}, {sM0}, 1
        s_add_u32 m0, {sU0}, {YB}
        """)

    def y_fetch(self):
        return self.T(f"""
        buffer_load_dwordx4 v34, {SWS}, {sU2} offen{self.pol('y', 'sc1')} lds
        buffer_load_dwordx4 v35, {SWS}, {sU2} offen offset:1024{self.pol('y', 'sc1')} lds
        """, "y")

    def y_read(self):
        L = self.T("\n".join(f"ds_read_b32 {V(self.EYR+4*st+e)}, {V(30 + st)} offset:{256*e}" for st in range(2) for e in range(4)))
        return self.join(self.W("y"), self.T("s_barrier")) + L

    def stat_check(self):
        def f():
            a = self.a
            S = self.ESR
            a(f"v_cmp_ne_u64 vcc, {sTAG}, {V(S+2,2)}")
            a(f"v_cmp_ne_u64 s[60:61], {sTAG}, {V(S+6,2)}")
            a("s_or_b64 vcc, vcc, s[60:61]")
            a("s_cbranch_vccnz L_slow_st")
            a.label("L_back_st")
            self.slow.append(f"""L_slow_st:
    s_mov_b32 {sCNT}, 0
L_spin_st:
    buffer_load_dwordx4 {V(S,4)}, v18, {SWS}, {sST2} offen sc1
    buffer_load_dwordx4 {V(S+4,4)}, v18, {SWS}, {sST2} offen offset:128 sc1
    s_add_u32 {sCNT}, {sCNT}, 1
    s_cmp_gt_u32 {sCNT}, 20000
    s_waitcnt vmcnt(0)
    s_cbranch_scc1 L_back_st
    v_cmp_ne_u64 vcc, {sTAG}, {V(S+2,2)}
    v_cmp_ne_u64 s[60:61], {sTAG}, {V(S+6,2)}
    s_or_b64 vcc, vcc, s[60:61]
    s_cbranch_vccnz L_spin_st
    s_branch L_back_st
""")
        return [f]

    def ep_pre(self, st, e):
        x, y = self.EXR + 4 * st + e, self.EYR + 4 * st + e
        xf, tf = self.XF + 8 * st + 2 * e, self.TF + 8 * st + 2 * e
        m = V(self.ESR + 4 * st)
        return self.T(f"""
        v_lshlrev_b32 {V(xf)}, 16, {V(x)}
        v_and_b32 {V(xf+1)}, 0xffff0000, {V(x)}
        v_lshlrev_b32 v32, 16, {V(y)}
        v_and_b32 v33, 0xffff0000, {V(y)}
        v_sub_f32 {V(tf)}, {V(xf)}, {m}
        v_sub_f32 {V(tf+1)}, {V(xf+1)}, {m}
        v_mul_f32 {V(tf)}, {V(tf)}, v32
        v_mul_f32 {V(tf+1)}, {V(tf+1)}, v33
        """)

    def ep_addr(self):
        return self.T(f"""
        v_and_b32 v36, 31, {V(vL)}
        v_mul_u32_u24 v36, 272, v36
        v_lshrrev_b32 v37, 5, {V(vL)}
        v_lshl_add_u32 v36, v37, 4, v36
        s_mul_i32 {sT0}, {sW}, 17408
        v_add_u32 v15, {sT0}, v36
        v_lshrrev_b32 v36, 3, {V(vL)}
        v_mul_u32_u24 v36, 272, v36
        v_and_b32 v37, 7, {V(vL)}
        v_lshl_add_u32 v36, v37, 5, v36
        s_mul_i32 {sT0}, {sW}, {8*272}
        v_add_u32 v16, {sT0}, v36
        """)

    def red_write(self, q):
        sb, nb = q >> 1, q & 1
        return self.T("\n".join(f"ds_write_b128 v15, {V(ACC2+16*q+4*g,4)} offset:{RED + sb*8704 + nb*128 + g*32}" for g in range(4)), f"red{sb}")

    def red_read(self, st):
        L = self.join(self.W(f"red{st}"), self.T("s_barrier"))
        L += self.T("\n".join(f"ds_read_b128 {V(self.RR+8*src+4*hh,4)}, v16 offset:{RED + src*17408 + st*8704 + hh*16}" for src in range(4) for hh in range(2)))
        return L

    def finish(self, st, packed):
        tf, xf, R = self.TF + 8 * st, self.XF + 8 * st, self.RR
        t = ""
        for src in range(4):
            if packed:
                for p in range(4):
                    t += f"v_pk_add_f32 {V(tf+2*p,2)}, {V(tf+2*p,2)}, {V(R+8*src+2*p,2)}\n"
            else:
                for p in range(8):
                    t += f"v_add_f32 {V(tf+p)}, {V(tf+p)}, {V(R+8*src+p)}\n"
        if packed:
            rr = V(self.ESR + 4 * st, 2)
            for p in range(4):
                t += f"v_pk_fma_f32 {V(tf+2*p,2)}, {V(tf+2*p,2)}, {rr}, {V(xf+2*p,2)} op_sel:[0,1,0] op_sel_hi:[1,1,1]\n"
        else:
            for p in range(8):
                t += f"v_fma_f32 {V(tf+p)}, {V(tf+p)}, {V(self.ESR+4*st+1)}, {V(xf+p)}\n"
        for p in range(4):
            t += f"v_cvt_pk_bf16_f32 {V(xf+p)}, {V(tf+2*p)}, {V(tf+2*p+1)}\n"
        t += f"buffer_store_dwordx4 {V(xf,4)}, {V(vXO)}, {SO}, {sU1 if st else sEO} offen{self.pol('out')}"
        return self.T(t)

    def stats_loads(self):
        a = self.a
        a(f"""
        s_and_b32 {sT1}, {sJ}, 3
        s_lshl2_add_u32 {sT1}, {sXCD}, {sT1}
        s_lshl2_add_u32 {sT1}, {sT1}, {sW}
        s_lshl_b32 {sXO[0]}, {sT1}, 14
        s_add_u32 {sXO[1]}, {sXO[0]}, 8192
        s_mov_b32 {sFH}, {WS_SIZE}
        """)
        for c in range(8):
            for i in range(2):
                a(f"buffer_load_dwordx4 {V(XR+16*c+4*i,4)}, {V(vXO)}, {SX}, {sXO[i]} offen offset:{128*c}{self.pol('xs')}")

    def stats(self):
        a = self.a
        a("v_mov_b32 v27, 0x3f803f80")
        def red8(r):
            a(f"v_add_f32_dpp {V(r)}, {V(r)}, {V(r)} quad_perm:[1,0,3,2] row_mask:0xf bank_mask:0xf")
            a(f"v_add_f32_dpp {V(r)}, {V(r)}, {V(r)} quad_perm:[2,3,0,1] row_mask:0xf bank_mask:0xf")
            a(f"v_add_f32_dpp {V(r)}, {V(r)}, {V(r)} row_half_mirror row_mask:0xf bank_mask:0xf")
        for i in range(2):
            a(f"v_mov_b32 {V(64+8*i)}, 0")
            a(f"v_mov_b32 {V(65+8*i)}, 0")
        for c in range(8):
            for j in range(4):
                for i in range(2):
                    a(f"v_dot2c_f32_bf16 {V(64+8*i+(j&1))}, {V(XR+16*c+4*i+j)}, v27")
        for i in range(2):
            a(f"v_add_f32 {V(64+8*i)}, {V(64+8*i)}, {V(65+8*i)}")
        for i in range(2):
            red8(64 + 8 * i)
        for i in range(2):
            a(f"v_mul_f32 {V(64+8*i)}, 0x3b000000, {V(64+8*i)}")
            a(f"v_mov_b32 {V(66+8*i)}, 0")
            a(f"v_mov_b32 {V(67+8*i)}, 0")
        for c in range(8):
            for j in range(4):
                for i in range(2):
                    x = V(XR + 16 * c + 4 * i + j)
                    t = 68 + 8 * i
                    a(f"v_lshlrev_b32 {V(t)}, 16, {x}")
                    a(f"v_and_b32 {V(t+1)}, 0xffff0000, {x}")
                    a(f"v_pk_add_f32 {V(t,2)}, {V(t,2)}, {V(64+8*i,2)} op_sel:[0,0] op_sel_hi:[1,0] neg_lo:[0,1] neg_hi:[0,1]")
                    a(f"v_pk_fma_f32 {V(66+8*i,2)}, {V(t,2)}, {V(t,2)}, {V(66+8*i,2)}")
        for i in range(2):
            a(f"v_add_f32 {V(66+8*i)}, {V(66+8*i)}, {V(67+8*i)}")
        for i in range(2):
            red8(66 + 8 * i)
        a(f"""
        v_lshrrev_b32 v28, 3, {V(vL)}
        v_lshlrev_b32 v28, 4, v28
        s_lshr_b32 {sT0}, {sXO[0]}, 6
        s_add_u32 {sT0}, {sT0}, {STAT}
        """)
        for i in range(2):
            m, v = 64 + 8 * i, 66 + 8 * i
            a(f"""
            v_mul_f32 {V(v)}, 0x3b000000, {V(v)}
            v_cvt_pk_bf16_f32 {V(v)}, {V(v)}, {V(m)}
            v_and_b32 {V(m)}, 0xffff0000, {V(v)}
            v_lshlrev_b32 {V(v)}, 16, {V(v)}
            v_add_f32 {V(v)}, 0x3727c5ac, {V(v)}
            v_cvt_pk_bf16_f32 {V(v)}, {V(v)}, {V(v)}
            v_lshlrev_b32 {V(v)}, 16, {V(v)}
            v_sqrt_f32 {V(v)}, {V(v)}
            v_cvt_pk_bf16_f32 {V(v)}, {V(v)}, {V(v)}
            v_lshlrev_b32 {V(v)}, 16, {V(v)}
            v_rcp_f32 {V(m+1)}, {V(v)}
            v_mov_b32 {V(m+2)}, {V(vTAG)}
            v_mov_b32 {V(m+3)}, {V(vTAG+1)}
            """)
        a("s_mov_b32 exec_lo, 0x01010101")
        a("s_mov_b32 exec_hi, 0x01010101")
        for i in range(2):
            a(f"buffer_store_dwordx4 {V(64+8*i,4)}, v28, {SWS}, {sT0} offen offset:{128*i} sc1")
        a("s_mov_b64 exec, -1")

    def gen_update(self):
        a = self.a
        a(f"s_cmp_lg_u32 s2, {28*8}")
        a("s_cbranch_scc1 L_nogen")
        a.wait_all()
        a.raw(f"""    v_lshlrev_b32 v28, 7, v0
    s_mov_b32 {sT1}, {FL_KV}
    s_mov_b32 {sCNT}, 0
L_gen_spin:
    buffer_load_dwordx2 v[30:31], v28, {SWS}, {sT1} offen sc1
    s_add_u32 {sCNT}, {sCNT}, 1
    s_cmp_gt_u32 {sCNT}, 20000
    s_waitcnt vmcnt(0)
    s_cbranch_scc1 L_gen_got
    v_cmp_ne_u64 vcc, {sTAG}, v[30:31]
    s_cbranch_vccnz L_gen_spin
L_gen_got:
    s_barrier
    s_cmp_lg_u32 {sW}, 0
    s_cbranch_scc1 L_nogen
    s_mov_b32 {sT1}, {GEN}
    s_mov_b64 exec, 1
    buffer_store_dwordx2 {V(vTAG,2)}, off, {SWS}, {sT1} sc1
    s_mov_b64 exec, -1
    s_waitcnt vmcnt(0)
L_nogen:""")

    @staticmethod
    def mix(main, other):
        out, k = [], 0
        for i, f in enumerate(main):
            out.append(f)
            while k < len(other) and k * len(main) < (i + 1) * len(other):
                out.append(other[k])
                k += 1
        return out + other[k:]

    def b1_start(self, c):
        self.a.wait(f"w{c}")
        self.a("s_barrier")
        for s in range(2):
            for fb in range(2):
                self.w_frag(4 * c + s, fb)

    def build(self):
        a, o, place, run = self.a, self.o, self.place, self.run
        self.prologue()
        st_spare = a.state()
        X, Wd = self.ld_x, self.ld_w1
        seq = X(0) + Wd(0) + self.ld_k() + X(1) + Wd(1) + self.ld_halo() + self.ld_v() + self.ld_sh()
        seq += X(2) + Wd(2) + X(3) + Wd(3) + X(4) + Wd(4)
        nA1 = len(seq)
        seq += self.kv_store() + self.ld_hk() + X(5) + Wd(5) + X(6) + Wd(6) + X(7) + Wd(7)
        for n in range(8, 16):
            seq += Wd(n)
        seq = self.stream(seq)
        npre, nA0 = o.get("npre", 18), o.get("nA0", 27)
        early = self.addr_x() + self.addr_w() + self.addr_h() + self.addr_k()
        rest = self.addr_misc() + self.addr_b1() + self.addr_a1() + self.addr_rot()
        run(early)
        seq[0]()
        self.stamp("pro.args")
        run(self.mix(seq[1:npre], rest))
        self.stamp("pro.issued")
        run(self.rd_x(0))
        self.b1_start(0)
        self.stamp("p1.start")
        self.stamp("p1start")
        fill = {}
        place(fill, seq[npre:nA0], 0, (nA0 - npre) / 16)
        place(fill, self.rd_x(1), 3)
        place(fill, self.W("a1"), 13)
        def do_a1():
            self.stamp("a1start")
            self.a1(seq[nA0:nA1] + self.join(self.rd_x(2)))
            self.b1_start(2)
            self.stamp("a1done")
        gs = place(fill, seq[nA1:], 16, o.get("r1", 0.9))
        for c in range(3, 8):
            place(fill, self.rd_x(c), 8 * c - 5)
        ck = o.get("ck", 4)
        place(fill, self.W("kvst"), 8 * ck + 5)
        place(fill, self.flag_store(sFK), 8 * ck + 6)
        place(fill, self.p_head(), 20, 2)
        place(fill, self.w2_poll_addr(), 38, 2)
        place(fill, self.p_shift(0) + self.p_shift(1), 39, 2)
        pw = self.p_head2() + self.p_write(0, 0) + self.p_write(0, 1) + self.p_write(1, 1)
        place(fill, pw, 46, 1)
        place(fill, self.p_shift(2) + self.p_shift(3), 51, 2)
        place(fill, self.p_write(1, 0) + self.p_write(2, 0) + self.p_write(3, 0), 52, 0.5)
        place(fill, self.p_write(2, 1) + self.p_write(3, 1), 59, 0.5)
        place(fill, self.poll_issue(), o.get("gpw", 48))
        gcw = max(o.get("gcw", 62), gs + 1)
        place(fill, self.poll_check("w2"), gcw)
        place(fill, self.c_publish(0), 62, 2)
        place(fill, self.m_finish() + self.c_addr(), 66, 3)
        place(fill, self.W("cx0"), 69)
        place(fill, self.c_read(0), 71, 2)
        place(fill, self.c_apply(0, 0) + self.c_apply(0, 1), 74)
        ch0 = o.get("ch0", 13)
        hs = []
        for q in range(4):
            hs += self.h_store(0, q)
        place(fill, hs, 77, 3)
        place(fill, self.W("hst0"), 8 * ch0 + 5)
        place(fill, self.flag_store(sFH), 8 * ch0 + 6)
        w2 = self.ld_w2()
        n2 = o.get("n2", 20)
        place(fill, w2[:n2], gcw + 1, n2 / (127 - gcw))
        place(fill, self.kv_poll_addr(), 71, 2)
        place(fill, self.poll_issue(), o.get("gpk", 76))
        gck = o.get("gck", 92)
        place(fill, self.join(self.poll_check("kv"), self.kv_fetch()), gck)
        place(fill, self.conv_addr(), 90, 3)
        ckv = o.get("ckv", 13)
        place(fill, self.W("kv", "pw"), 8 * ckv + 5)
        place(fill, self.conv_reads(0), 8 * ckv + 7, 24 / (127 - 8 * ckv - 7))
        place(fill, self.c_publish(1), 122, 4)
        place(fill, self.join(self.W("cx1"), self.T("s_barrier"), self.c_read(1)), 126)
        self.b1(fill, {7: do_a1})
        self.stamp("pass2")
        a.phase = ""
        run(self.c_apply(1, 0) + self.c_apply(1, 1))
        a("s_branch L_conv")
        st_join = a.state()
        a.restore(st_spare)
        a.label("L_spare")
        run(self.addr_k() + self.addr_w2r())
        sq = self.ld_k() + self.ld_halo() + self.ld_v() + self.ld_sh()
        for i in range(7):
            sq += self.ld_w2r(i)
        sq = self.stream(sq)
        run(self.mix(sq[:14], self.addr_misc() + self.addr_a1() + self.addr_w2t() + self.addr_rot()))
        self.stamp("sp.issued")
        a.wait("a1")
        a("s_barrier")
        self.stamp("sp.a1data")
        self.a1(sq[14:])
        run(self.kv_store())
        self.stamp("sp.a1done")
        run(self.w2_read(0))
        for i in range(7):
            if i < 6:
                run(self.w2_read(i + 1))
            run(self.w2_store(i))
        self.stamp("sp.w2st")
        self.stats_loads()
        self.stamp("sp.xiss")
        run(self.publish("kvst", sFK))
        self.stamp("sp.flag")
        run(self.ld_hk())
        run(self.w2_poll_addr())
        self.stats()
        self.stamp("sp.stats")
        run(self.poll_issue())
        run(self.p_head() + self.p_head2())
        for i in range(4):
            run(self.p_shift(i) + self.p_write(i, 0) + self.p_write(i, 1))
        self.stamp("sp.P")
        run(self.poll_check("w2s"))
        self.stamp("sp.w2ok")
        run(self.kv_poll_addr())
        ws = self.ld_w2()[:n2]
        run(ws[:n2 - 10] + self.poll_issue() + ws[n2 - 10:])
        self.stamp("sp.w2iss")
        run(self.poll_check("kv2") + self.kv_fetch())
        self.stamp("sp.kvok")
        run(self.conv_addr())
        a(f"s_mov_b32 {sHO}, {WS_SIZE}")
        self.gen_update()
        a.wait_all()
        a("s_barrier")
        self.stamp("sp.bar")
        run(self.conv_reads(0))
        a.wait_all()
        self.stamp("sp.join")
        a.restore(st_join)
        a.label("L_conv")
        self.stamp("convstart")
        self.stamp("cv.start")
        fill = {}
        hs = []
        for q in range(4):
            hs += self.h_store(1, q)
        place(fill, hs, 2, 1.5)
        place(fill, self.h_poll_addr() + self.y_addr(), 28, 1)
        horder = [(k, sb) for k in range(20) for sb in range(2)] + [(k, sb) for sb in range(2) for k in range(20, 28)]
        hl = self.ld_h(horder)
        n3, nh = o.get("n3", 16), o.get("nh", 12)
        gh = o.get("gh", 96)
        place(fill, w2[n2:n2 + n3], 0, n3 / gh)
        place(fill, self.poll_issue(0), o.get("gp0", 50))
        place(fill, self.publish("hst1", sFH, 128), o.get("gh1", 80))
        place(fill, self.poll_check("h0", 0), gh)
        place(fill, hl[:nh], gh + 1, nh / (143 - gh))
        g = 108
        for t in range(7, 1, -1):
            g += t + 1
            place(fill, self.y_write(t), g + 1)
        a.phase = "cv"
        self.conv(fill)
        a.phase = "b2"
        self.stamp("convend")
        order = [(k, q) for k in range(20) for q in range(4)]
        order += [(k, q) for k in range(20, 28) for q in range(2)]
        order += [(k, 2) for k in range(20, 28)] + [(k, 3) for k in range(20, 28)]
        fill = {}
        place(fill, self.y_write(1) + self.y_write(0), 0, 2)
        place(fill, self.y_gather(), 2, 2)
        place(fill, self.y_sum(0) + self.y_sum(1), 7, 4)
        g1, g2 = o.get("g1", 33), o.get("g2", 84)
        l1 = self.mix(hl[nh:28], w2[n2 + n3:])
        place(fill, l1, 0, len(l1) / g1)
        place(fill, self.poll_issue(128), o.get("gp1", 20))
        place(fill, self.poll_check("h1", 128), g1)
        place(fill, hl[28:], g1 + 1, 28 / (g2 - g1))
        self.h_sched = (gs, gcw)
        place(fill, self.T(f"s_add_u32 {sFK}, {sFK}, {FL_Y - FL_KV}"), 15)
        place(fill, self.publish("yst", sFK), o.get("gy", 30))
        place(fill, self.ep_addr(), 16, 2)
        place(fill, self.y_fetch_addr(), 36, 2)
        place(fill, self.y_poll_addr(), g1 + 1, 2)
        place(fill, self.poll_issue(0), o.get("gpy", 56))
        gcy = o.get("gcy", 74)
        place(fill, self.join(self.poll_check("y", 0), self.y_fetch()), gcy)
        place(fill, self.ep_loads(), o.get("gep", 62), 2)
        place(fill, self.stat_check(), o.get("gst", 80))
        place(fill, self.y_read(), o.get("gyr", 88), 4)
        ep = []
        for st_ in range(2):
            for e in range(4):
                ep += self.ep_pre(st_, e)
        place(fill, ep, o.get("gyr", 88) + 3, 5)
        place(fill, self.red_write(0) + self.red_write(1), 97, 1)
        place(fill, self.red_read(0), 105, 4)
        place(fill, self.red_write(2), 106, 1)
        f0 = self.finish(0, False)
        place(fill, f0[:20], 108, 5)
        self.b2(order, fill)
        self.stamp("b2end")
        run(f0[20:32])
        run(self.red_write(3))
        run(f0[32:])
        run(self.red_read(1))
        self.stamp("redbar")
        run(self.finish(1, True))
        if o["diag"]:
            a.wait_all()
            self.stamp("end")
            a.wait_all()
            for i in range(max(0, self.nst - 6), self.nst):
                a(f"v_writelane_b32 v39, s{sSTAMP + 2*(i % 8)}, {i}")
            a(f"""
            s_lshl2_add_u32 {sT0}, s2, {sW}
            s_lshl_b32 {sT0}, {sT0}, 8
            s_add_u32 {sT0}, {sT0}, {STAMP}
            v_lshlrev_b32 v27, 2, {V(vL)}
            buffer_store_dword v39, v27, {SWS}, {sT0} offen
            """)
        a.label("L_end")
        a("s_endpgm")
        for s in self.slow:
            a.raw(s)
        a.label("L_codeend")
        return self.wrap(a.text())

    def wrap(self, body):
        return f"""; Fused kernel: out = x + LN(x) * (longconv(shiftconv(k) * v) + D * kv) + relu(LN(x) @ w1) @ w2
; One persistent launch, one workgroup per CU; phases hand data over through d_ws with tagged flags.
; @launch grid=(256,1,1) block=(256,1,1) lds={LDS_SIZE}
.amdgcn_target "amdgcn-amd-amdhsa--gfx950"
.text
.globl {KN}
.p2align 8
.type {KN},@function
{KN}:
{body}
.section .rodata,"a"
.p2align 6
.amdhsa_kernel {KN}
  .amdhsa_next_free_vgpr 512
  .amdhsa_next_free_sgpr 102
  .amdhsa_accum_offset 256
  .amdhsa_group_segment_fixed_size 0
  .amdhsa_kernarg_size 96
  .amdhsa_user_sgpr_count 2
  .amdhsa_user_sgpr_kernarg_segment_ptr 1
  .amdhsa_system_sgpr_workgroup_id_x 1
  .amdhsa_float_denorm_mode_32 3
.end_amdhsa_kernel
"""


if __name__ == "__main__":
    opts = {}
    out = None
    for arg in sys.argv[1:]:
        if "=" in arg:
            k, v = arg.split("=", 1)
            opts[k] = eval(v)
        else:
            out = arg
    g = Gen(**opts)
    txt = g.build()
    if out:
        open(out, "w").write(txt)
        if g.names:
            open(out + ".names", "w").write(" ".join(g.names))
    if opts.get("show"):
        for l in g.load:
            print(l)
    print("nops inserted:", g.a.nops, "lines:", txt.count("\n"), "h sched", g.h_sched, file=sys.stderr)
```
